```python
import torch

def _softmax(x, axis=-1):
    return torch.softmax(x, dim=axis)
def _gelu(x):
    return torch.nn.functional.gelu(x, approximate="tanh")
def _silu(x):
    return torch.nn.functional.silu(x)
def _sigmoid(x):
    return torch.sigmoid(x)
def _layernorm(x, axis=-1, eps=1e-5):
    m = x.mean(dim=axis, keepdim=True)
    v = x.var(dim=axis, keepdim=True, unbiased=False)
    return (x - m) / torch.sqrt(v + eps)
def _scatter_add(tgt, idx, src, axis=0):
    return tgt.clone().index_add_(axis, idx, src)
def _segment_sum(src, seg, n):
    out = torch.zeros((n,) + src.shape[1:], dtype=src.dtype)
    return out.index_add_(0, seg, src)
def _pad(x, pw):
    flat = tuple(v for pair in reversed(pw) for v in pair)
    return torch.nn.functional.pad(x, flat)

kernel_name = 'parallel_sum__grouped_kv_mqa__dense_activation_silu__prompt'

def setup_inputs():

    _w = (lambda a: (lambda t: t.to(torch.bfloat16) if t.is_floating_point() else t)(torch.as_tensor(a)))
    def _A_setup():
        B, S, D, H = 1, 2048, 576, 32
        Dh = D // H
        return {
            "x": _w((lambda *s: torch.randn(*s, dtype=torch.bfloat16) * 0.05)(B, S, D)),
            "wq": _w((lambda *s: torch.randn(*s, dtype=torch.bfloat16) * 0.05)(D, H * Dh)),
            "wk": _w((lambda *s: torch.randn(*s, dtype=torch.bfloat16) * 0.05)(D, Dh)),
            "wv": _w((lambda *s: torch.randn(*s, dtype=torch.bfloat16) * 0.05)(D, Dh)),
            "wo": _w((lambda *s: torch.randn(*s, dtype=torch.bfloat16) * 0.05)(H * Dh, D)),
        }
    _A_in = _A_setup()

    def _B_setup():
        B, S, D, F = 1, 2048, 576, 4608
        return {
            "x": _w((lambda *s: torch.randn(*s, dtype=torch.bfloat16) * 0.05)(B, S, D)),
            "w1": _w((lambda *s: torch.randn(*s, dtype=torch.bfloat16) * 1.6)(D, F) * (D ** -0.5)),
            "w2": _w((lambda *s: torch.randn(*s, dtype=torch.bfloat16) * 0.2)(F, D) * (F ** -0.5)),
        }
    _B_in = _B_setup()

    return {
        "A_x": _A_in["x"],
        "A_wq": _A_in["wq"],
        "A_wk": _A_in["wk"],
        "A_wv": _A_in["wv"],
        "A_wo": _A_in["wo"],
        "B_x": _B_in["x"],
        "B_w1": _B_in["w1"],
        "B_w2": _B_in["w2"],
    }

def reference(A_x, A_wq, A_wk, A_wv, A_wo, B_x, B_w1, B_w2):
    def _A_ref(x, wq, wk, wv, wo):
        B, S, D = x.shape
        H = 32
        Dh = D // H
        q = (lambda x, *d: x.permute(*d))((x @ wq).reshape(B, S, H, Dh), 0, 2, 1, 3)
        k = x @ wk
        v = x @ wv
        scores = torch.einsum("bhqd,bkd->bhqk", q, k) * (Dh ** -0.5)
        p = _softmax(scores, axis=-1)
        o = torch.einsum("bhqk,bkd->bhqd", p, v)
        return (lambda x, *d: x.permute(*d))(o, 0, 2, 1, 3).reshape(B, S, H * Dh) @ wo

    def _B_ref(x, w1, w2):
        h = torch.einsum("bsd,df->bsf", x, w1)
        h = _silu(h)
        out = torch.einsum("bsf,fd->bsd", h, w2)
        return out

    x = A_x
    xn = _layernorm(x, axis=-1)
    return x + _A_ref(xn, A_wq, A_wk, A_wv, A_wo) + _B_ref(xn, B_w1, B_w2)
```

```python
import re

REG = re.compile(r'^(-|abs\()?([vas])(\d+|\[(\d+):(\d+)\])\)?$')

def regs_of(op):
    op = op.strip()
    if op == 'vcc': return {('s', 'vcc')}
    if op == 'exec': return {('s', 'exec')}
    if op == 'm0': return {('s', 'm0')}
    m = REG.match(op)
    if not m: return set()
    k = m.group(2)
    if m.group(4) is not None:
        return {(k, i) for i in range(int(m.group(4)), int(m.group(5)) + 1)}
    return {(k, int(m.group(3)))}

TRANS = ('v_exp_f32', 'v_rcp_f32', 'v_rsq_f32', 'v_log_f32', 'v_sqrt_f32')

class I:
    def __init__(self, text):
        self.text = text
        t = text.split(';')[0].strip()
        self.label = t.endswith(':')
        self.directive = t.startswith('.')
        self.kind = 'none'; self.w = set(); self.r = set(); self.states = 0
        self.A = self.B = self.C = self.D = set()
        if not t or self.label or self.directive: return
        p = t.split(None, 1)
        self.op = op = p[0]
        rest = p[1] if len(p) > 1 else ''
        ops = [o.strip() for o in rest.split(',')]
        mods = ''
        if ops:
            q = ops[-1].split(None, 1)
            if q:
                ops[-1] = q[0]; mods = q[1] if len(q) > 1 else ''
        self.ops = ops; self.mods = mods
        R = [regs_of(o) for o in ops]
        self.states = 1
        if op == 's_nop':
            self.kind = 'nop'; self.states = int(ops[0], 0) + 1
        elif op.startswith('v_mfma'):
            self.kind = 'mfma'; self.D = R[0]; self.A = R[1]; self.B = R[2]; self.C = R[3]
            self.w = R[0]; self.r = R[1] | R[2] | R[3]
            self.passes = 16 if '_2b_' in op else (4 if '16x16' in op else 8)
        elif op.startswith('v_smfmac'):
            self.kind = 'mfma'; self.D = R[0]; self.A = R[1]; self.B = R[2] | R[3]; self.C = R[0]
            self.w = R[0]; self.r = R[0] | R[1] | R[2] | R[3]; self.passes = 8
        elif op.startswith('v_'):
            self.kind = 'valu'
            self.trans = op.split('_e')[0] in TRANS or op in TRANS
            self.dot = op.startswith('v_dot')
            self.dpp = 'dpp' in op or 'row_' in mods or 'quad_perm' in mods
            self.perm = op.startswith('v_permlane')
            self.rl = op.startswith('v_readlane') or op.startswith('v_readfirstlane')
            if self.perm:
                self.w = R[0] | R[1]; self.r = R[0] | R[1]
            elif op.startswith('v_add_co') or op.startswith('v_addc_co') or op.startswith('v_sub_co'):
                self.w = R[0] | R[1]; self.r = set().union(*R[2:])
            else:
                self.w = R[0]; self.r = set().union(*R[1:]) if len(R) > 1 else set()
                if op.startswith('v_fmac') or op.startswith('v_dot2c') or op.startswith('v_writelane') or self.dpp:
                    self.r |= R[0]
                if op.startswith('v_cndmask') and len(ops) == 3: self.r |= {('s', 'vcc')}
        elif op.startswith('ds_read'):
            self.kind = 'ds'; self.w = R[0]; self.r = R[1]; self.load = True
        elif op.startswith('ds_write'):
            self.kind = 'ds'; self.r = set().union(*R); self.load = False
        elif op.startswith('ds_'):
            self.kind = 'ds'; self.w = R[0]; self.r = set().union(*R[1:]); self.load = True
        elif op.startswith('buffer_load') and ' lds' in ' ' + mods:
            self.kind = 'vmem'; self.r = set().union(*R) | {('s', 'm0')}; self.dma = True; self.store = False
        elif op.startswith('buffer_load') or op.startswith('global_load'):
            self.kind = 'vmem'; self.w = R[0]; self.r = set().union(*R[1:]); self.dma = False; self.store = False
        elif op.startswith('buffer_store'):
            self.kind = 'vmem'; self.r = set().union(*R); self.dma = False; self.store = True
            self.data = R[0]; self.wide = 'x4' in op or 'x3' in op
        elif op.startswith('global_store'):
            self.kind = 'vmem'; self.r = set().union(*R); self.dma = False; self.store = True
            self.data = R[1]; self.wide = 'x4' in op or 'x3' in op
        elif op.startswith('buffer_atomic'):
            self.kind = 'vmem'; self.r = set().union(*R); self.dma = False; self.store = True
            self.data = R[0]; self.wide = False
            if 'sc0' in mods: self.w = R[0]
        elif op.startswith('buffer_'):
            self.kind = 'vmem'; self.dma = False; self.store = False
        elif op.startswith('s_'):
            self.kind = 'salu'
            if op.startswith('s_cmp') or op.startswith('s_cbranch') or op.startswith('s_branch') or op in ('s_waitcnt', 's_barrier', 's_sleep', 's_endpgm', 's_setprio') or op.startswith('s_bitcmp'):
                self.r = set().union(*R) if R else set()
            else:
                self.w = R[0]; self.r = set().union(*R[1:]) if len(R) > 1 else set()
                if 'saveexec' in op: self.w = self.w | {('s', 'exec')}
        else:
            raise ValueError("unknown instr " + text)

def need(p, c):
    n = 0
    vec = lambda s: {x for x in s if x[0] in 'va'}
    sc = lambda s: {x for x in s if x[0] == 's'}
    if p.kind == 'valu':
        pw = vec(p.w); ps = sc(p.w)
        if c.kind == 'mfma' and pw & c.r: n = max(n, 3 if p.dot else 2)
        if c.kind == 'valu':
            if p.trans and not c.trans and pw & c.r: n = max(n, 1)
            if (c.perm or c.dpp) and pw & c.r: n = max(n, 2)
            if c.rl and pw & c.r: n = max(n, 1)
            if ps & c.r: n = max(n, 4 if (c.rl or c.op.startswith('v_writelane')) else 2)
            if p.dot:
                if c.op == p.op:
                    srcs = set().union(*[regs_of(o) for o in c.ops[1:3]])
                    if pw & srcs: n = max(n, 3)
                elif pw & (c.r | c.w): n = max(n, 3)
        if c.kind in ('vmem', 'ds'):
            if c.kind == 'vmem' and ps & c.r: n = max(n, 5)
            if p.dot and pw & c.r: n = max(n, 3)
            if p.trans and pw & c.r: n = max(n, 1)
        if c.kind == 'salu' and ps & c.r: n = max(n, 1)
    if p.kind == 'mfma':
        t = {4: (8, 6, 3), 8: (12, 10, 7), 16: (20, 18, 15)}[p.passes]
        if c.kind == 'mfma':
            if p.D & (c.A | c.B): n = max(n, t[0])
            if p.D & c.C:
                if not (p.D == c.C and p.passes == c.passes): n = max(n, t[1])
            elif p.D & c.D: n = max(n, t[1])
        elif c.kind == 'valu':
            if p.D & (c.r | c.w): n = max(n, t[0])
            if p.C & c.w: n = max(n, t[2])
        elif c.kind in ('vmem', 'ds'):
            if p.D & (c.r | c.w): n = max(n, t[0])
            if p.C & c.w: n = max(n, t[2])
    if p.kind == 'salu' and ('s', 'm0') in p.w and c.kind == 'vmem' and c.dma: n = max(n, 1)
    if p.kind == 'vmem' and p.store and p.wide:
        if c.kind == 'valu' and p.data & c.w: n = max(n, 2)
        elif c.kind != 'valu' and p.data & c.w: n = max(n, 1)
    return n

WINDOW = 24
def violations(seq):
    out = []
    for i, c in enumerate(seq):
        if c.states == 0 or c.kind == 'nop': continue
        d = 0; miss = 0; who = None
        j = i - 1
        while j >= 0 and d < WINDOW:
            p = seq[j]
            if p.states:
                n = need(p, c) if p.kind != 'nop' else 0
                if n - d > miss: miss = n - d; who = p
                d += p.states
            j -= 1
        if miss > 0: out.append((i, miss, who))
    return out

class Seg:
    def __init__(self, name):
        self.name = name; self.ins = []; self.padded = 0
    def e(self, text):
        if text is None: return
        for line in text.split('\n'):
            line = line.strip()
            if line: self.ins.append(I(line))
    def autopad(self, before=()):
        res = list(before); nb = len(res)
        for c in self.ins:
            if c.states and c.kind != 'nop':
                d = 0; miss = 0
                j = len(res) - 1
                while j >= 0 and d < WINDOW:
                    p = res[j]
                    if p.states:
                        n = need(p, c) if p.kind != 'nop' else 0
                        miss = max(miss, n - d)
                        d += p.states
                    j -= 1
                while miss > 0:
                    k = min(miss, 16)
                    res.append(I(f"s_nop {k-1}")); self.padded += 1; miss -= k
            res.append(c)
        self.ins = res[nb:]
    def text(self):
        out = []
        for i in self.ins:
            out.append(i.text if (i.label or i.directive) else " " + i.text)
        return "\n".join(out) + "\n"

class Q:
    def __init__(self, name, maxn):
        self.name = name; self.q = []; self.maxn = maxn
    def issue(self, tag): self.q.append(tag)
    def n_for(self, pred):
        last = -1
        for i, t in enumerate(self.q):
            if pred(t): last = i
        if last < 0: return None
        n = len(self.q) - 1 - last
        n = min(n, self.maxn)
        self.q = self.q[len(self.q) - n:] if n else []
        return n
    def wait(self, pred):
        n = self.n_for(pred)
        return None if n is None else f"s_waitcnt {self.name}({n})"
    def clear(self): self.q = []
```

```python
import sys, math, struct
from asmlib import Seg, Q, I, violations

NAME = "parallel_sum__grouped_kv_mqa__dense_activation_silu__prompt"
STAMP = "--stamp" in sys.argv
FORCE_FB = "--force-fallback" in sys.argv
MAPPING = 0
for a in sys.argv:
    if a.startswith("--map="): MAPPING = int(a[6:])

def f2u(x): return struct.unpack("<I", struct.pack("<f", x))[0]
LOG2E = 1.4426950408889634
LN2 = 0.6931471805599453

KV_IT = 9472
KV_BYTES = 16 * KV_IT
KN_OFF = KV_BYTES
O_OFF = 0x30000
P_OFF = 0x280000
ST_OFF = 0x2000000
WS_BYTES = 0x4000000

sX, sWa, sWb, sWo, sKV, sOut, sDbg, sWs = 28, 32, 36, 40, 44, 48, 52, 56
sR, sS, sROLE, sW, sM0, sOFF, sALPHA = 60, 61, 62, 63, 64, 65, 66
sT0, sT1, sT2, sT3 = 67, 68, 69, 72
sEX = 70
sPB = 73
sCNT = 74
sFB = 75
sSEL0, sSEL1, sONES = 76, 77, 78
sSPIN = 79
sSTAMP = 80
def srd(b): return f"s[{b}:{b+3}]"

vLANE = 255
vXA = 254
vT = 224

segs = []
def seg(name):
    s = Seg(name); segs.append(s); return s

nstamp = [0]
def stamp(S, k):
    if STAMP:
        S.e(f"s_memtime s[98:99]\ns_waitcnt lgkmcnt(0)\ns_mov_b32 s{sSTAMP+k}, s98")

def stamp_out(S):
    if STAMP:
        S.e(f"""s_memrealtime s[98:99]
        s_waitcnt lgkmcnt(0)
        s_mov_b32 s{sSTAMP+15}, s98
        s_lshl_b32 s{sT0}, s2, 2
        s_add_u32 s{sT0}, s{sT0}, s{sW}
        s_lshl_b32 s{sT0}, s{sT0}, 6
        s_add_u32 s{sT0}, s{sT0}, {ST_OFF}
        v_mov_b32 v0, 0""")
        for k in range(16):
            S.e(f"v_mov_b32 v1, s{sSTAMP+k}\nbuffer_store_dword v1, v0, {srd(sWs)}, s{sT0} offen offset:{4*k}\ns_nop 1")
        S.e("s_waitcnt vmcnt(0)")

def mk_srd(S, b, lo, nbytes, add=None):
    if add is None:
        S.e(f"s_mov_b32 s{b}, s{lo}\ns_mov_b32 s{b+1}, s{lo+1}")
    else:
        S.e(f"s_add_u32 s{b}, s{lo}, s{add}\ns_addc_u32 s{b+1}, s{lo+1}, 0")
    S.e(f"s_mov_b32 s{b+2}, {nbytes}\ns_mov_b32 s{b+3}, 0x20000")

S = seg("entry")
S.e(f"""
s_cmp_ge_u32 s2, 256
s_cbranch_scc1 L_exit
s_load_dwordx16 s[4:19], s[0:1], 0
s_load_dwordx4 s[20:23], s[0:1], 64
s_load_dwordx2 s[24:25], s[0:1], 80
""")
if STAMP:
    S.e(f"s_memrealtime s[96:97]\ns_memtime s[98:99]")
S.e(f"""
v_lshrrev_b32 v1, 6, v0
v_and_b32 v{vLANE}, 63, v0
v_readfirstlane_b32 s{sW}, v1
s_and_b32 s{sT0}, s2, 7
s_lshr_b32 s{sT1}, s2, 3
s_and_b32 s{sROLE}, s{sT1}, 1
s_lshr_b32 s{sT1}, s{sT1}, 1
""")
if MAPPING == 0:
    S.e(f"s_mov_b32 s{sS}, s{sT0}\ns_mov_b32 s{sR}, s{sT1}")
elif MAPPING == 1:
    S.e(f"""s_and_b32 s{sR}, s{sT0}, 1
    s_lshl_b32 s{sR}, s{sR}, 3
    s_and_b32 s{sT2}, s{sT1}, 7
    s_add_u32 s{sR}, s{sR}, s{sT2}
    s_and_b32 s{sS}, s{sT0}, 6
    s_lshr_b32 s{sT2}, s{sT1}, 3
    s_add_u32 s{sS}, s{sS}, s{sT2}""")
elif MAPPING == 2:
    S.e(f"""s_and_b32 s{sR}, s{sT0}, 3
    s_lshl_b32 s{sR}, s{sR}, 2
    s_and_b32 s{sT2}, s{sT1}, 3
    s_add_u32 s{sR}, s{sR}, s{sT2}
    s_and_b32 s{sS}, s{sT0}, 4
    s_lshr_b32 s{sT2}, s{sT1}, 2
    s_add_u32 s{sS}, s{sS}, s{sT2}""")
elif MAPPING == 3:
    S.e(f"""s_lshl_b32 s{sR}, s{sT0}, 1
    s_and_b32 s{sT2}, s{sT1}, 1
    s_add_u32 s{sR}, s{sR}, s{sT2}
    s_lshr_b32 s{sS}, s{sT1}, 1""")
S.e(f"""
s_mov_b32 s{sCNT}, s{sT1}
s_lshl_b32 s{sM0}, s{sW}, 10
s_lshl_b32 s{sT0}, s{sR}, 7
s_lshl_b32 s{sT1}, s{sW}, 5
s_add_u32 s{sT0}, s{sT0}, s{sT1}
v_and_b32 v1, 31, v{vLANE}
v_add_u32 v1, s{sT0}, v1
v_mul_u32_u24 v1, 1152, v1
v_lshrrev_b32 v2, 5, v{vLANE}
v_lshlrev_b32 v2, 4, v2
v_add_u32 v{vXA}, v1, v2
s_mov_b32 s{sSEL0}, 0x3f80
s_mov_b32 s{sSEL1}, 0x3f800000
s_mov_b32 s{sONES}, 0x3f803f80
s_mov_b32 s{sFB}, 0
s_waitcnt lgkmcnt(0)
""")
if STAMP:
    S.e(f"s_mov_b32 s{sSTAMP+14}, s96\ns_mov_b32 s{sSTAMP}, s98")
    for k in range(1, 14): S.e(f"s_mov_b32 s{sSTAMP+k}, 0")
mk_srd(S, sX, 4, 2048*1152)
mk_srd(S, sOut, 20, 2048*1152)
mk_srd(S, sDbg, 22, 256)
mk_srd(S, sWs, 24, WS_BYTES)
mk_srd(S, sWo, 12, 576*1152)
S.e(f"s_cmp_eq_u32 s{sROLE}, 1\ns_cbranch_scc1 L_att")

def x_loads(S, vm):
    for k in range(36):
        S.e(f"buffer_load_dwordx4 v[{4*k}:{4*k+3}], v{vXA}, {srd(sX)}, 0 offen offset:{32*k}")
        vm.issue(("x", k))

def layernorm(S, vm, alpha):
    s0, s1, q0, q1 = vT, vT+1, vT+2, vT+3
    for k in range(36):
        if k % 3 == 0:
            S.e(vm.wait(lambda t: t[0] == "x" and t[1] <= k + 2))
        for d in range(4):
            r = 4*k + d
            s, q = (s0, q0) if d % 2 == 0 else (s1, q1)
            first = (k == 0 and d < 2)
            S.e(f"v_dot2_f32_bf16 v{s}, v{r}, s{sONES}, {'0' if first else 'v%d' % s}")
            S.e(f"v_dot2_f32_bf16 v{q}, v{r}, v{r}, {'0' if first else 'v%d' % q}")
    a, b = vT+4, vT+6
    S.e(f"""
    v_add_f32 v{s0}, v{s0}, v{s1}
    v_add_f32 v{q0}, v{q0}, v{q1}
    v_mov_b32 v{s1}, v{s0}
    v_mov_b32 v{q1}, v{q0}
    v_permlane32_swap_b32 v{s0}, v{s1}
    v_permlane32_swap_b32 v{q0}, v{q1}
    v_add_f32 v{s0}, v{s0}, v{s1}
    v_add_f32 v{q0}, v{q0}, v{q1}
    v_mul_f32 v{s0}, {f2u(1.0/576)}, v{s0}
    v_mul_f32 v{q0}, {f2u(1.0/576)}, v{q0}
    v_fma_f32 v{q0}, -v{s0}, v{s0}, v{q0}
    v_max_f32 v{q0}, 0, v{q0}
    v_add_f32 v{q0}, {f2u(1e-5)}, v{q0}
    v_rsq_f32 v{q0}, v{q0}
    s_nop 0
    v_mul_f32 v{a}, {f2u(alpha)}, v{q0}
    v_mul_f32 v{b}, -v{s0}, v{a}
    v_mov_b32 v{a+1}, v{a}
    v_mov_b32 v{b+1}, v{b}
    """.replace(f"v_mul_f32 v{b}, -v{s0}, v{a}", f"v_mul_f32_e64 v{b}, -v{s0}, v{a}"))
    S.e(f"s_mov_b32 s{sT0}, 0xffff0000")
    tp = [vT+8, vT+10]
    for r in range(0, 144, 2):
        t0, t1 = tp
        S.e(f"""v_lshlrev_b32 v{t0}, 16, v{r}
        v_and_b32 v{t0+1}, s{sT0}, v{r}
        v_lshlrev_b32 v{t1}, 16, v{r+1}
        v_and_b32 v{t1+1}, s{sT0}, v{r+1}
        v_pk_fma_f32 v[{t0}:{t0+1}], v[{t0}:{t0+1}], v[{a}:{a+1}], v[{b}:{b+1}]
        v_pk_fma_f32 v[{t1}:{t1+1}], v[{t1}:{t1+1}], v[{a}:{a+1}], v[{b}:{b+1}]
        v_cvt_pk_bf16_f32 v{r}, v{t0}, v{t0+1}
        v_cvt_pk_bf16_f32 v{r+1}, v{t1}, v{t1+1}""")

def tr_lane(S, dst, mode, t1, t2):
    S.e(f"""
    v_and_b32 v{t1}, 15, v{vLANE}
    v_lshrrev_b32 v{t2}, 2, v{t1}
    v_lshlrev_b32 v{dst}, 6, v{t2}
    v_and_b32 v{t1}, 3, v{t1}
    v_lshl_add_u32 v{dst}, v{t1}, 3, v{dst}
    v_bfe_u32 v{t1}, v{vLANE}, 4, 1
    v_lshl_add_u32 v{dst}, v{t1}, 5, v{dst}
    v_lshrrev_b32 v{t1}, 5, v{vLANE}
    v_lshl_add_u32 v{dst}, v{t1}, {10 if mode == 'A' else 8}, v{dst}
    """)

def dma_lane(S, dst, stride, rowexpr_reg, t1):
    S.e(f"""
    v_mul_u32_u24 v{dst}, {stride}, v{rowexpr_reg}
    v_lshrrev_b32 v{t1}, 5, v{vLANE}
    v_lshl_add_u32 v{dst}, v{t1}, 6, v{dst}
    v_and_b32 v{t1}, 3, v{vLANE}
    v_lshl_add_u32 v{dst}, v{t1}, 4, v{dst}
    """)

def poll(S, name, kind, vaddr, v0):
    S.e(f"s_cmp_lg_u32 s{sW}, 0\ns_cbranch_scc1 L_{name}_done\ns_mov_b32 s{sSPIN}, 0\nL_{name}_spin:")
    if kind == 'kv':
        S.e(f"""buffer_load_dword v{v0}, v{vaddr}, {srd(sDbg)}, 0 offen sc1
        s_waitcnt vmcnt(0)
        v_and_b32 v{v0+1}, 0xff, v{v0}
        v_and_b32 v{v0}, 0xff00, v{v0}
        v_cmp_ne_u32 vcc, 0, v{v0+1}
        v_cmp_ne_u32 s[{sEX}:{sEX+1}], 0, v{v0}
        s_nop 0
        s_and_b64 vcc, vcc, s[{sEX}:{sEX+1}]
        s_cmp_eq_u64 vcc, -1
        s_cbranch_scc1 L_{name}_done""")
    else:
        S.e(f"""buffer_load_dwordx2 v[{v0}:{v0+1}], v{vaddr}, {srd(sDbg)}, 0 offen sc1
        s_waitcnt vmcnt(0)
        v_readfirstlane_b32 s{sT0}, v{v0}
        v_readfirstlane_b32 s{sT1}, v{v0+1}
        s_nop 0
        s_xor_b32 s{sT0}, s{sT0}, {kind[1]}
        s_xor_b32 s{sT1}, s{sT1}, {kind[1]}
        s_or_b32 s{sT0}, s{sT0}, s{sT1}
        s_cbranch_scc0 L_{name}_done""")
    S.e(f"""s_sleep 1
    s_add_u32 s{sSPIN}, s{sSPIN}, 1
    s_cmp_lt_u32 s{sSPIN}, 0x80000
    s_cbranch_scc1 L_{name}_spin
    L_{name}_done:
    s_barrier""")

def set_flag(S, name, value, base):
    S.e(f"""s_cmp_lg_u32 s{sW}, 0
    s_cbranch_scc1 L_{name}_nf
    s_lshl_b32 s{sT0}, s{sR}, 3
    s_add_u32 s{sT0}, s{sT0}, s{sS}
    s_add_u32 s{sT0}, s{sT0}, {base}
    v_mov_b32 v{vT}, {value}
    v_mov_b32 v{vT+1}, s{sT0}
    s_mov_b64 exec, 1
    buffer_store_byte v{vT}, v{vT+1}, {srd(sDbg)}, 0 offen sc1
    s_mov_b64 exec, -1
    L_{name}_nf:""")

def wave_max(S, v):
    for sh in (1, 2, 4, 8):
        S.e(f"v_max_f32_dpp v{v}, v{v}, v{v} row_shr:{sh} row_mask:0xf bank_mask:0xf")
    S.e(f"v_max_f32_dpp v{v}, v{v}, v{v} row_bcast:15 row_mask:0xa bank_mask:0xf")
    S.e(f"v_max_f32_dpp v{v}, v{v}, v{v} row_bcast:31 row_mask:0xc bank_mask:0xf")

ACC = 144
HV = 208
vRA, vRB = 236, 239
vD1, vD2, vD3, vD4 = 242, 243, 244, 245
vPS = 246
vKA = 247
vU = 248
FR = 144
SLOT = 24576
KVIMG = 5 * SLOT

def hreg(k):
    if k < 28: return f"a[{4*k}:{4*k+3}]"
    if k < 32: return f"v[{HV+4*(k-28)}:{HV+4*(k-28)+3}]"
    return f"v[{4*(k-32)}:{4*(k-32)+3}]"
def hdst(i):
    k, d = i // 4, i % 4
    if k < 28: return ('a', i)
    if k < 32: return ('v', HV + i - 112)
    return ('v', i - 128)

S = seg("ffn_pro")
vm = Q("vmcnt", 63); lg = Q("lgkmcnt", 15)
S.e(f"""
s_getpc_b64 s[{sEX}:{sEX+1}]
L_pc:
s_lshl_b32 s{sT0}, s{sCNT}, 12
v_lshl_add_u32 v1, v0, 4, s{sT0}
v_min_u32 v1, L_codeend-L_pc-16, v1
v_mov_b32 v3, s{sEX+1}
v_add_co_u32 v2, vcc, s{sEX}, v1
v_addc_co_u32 v3, vcc, 0, v3, vcc
global_load_dwordx4 v[{vU}:{vU+3}], v[2:3], off
""")
S.e(f"s_mul_i32 s{sT0}, s{sS}, 1152")
mk_srd(S, sWa, 16, 576*9216, add=sT0)
S.e(f"s_sub_u32 s{sWa+2}, s{sWa+2}, s{sT0}")
S.e(f"s_mul_i32 s{sT0}, s{sS}, {576*1152}")
mk_srd(S, sWb, 18, 576*1152, add=sT0)
S.e(f"""s_cmp_eq_u32 s{sS}, 0
s_cselect_b32 s{sKV}, s8, s10
s_cselect_b32 s{sKV+1}, s9, s11
s_mov_b32 s{sKV+2}, {576*36}
s_mov_b32 s{sKV+3}, 0x20000
s_cmp_ge_u32 s{sS}, 2
s_cbranch_scc1 L_ffn_nokv1
v_mul_u32_u24 v1, 36, v0
""")
KT = ACC
for j in range(3):
    b = KT + 12*j
    if j: S.e(f"v_add_u32 v1, {256*36}, v1")
    S.e(f"""buffer_load_dwordx4 v[{b}:{b+3}], v1, {srd(sKV)}, 0 offen
    buffer_load_dwordx4 v[{b+4}:{b+7}], v1, {srd(sKV)}, 0 offen offset:16
    buffer_load_dword v{b+8}, v1, {srd(sKV)}, 0 offen offset:32""")
S.e(f"v_mul_u32_u24 v{vU+4}, 40, v0\nv_add_u32 v{vU+4}, {KVIMG}, v{vU+4}")
S.e("L_ffn_nokv1:")
x_loads(S, vm)
S.e(f"v_bfe_u32 v{vT}, v{vLANE}, 2, 3\nv_lshl_add_u32 v{vT+1}, s{sW}, 3, v{vT}")
dma_lane(S, vD1, 9216, vT+1, vT+2)
dma_lane(S, vD2, 1152, vT+1, vT+2)

def dma_src(T, n):
    P, sg = T // 3, T % 3
    if P < 9:  return sWa, vD1, (192*sg + 32*n) * 9216 + P*128, None
    if P < 18: return sWb, vD2, (192*sg + 32*n) * 1152 + (P-9)*128, None
    extra = sT3 if P == 18 else None
    col = 0 if P == 18 else 8*128
    if sg == 2 and n >= 4: return sWo, vD4, 288*(n-4)*1152 + col, extra
    return sWo, vD3, 18*(12*sg + 2*n)*1152 + col, extra
def dma_soff(T, n):
    _, _, c, extra = dma_src(T, n)
    return f"s_mov_b32 s{sOFF}, {c}" if extra is None else f"s_add_u32 s{sOFF}, s{extra}, {c}"
def dma_m0(T, n): return f"s_add_u32 m0, s{sM0}, {(T%6)*SLOT + n*4096}"
def dma_go(T, n):
    b, v, _, _ = dma_src(T, n)
    return f"buffer_load_dwordx4 v{v}, {srd(b)}, s{sOFF} offen lds"
for T in range(4):
    for n in range(6):
        S.e(dma_m0(T, n)); S.e(dma_soff(T, n)); S.e(dma_go(T, n)); vm.issue(("dma", T))
tr_lane(S, vRA, 'A', vT+2, vT+3)
tr_lane(S, vRB, 'B', vT+2, vT+3)
S.e(f"""v_add_u32 v{vRA+1}, {2*SLOT}, v{vRA}
v_add_u32 v{vRA+2}, {4*SLOT}, v{vRA}
v_add_u32 v{vRB+1}, {2*SLOT}, v{vRB}
v_add_u32 v{vRB+2}, {4*SLOT}, v{vRB}
s_lshr_b32 s{sT0}, s{sW}, 1
s_and_b32 s{sT1}, s{sW}, 1
s_mul_i32 s{sT2}, s{sT0}, 18
s_lshl_b32 s{sT3}, s{sT1}, 3
s_add_u32 s{sT2}, s{sT2}, s{sT3}
v_add_u32 v{vT+1}, s{sT2}, v{vT}
""")
dma_lane(S, vD3, 1152, vT+1, vT+2)
S.e(f"""s_mul_i32 s{sT0}, s{sT0}, 144
s_mul_i32 s{sT1}, s{sT1}, 36
s_add_u32 s{sT0}, s{sT0}, s{sT1}
s_add_u32 s{sT0}, s{sT0}, 16
v_lshrrev_b32 v{vT+1}, 2, v{vT}
v_mul_u32_u24 v{vT+1}, 72, v{vT+1}
v_bfe_u32 v{vT+2}, v{vT}, 1, 1
v_mul_u32_u24 v{vT+2}, 18, v{vT+2}
v_add_u32 v{vT+1}, v{vT+1}, v{vT+2}
v_and_b32 v{vT+2}, 1, v{vT}
v_add3_u32 v{vT+1}, v{vT+1}, v{vT+2}, s{sT0}
""")
dma_lane(S, vD4, 1152, vT+1, vT+2)
S.e(f"""s_lshl_b32 s{sT0}, s{sW}, 12
v_lshl_add_u32 v{vPS}, v{vLANE}, 4, s{sT0}
s_lshl_b32 s{sT3}, s{sS}, 7
s_lshl_b32 s{sT0}, s{sR}, 3
s_add_u32 s{sT0}, s{sT0}, s{sS}
s_mul_i32 s{sPB}, s{sT0}, 147456
s_add_u32 s{sPB}, s{sPB}, {P_OFF}
s_cmp_ge_u32 s{sS}, 2
s_cbranch_scc1 L_ffn_nokv2
s_waitcnt vmcnt(60)
""")
for j in range(3):
    b = KT + 12*j
    if j == 2: S.e(f"s_cmp_lg_u32 s{sW}, 0\ns_cbranch_scc1 L_ffn_kvw")
    o = j*256*40
    S.e(f"""ds_write_b64 v{vU+4}, v[{b}:{b+1}] offset:{o}
    ds_write_b64 v{vU+4}, v[{b+2}:{b+3}] offset:{o+8}
    ds_write_b64 v{vU+4}, v[{b+4}:{b+5}] offset:{o+16}
    ds_write_b64 v{vU+4}, v[{b+6}:{b+7}] offset:{o+24}
    ds_write_b32 v{vU+4}, v{b+8} offset:{o+32}""")
S.e(f"""L_ffn_kvw:
v_and_b32 v{vT}, 15, v{vLANE}
v_lshrrev_b32 v{vT+1}, 2, v{vT}
v_lshrrev_b32 v{vT+2}, 5, v{vLANE}
v_lshl_add_u32 v{vT+1}, v{vT+2}, 3, v{vT+1}
v_mul_u32_u24 v{vKA}, 40, v{vT+1}
v_and_b32 v{vT}, 3, v{vT}
v_bfe_u32 v{vT+1}, v{vLANE}, 4, 1
v_lshl_add_u32 v{vT}, v{vT+1}, 2, v{vT}
v_cmp_gt_u32 vcc, 5, v{vT}
v_cndmask_b32 v{vT}, 0, v{vT}, vcc
v_lshl_add_u32 v{vKA}, v{vT}, 3, v{vKA}
v_add_u32 v{vKA}, {KVIMG}, v{vKA}
L_ffn_nokv2:
""")
stamp(S, 1)
layernorm(S, vm, -LOG2E)
stamp(S, 2)
S.e(f"s_cmp_ge_u32 s{sS}, 2\ns_cbranch_scc1 L_ffn_main")

S = seg("ffn_kv")
S.e(f"s_waitcnt lgkmcnt(0)\ns_barrier\ns_cmp_eq_u32 s{sS}, 1\ns_cbranch_scc1 L_ffn_v")
def kv_chain(S, swapped):
    lq = Q("lgkmcnt", 15)
    def rd(k):
        f = FR + 4*(k % 8)
        S.e(f"ds_read_b64_tr_b16 a[{f}:{f+1}], v{vKA} offset:{640*k}\nds_read_b64_tr_b16 a[{f+2}:{f+3}], v{vKA} offset:{640*k+160}")
        lq.issue(k); lq.issue(k)
    for k in range(4): rd(k)
    for k in range(36):
        S.e(lq.wait(lambda t: t <= k))
        f = FR + 4*(k % 8)
        w, x = f"a[{f}:{f+3}]", f"v[{4*k}:{4*k+3}]"
        a, b = (x, w) if swapped else (w, x)
        S.e(f"v_mfma_f32_32x32x16_bf16 v[{ACC}:{ACC+15}], {a}, {b}, {'0' if k == 0 else 'v[%d:%d]' % (ACC, ACC+15)}")
        if k + 4 < 36: rd(k + 4)
kv_chain(S, False)
S.e(f"""
s_mul_i32 s{sT0}, s{sR}, {KV_IT}
v_and_b32 v{vT}, 31, v{vLANE}
v_and_b32 v{vT+1}, 0x13, v{vT}
v_bfe_u32 v{vT+2}, v{vT}, 2, 1
v_lshl_add_u32 v{vT+1}, v{vT+2}, 3, v{vT+1}
v_bfe_u32 v{vT+2}, v{vT}, 3, 1
v_lshl_add_u32 v{vT+1}, v{vT+2}, 2, v{vT+1}
v_and_b32 v{vT+2}, 32, v{vLANE}
v_add_u32 v{vT+2}, v{vT+2}, v{vT+1}
v_lshl_add_u32 v{vT+2}, v{vT+2}, 4, s{sM0}
s_lshr_b32 s{sT1}, s{sW}, 1
s_lshl_b32 s{sT1}, s{sT1}, 8
s_and_b32 s{sT2}, s{sW}, 1
s_lshl_b32 s{sT2}, s{sT2}, 2
s_add_u32 s{sT1}, s{sT1}, s{sT2}
v_lshl_add_u32 v{vT+1}, v{vT+1}, 3, s{sT1}
v_cmp_gt_u32 vcc, 32, v{vLANE}
""")
for i in range(10): S.e(f"v_mul_f32 v{ACC+i}, {f2u(-LN2)}, v{ACC+i}")
n = vT+3
S.e(f"v_mul_f32 v{n}, v{ACC+8}, v{ACC+8}\nv_fmac_f32 v{n}, v{ACC+9}, v{ACC+9}\nv_cndmask_b32 v{n}, 0, v{n}, vcc")
for i in range(8): S.e(f"v_fmac_f32 v{n}, v{ACC+i}, v{ACC+i}")
for i in range(5): S.e(f"v_cvt_pk_bf16_f32 v{ACC+16+i}, v{ACC+2*i}, v{ACC+2*i+1}")
S.e(f"""buffer_store_dwordx4 v[{ACC+16}:{ACC+19}], v{vT+2}, {srd(sWs)}, s{sT0} offen offset:512 sc1
s_mov_b32 exec_hi, 0
buffer_store_dword v{ACC+20}, v{vT+1}, {srd(sWs)}, s{sT0} offen sc1
s_mov_b64 exec, -1
v_mov_b32 v{n+1}, v{n}
v_permlane32_swap_b32 v{n}, v{n+1}
v_add_f32 v{n}, v{n}, v{n+1}
""")
wave_max(S, n)
S.e(f"""v_readlane_b32 s{sT1}, v{n}, 63
s_lshl_b32 s{sT0}, s{sR}, 2
s_add_u32 s{sT0}, s{sT0}, s{sW}
s_lshl_b32 s{sT0}, s{sT0}, 2
s_add_u32 s{sT0}, s{sT0}, {KN_OFF}
v_mov_b32 v{n}, s{sT1}
v_mov_b32 v{n+1}, 0
s_mov_b64 exec, 1
buffer_store_dword v{n}, v{n+1}, {srd(sWs)}, s{sT0} offen sc1
s_mov_b64 exec, -1
s_branch L_ffn_kvdone
""")
S = seg("ffn_v")
S.e("L_ffn_v:")
kv_chain(S, True)
S.e(f"""
s_mul_i32 s{sT0}, s{sR}, {KV_IT}
s_mul_i32 s{sT1}, s{sW}, 1216
s_add_u32 s{sT0}, s{sT0}, s{sT1}
s_add_u32 s{sT0}, s{sT0}, {512+4096}
v_and_b32 v{vT}, 31, v{vLANE}
v_lshrrev_b32 v{vT+1}, 5, v{vLANE}
v_mul_u32_u24 v{vT+1}, 304, v{vT+1}
v_lshl_add_u32 v{vT+1}, v{vT}, 4, v{vT+1}
v_cmp_eq_u32 vcc, 18, v{vT}
v_mov_b32 v{vT+2}, s{sONES}
""")
for i in range(16): S.e(f"v_mul_f32 v{ACC+i}, {f2u(-LN2)}, v{ACC+i}")
for i in range(8): S.e(f"v_cvt_pk_bf16_f32 v{ACC+16+i}, v{ACC+2*i}, v{ACC+2*i+1}")
for i in range(8): S.e(f"v_cndmask_b32 v{ACC+16+i}, v{ACC+16+i}, v{vT+2}, vcc")
S.e(f"""s_mov_b32 exec_lo, 0x7ffff
s_mov_b32 exec_hi, 0x7ffff
buffer_store_dwordx4 v[{ACC+16}:{ACC+19}], v{vT+1}, {srd(sWs)}, s{sT0} offen sc1
buffer_store_dwordx4 v[{ACC+20}:{ACC+23}], v{vT+1}, {srd(sWs)}, s{sT0} offen offset:608 sc1
s_mov_b64 exec, -1
""")
S = seg("ffn_kvdone")
S.e("L_ffn_kvdone:\ns_waitcnt vmcnt(0)\ns_barrier")
set_flag(S, "kvf", 1, 0)

S = seg("ffn_main")
S.e("L_ffn_main:")
stamp(S, 3)
NM = 18*72
DR = 6
def rd_ins(j):
    P, m = j // 72, j % 72
    T = j // 24; ks = (j % 24) // 2; t = j % 2
    slot = T % 6
    base = (vRA if P < 9 else vRB) + slot // 2
    off = (slot % 2) * SLOT + ks*2048 + t*512
    f = FR + 4*(j % 8)
    d2 = 256 if P < 9 else 1024
    return [f"ds_read_b64_tr_b16 a[{f}:{f+1}], v{base} offset:{off}", f"ds_read_b64_tr_b16 a[{f+2}:{f+3}], v{base} offset:{off+d2}"]
S.e(vm.wait(lambda t: t == ("dma", 0))); S.e("s_barrier")
for j in range(DR):
    for x in rd_ins(j): S.e(x); lg.issue(j)
S.e(lg.wait(lambda t: t <= 1))
S.e(dma_m0(4, 0)); S.e(dma_soff(4, 0)); S.e(dma_go(4, 0)); vm.issue(("dma", 4))
S.e(dma_soff(4, 1))

def silu_ops(P):
    acc = ACC + 32*(P % 2); ops = []
    for g in range(16):
        e = 2*g; t0 = vT + 2*(g % 3); t1 = t0 + 1
        kind, reg = hdst(16*P + g)
        d = reg if kind == 'v' else vT + 6 + (g % 3)
        ops += [(8, f"v_exp_f32 v{t0}, v{acc+e}"), (8, f"v_exp_f32 v{t1}, v{acc+e+1}"),
                (4, f"v_add_f32 v{t0}, 1.0, v{t0}"), (4, f"v_add_f32 v{t1}, 1.0, v{t1}"),
                (8, f"v_rcp_f32 v{t0}, v{t0}"), (8, f"v_rcp_f32 v{t1}, v{t1}"),
                (4, f"v_mul_f32 v{t0}, v{acc+e}, v{t0}"), (4, f"v_mul_f32 v{t1}, v{acc+e+1}, v{t1}"),
                (4, f"v_cvt_pk_bf16_f32 v{d}, v{t0}, v{t1}", 16*P + g if kind == 'v' else None)]
        if kind == 'a': ops.append((4, f"v_accvgpr_write_b32 a{reg}, v{d}", 16*P + g))
    return ops
def store_ops(P):
    acc = ACC + 32*(P % 2); ops = []
    for q in range(4):
        t = vT + 4*(q % 3)
        for d in range(4):
            ops.append((4, f"v_cvt_pk_bf16_f32 v{t+d}, v{acc+8*q+2*d}, v{acc+8*q+2*d+1}"))
        ops.append((16, f"buffer_store_dwordx4 v[{t}:{t+3}], v{vPS}, {srd(sWs)}, s{sPB} offen offset:{1024*q} sc1", "st"))
    ops.append((0, f"s_add_u32 s{sPB}, s{sPB}, 16384"))
    return ops
hdone = set()
over = 0
def put(S, o):
    S.e(o[1])
    if len(o) > 2:
        if o[2] == "st": vm.issue(("st",))
        elif o[2] is not None: hdone.add(o[2])
for P in range(18):
    ops = [] if P == 0 else (silu_ops(P-1) if P <= 9 else store_ops(P-1))
    oi = 0
    acc = ACC + 32*(P % 2)
    for m in range(72):
        i = 72*P + m; ks, t = m // 2, m % 2
        a = acc + 16*t; f = FR + 4*(i % 8)
        if P < 9: b = f"v[{4*ks}:{4*ks+3}]"
        else:
            b = hreg(ks)
            assert all(4*ks + d in hdone for d in range(4)), (P, m)
        S.e(f"v_mfma_f32_32x32x16_bf16 v[{a}:{a+15}], a[{f}:{f+3}], {b}, {'0' if ks == 0 else 'v[%d:%d]' % (a, a+15)}")
        j = i + DR
        budget = 24
        T = j // 24; w = j % 24
        dma = (w % 4 == 2 and j < NM)
        if i % 2 == 1:
            x = lg.wait(lambda tg: tg <= i + 2)
            if x: S.e(x)
        elif dma: S.e(dma_m0(T+4, w // 4))
        elif j < NM: S.e(dma_soff(T+4, w // 4))
        if j < NM:
            if w == 0:
                S.e(vm.wait(lambda tg: tg == ("dma", T))); S.e("s_barrier"); budget -= 8
            for x in rd_ins(j): S.e(x); lg.issue(j)
            budget -= 8
        if dma:
            S.e(dma_go(T+4, w // 4)); vm.issue(("dma", T+4)); budget -= 8
        if m >= 1:
            while oi < len(ops) and (ops[oi][0] <= budget or (m == 71)):
                put(S, ops[oi]); budget -= ops[oi][0]; oi += 1
        if budget < 0: over -= budget
print("ffn stream budget overflow cycles:", over, file=sys.stderr)
S = seg("ffn_tail")
for o in store_ops(17): put(S, o)
S.e("s_waitcnt vmcnt(0)\ns_barrier"); vm.clear()
set_flag(S, "pf", 2, 0)
stamp(S, 4)
vXR = vU
XR = 128
S.e(f"""v_lshrrev_b32 v{vT}, 5, v{vLANE}
v_lshlrev_b32 v{vT}, 3, v{vT}
v_sub_u32 v{vXR}, v{vXA}, v{vT}
s_lshl_b32 s{sT0}, s{sR}, 3
v_mov_b32 v{vU+1}, s{sT0}
s_add_u32 s{sT0}, s{sT0}, 128
v_mov_b32 v{vU+2}, s{sT0}
s_cmp_ge_u32 s{sS}, 2
s_cbranch_scc1 L_ffn_nox
""")
for T in (58, 59):
    for n in range(6):
        S.e(dma_m0(T, n)); S.e(dma_soff(T, n)); S.e(dma_go(T, n))
S.e(f"s_lshl_b32 s{sT0}, s{sS}, 6\ns_add_u32 s{sT0}, s{sT0}, 1024")
for g in range(4):
    S.e(f"buffer_load_dwordx2 v[{HV+2*g}:{HV+2*g+1}], v{vXR}, {srd(sX)}, s{sT0} offen offset:{16*g}")
S.e("L_ffn_nox:")
for g in range(8):
    S.e(f"buffer_load_dwordx2 v[{XR+2*g}:{XR+2*g+1}], v{vXR}, {srd(sX)}, s{sT3} offen offset:{16*g}")
poll(S, "pp", ('eq', 0x02020202), vU+1, vT)
stamp(S, 5)
def reduce_partials(S, nq, q0, R, xr, pair_sgpr_setup):
    S.e(pair_sgpr_setup)
    q = Q("vmcnt", 63)
    for sp in range(8):
        for k in range(nq):
            r = 4*(sp*nq + k)
            S.e(f"buffer_load_dwordx4 v[{r}:{r+3}], v{vPS}, {srd(sWs)}, s{sT0} offen offset:{1024*k} sc1"); q.issue(sp)
        if sp < 7: S.e(f"s_add_u32 s{sT0}, s{sT0}, 147456")
    for sp in range(8):
        S.e(q.wait(lambda t: t <= sp))
        for k in range(nq):
            for d in range(4):
                r = 4*(sp*nq + k) + d; e = R + 8*k + 2*d
                S.e(f"v_dot2_f32_bf16 v{e}, v{r}, s{sSEL0}, {'0' if sp == 0 else 'v%d' % e}")
                S.e(f"v_dot2_f32_bf16 v{e+1}, v{r}, s{sSEL1}, {'0' if sp == 0 else 'v%d' % (e+1)}")
    for e in range(8*nq): S.e(f"v_mul_f32 v{R+e}, {f2u(-LN2)}, v{R+e}")
    for d in range(4*nq):
        S.e(f"v_dot2_f32_bf16 v{R+2*d}, v{xr+d}, s{sSEL0}, v{R+2*d}")
        S.e(f"v_dot2_f32_bf16 v{R+2*d+1}, v{xr+d}, s{sSEL1}, v{R+2*d+1}")
reduce_partials(S, 4, 0, ACC, XR, f"""s_mul_i32 s{sT0}, s{sR}, {8*147456}
s_lshl_b32 s{sT1}, s{sS}, 14
s_add_u32 s{sT0}, s{sT0}, s{sT1}
s_add_u32 s{sT0}, s{sT0}, {P_OFF}""")
S.e(f"s_cmp_ge_u32 s{sS}, 2\ns_cbranch_scc1 L_ffn_nox2")
reduce_partials(S, 2, 0, ACC+32, HV, f"""s_mul_i32 s{sT0}, s{sR}, {8*147456}
s_lshl_b32 s{sT1}, s{sS}, 11
s_add_u32 s{sT0}, s{sT0}, s{sT1}
s_add_u32 s{sT0}, s{sT0}, {P_OFF + 8*16384}""")
S.e("L_ffn_nox2:")
stamp(S, 6)
S.e("s_waitcnt vmcnt(0)")
poll(S, "po", ('eq', 0x01010101), vU+2, vT)
stamp(S, 7)
S.e(f"""s_lshl_b32 s{sT0}, s{sR}, 2
s_add_u32 s{sT0}, s{sT0}, s{sW}
s_mul_i32 s{sT0}, s{sT0}, {36*1024}
s_add_u32 s{sT0}, s{sT0}, {O_OFF}
v_lshlrev_b32 v{vU+1}, 4, v{vLANE}
""")
oq = Q("vmcnt", 63)
for k in range(36):
    S.e(f"buffer_load_dwordx4 a[{4*k}:{4*k+3}], v{vU+1}, {srd(sWs)}, s{sT0} offen offset:{1024*(k%4)} sc1"); oq.issue(k)
    if k % 4 == 3 and k < 35: S.e(f"s_add_u32 s{sT0}, s{sT0}, 4096")
S.e(f"""s_lshl_b32 s{sT1}, s{sS}, 9
v_add_u32 v{vU+2}, s{sT1}, v{vRB+1}
v_add_u32 v{vU+3}, s{sT1}, v{vRB+2}
s_cmp_lt_u32 s{sS}, 2
s_cbranch_scc1 L_ffn_o3""")

def oproj(S, nt, oq0):
    oq = Q("vmcnt", 63); oq.q = list(oq0.q)
    lq = Q("lgkmcnt", 15)
    tot = 36*nt
    def rd(j):
        ks, t = j // nt, j % nt
        f = FR + 4*(j % 8)
        if t < 2:
            slot = ks // 12; base = vRB + slot // 2; off = (slot % 2)*SLOT + (ks % 12)*2048 + t*512
        else:
            slot = 3 + ks // 12; base = vU + 2 + (slot // 2 - 1); off = (slot % 2)*SLOT + (ks % 12)*2048
        S.e(f"ds_read_b64_tr_b16 a[{f}:{f+1}], v{base} offset:{off}\nds_read_b64_tr_b16 a[{f+2}:{f+3}], v{base} offset:{off+1024}")
        lq.issue(j); lq.issue(j)
    for j in range(DR): rd(j)
    S.e(lq.wait(lambda t: t <= 0))
    S.e(oq.wait(lambda t: t <= 0))
    for i in range(tot):
        ks, t = i // nt, i % nt
        a = ACC + 16*t; f = FR + 4*(i % 8)
        S.e(f"v_mfma_f32_32x32x16_bf16 v[{a}:{a+15}], a[{f}:{f+3}], a[{4*ks}:{4*ks+3}], v[{a}:{a+15}]")
        x = lq.wait(lambda tg: tg <= i + 1)
        if x: S.e(x)
        if t == nt - 1:
            x = oq.wait(lambda tg: tg <= ks + 1)
            if x: S.e(x)
        if i + DR < tot: rd(i + DR)
    for t in range(nt):
        a = ACC + 16*t
        so = sT3 if t < 2 else sT0
        if t == 2: S.e(f"s_lshl_b32 s{sT0}, s{sS}, 6\ns_add_u32 s{sT0}, s{sT0}, 1024")
        for gp in range(2):
            p = 8*t + 4*gp
            for d in range(4):
                S.e(f"v_cvt_pk_bf16_f32 v{p+d}, v{a+8*gp+2*d}, v{a+8*gp+2*d+1}")
        for gp in range(2):
            p = 8*t + 4*gp
            S.e(f"v_permlane32_swap_b32 v{p}, v{p+2}\nv_permlane32_swap_b32 v{p+1}, v{p+3}")
        for gp in range(2):
            p = 8*t + 4*gp
            S.e(f"buffer_store_dwordx4 v[{p}:{p+3}], v{vXA}, {srd(sOut)}, s{so} offen offset:{(64*t if t < 2 else 0) + 32*gp}")
S = seg("ffn_o2")
oproj(S, 2, oq)
S.e("s_branch L_ffn_end")
S = seg("ffn_o3")
S.e("L_ffn_o3:")
oproj(S, 3, oq)
S = seg("ffn_end")
S.e("L_ffn_end:")
if STAMP: S.e("s_waitcnt vmcnt(0)")
stamp(S, 8)
stamp_out(S)
S.e("s_endpgm")

WQ0 = 20480; WQ2 = 94208
QST = 152
S = seg("att_pro")
S.e("L_att:")
vm = Q("vmcnt", 63)
S.e(f"s_mul_i32 s{sT0}, s{sS}, 144")
mk_srd(S, sWa, 6, 576*1152, add=sT0)
S.e(f"s_sub_u32 s{sWa+2}, s{sWa+2}, s{sT0}")
x_loads(S, vm)
S.e(f"v_bfe_u32 v{vT}, v{vLANE}, 2, 3\nv_lshl_add_u32 v{vT+1}, s{sW}, 3, v{vT}")
dma_lane(S, vD2, 1152, vT+1, vT+2)
for n in range(18):
    S.e(f"s_add_u32 m0, s{sM0}, {WQ0 + n*4096}\ns_mov_b32 s{sOFF}, {32*n*1152}\nbuffer_load_dwordx4 v{vD2}, {srd(sWa)}, s{sOFF} offen lds"); vm.issue(("wq",))
S.e(f"v_lshl_add_u32 v{vT+1}, s{sW}, 6, v{vLANE}\nv_mul_u32_u24 v{vD1}, 1152, v{vT+1}\nv_add_u32 v{vD1}, 128, v{vD1}")
for n in range(3):
    S.e(f"s_add_u32 m0, s{sM0}, {WQ2 + n*4096}\ns_mov_b32 s{sOFF}, {256*n*1152}\nbuffer_load_dwordx4 v{vD1}, {srd(sWa)}, s{sOFF} offen lds"); vm.issue(("wq",))
tr_lane(S, vRA, 'A', vT+2, vT+3)
S.e(f"""v_add_u32 v{vRA}, {WQ0}, v{vRA}
v_add_u32 v{vRA+1}, 49152, v{vRA}
v_bfe_u32 v{vT}, v{vLANE}, 2, 2
v_lshrrev_b32 v{vT+1}, 5, v{vLANE}
v_lshl_add_u32 v{vT}, v{vT+1}, 3, v{vT}
v_lshlrev_b32 v{vT}, 4, v{vT}
v_and_b32 v{vT+1}, 1, v{vLANE}
v_lshl_add_u32 v{vT}, v{vT+1}, 3, v{vT}
v_add_u32 v{vRA+2}, {WQ2}, v{vT}
""")
stamp(S, 1)
layernorm(S, vm, 1.0)
stamp(S, 2)
S.e("s_waitcnt vmcnt(0)\ns_barrier"); vm.clear()
lq = Q("lgkmcnt", 15)
def rdq(j):
    ks, t = j // 3, j % 3
    f = FR + 4*(j % 8)
    if t < 2:
        base = vRA + (ks >= 24); off = (ks % 24)*2048 + t*512; d2 = 256
    else:
        base = vRA + 2; off = ks*256; d2 = 64
    S.e(f"ds_read_b64_tr_b16 a[{f}:{f+1}], v{base} offset:{off}\nds_read_b64_tr_b16 a[{f+2}:{f+3}], v{base} offset:{off+d2}")
    lq.issue(j); lq.issue(j)
for j in range(DR): rdq(j)
S.e(lq.wait(lambda t: t <= 0))
for i in range(108):
    ks, t = i // 3, i % 3
    a = ACC + 16*t; f = FR + 4*(i % 8)
    S.e(f"v_mfma_f32_32x32x16_bf16 v[{a}:{a+15}], a[{f}:{f+3}], v[{4*ks}:{4*ks+3}], {'0' if ks == 0 else 'v[%d:%d]' % (a, a+15)}")
    x = lq.wait(lambda tg: tg <= i + 1)
    if x: S.e(x)
    if i + DR < 108: rdq(i + DR)
stamp(S, 3)
vQW, vQR = vU, vU + 1
cq = LOG2E / math.sqrt(18.0)
S.e(f"""s_mul_i32 s{sT0}, s{sW}, {32*QST}
v_and_b32 v{vT}, 31, v{vLANE}
v_mul_u32_u24 v{vT}, {QST}, v{vT}
v_add_u32 v{vT}, s{sT0}, v{vT}
v_lshrrev_b32 v{vT+1}, 5, v{vLANE}
v_lshl_add_u32 v{vQW}, v{vT+1}, 3, v{vT}
v_mov_b32 v{vU+2}, v{vT}
""")
for i in range(36): S.e(f"v_mul_f32 v{ACC+i}, {f2u(cq)}, v{ACC+i}")
for i in range(18): S.e(f"v_cvt_pk_bf16_f32 v{i}, v{ACC+2*i}, v{ACC+2*i+1}")
for g in range(9): S.e(f"ds_write_b64 v{vQW}, v[{2*g}:{2*g+1}] offset:{16*g}")
S.e("s_waitcnt lgkmcnt(0)")
SS, CC, OO, Q2V = 0, 64, 128, 192
Q1 = 236
Q1 = 208 + 16
Q1 = 32
for j in range(4):
    S.e(f"ds_read2_b32 v[{Q1+4*j}:{Q1+4*j+1}], v{vQW} offset0:{9*j} offset1:{9*j+1}")
    S.e(f"ds_read2_b32 v[{Q1+4*j+2}:{Q1+4*j+3}], v{vQW} offset0:{9*j+4} offset1:{9*j+5}")
    S.e(f"ds_read_b32 v{Q1+16+j}, v{vU+2} offset:{36*j+32}")
S.e(f"""v_cmp_gt_u32 vcc, 32, v{vLANE}
v_and_b32 v{vU+3}, 15, v{vLANE}
v_lshlrev_b32 v{vU+3}, 3, v{vU+3}
s_waitcnt lgkmcnt(0)""")
for j in range(4):
    b = Q2V + 8*j
    S.e(f"""v_cndmask_b32 v{b}, 0, v{Q1+16+j}, vcc
    v_mov_b32 v{b+1}, 0
    v_mov_b32 v{b+2}, 0
    v_cndmask_b32 v{b+3}, 0, v{Q1+16+j}, vcc
    v_cndmask_b32 v{b+4}, v{Q1+16+j}, 0, vcc
    v_mov_b32 v{b+5}, 0
    v_mov_b32 v{b+6}, 0
    v_cndmask_b32 v{b+7}, v{Q1+16+j}, 0, vcc""".replace(", 0, vcc", ", v%d, vcc" % (b+1)))
for i in range(16): S.e(f"v_accvgpr_write_b32 a{i}, v{Q1+i}")
qn = vT
for j in range(4):
    S.e(f"v_dot2_f32_bf16 v{qn+j}, v{Q2V+8*j}, v{Q2V+8*j}, 0")
for d in range(4):
    for j in range(4):
        S.e(f"v_dot2_f32_bf16 v{qn+j}, v{Q1+4*j+d}, v{Q1+4*j+d}, v{qn+j}")
for j in range(4): S.e(f"v_mov_b32 v{qn+4+j}, v{qn+j}")
for j in range(4): S.e(f"v_permlane32_swap_b32 v{qn+j}, v{qn+4+j}")
for j in range(4): S.e(f"v_add_f32 v{qn+j}, v{qn+j}, v{qn+4+j}")
S.e(f"v_max_f32 v{qn}, v{qn}, v{qn+1}\nv_max3_f32 v{qn}, v{qn}, v{qn+2}, v{qn+3}")
K1B, VB, K2B = 16, 24, 40
for i in range(32, 64): S.e(f"v_mov_b32 v{i}, 0")
for i in range(64, 192): S.e(f"v_mov_b32 v{i}, 0")
for i in range(8): S.e(f"v_accvgpr_write_b32 a{VB+8+i}, 0")
vK1, vV, vK2, vIDX = 236, 237, 238, 239
S.e(f"""v_lshlrev_b32 v{vK1}, 4, v{vLANE}
v_lshlrev_b32 v{vK2}, 3, v{vLANE}
v_and_b32 v{vT+1}, 31, v{vLANE}
v_mov_b32 v{vT+2}, 4
v_cmp_lt_u32 vcc, 18, v{vT+1}
v_subrev_u32 v{vT+3}, 20, v{vT+1}
v_cmp_gt_u32 s[{sEX}:{sEX+1}], 8, v{vT+3}
v_cndmask_b32 v{vT+1}, v{vT+1}, v{vT+2}, vcc
v_cndmask_b32 v{vT+1}, v{vT+1}, 0, s[{sEX}:{sEX+1}]
v_lshrrev_b32 v{vT+2}, 5, v{vLANE}
v_mul_u32_u24 v{vT+2}, 304, v{vT+2}
v_lshl_add_u32 v{vV}, v{vT+1}, 4, v{vT+2}
v_mov_b32 v{vIDX}, 0xdddddddd
v_lshlrev_b32 v{vT+4}, 2, v{vLANE}
v_lshl_add_u32 v{vT+5}, v{vLANE}, 4, s{sM0}
""")
stamp(S, 4)
poll(S, "pk", 'kv', vU+3, vT+6)
stamp(S, 5)
S.e(f"s_mov_b32 s{sOFF}, {KN_OFF}\nbuffer_load_dword v{vT+1}, v{vT+4}, {srd(sWs)}, s{sOFF} offen sc1")
for n in range(37):
    S.e(f"s_add_u32 m0, s{sM0}, {n*4096}\ns_mov_b32 s{sOFF}, {n*4096}\nbuffer_load_dwordx4 v{vT+5}, {srd(sWs)}, s{sOFF} offen sc1 lds")
S.e("s_waitcnt vmcnt(37)")
wave_max(S, vT+1)
S.e(f"""v_readlane_b32 s{sT0}, v{vT+1}, 63
v_mul_f32 v{qn}, s{sT0}, v{qn}
v_cmp_nle_f32 vcc, v{qn}, v{vT+2}
""".replace(f"v_readlane_b32 s{sT0}", f"v_mov_b32 v{vT+2}, {f2u(-1.0 if FORCE_FB else 4096.0)}\nv_readlane_b32 s{sT0}"))
S.e(f"""s_waitcnt vmcnt(34)
s_barrier
s_cbranch_vccnz L_att_fb
L_att_go:
ds_read_b64 a[{K2B}:{K2B+1}], v{vK2}
ds_read_b128 a[{K1B}:{K1B+3}], v{vK1} offset:512
s_mov_b32 s{sCNT}, 0
s_waitcnt lgkmcnt(0)
""")
stamp(S, 6)
S = seg("att_loop")
S.e(".p2align 6\nL_att_loop:")
def att_step(S, it, u, last=False):
    j, t = u & 3, u >> 2
    s = SS + 16*j; e = SS + 16*((j-1) & 3); p = SS + 16*((j-2) & 3); o = OO + 16*((j-2) & 3)
    vb = VB + 8*(((u-2) >> 2) & 1)
    kb = K1B + 4*(t & 1); k2 = K2B + 2*(it & 1)
    base = it*KV_IT
    def ex(a):
        for i in range(4): S.e(f"v_exp_f32 v{e+a+i}, v{e+a+i}")
    S.e(f"v_mfma_f32_32x32x16_bf16 v[{s}:{s+15}], a[{kb}:{kb+3}], a[{4*j}:{4*j+3}], v[{CC+16*j}:{CC+16*j+15}]")
    if j == 2: S.e("s_waitcnt lgkmcnt(0)")
    if it == 1 and u == 1: S.e(f"s_add_u32 s{sCNT}, s{sCNT}, 1")
    if it == 1 and u == 15: S.e(f"s_cmp_lt_u32 s{sCNT}, 8")
    if it == 1 and u == 0: S.e(f"s_or_b32 s{sT0}, s{sCNT}, s{sFB}")
    ex(0)
    q2 = Q2V + 8*j + 2*t
    S.e(f"v_mfma_f32_32x32x8_bf16 v[{s}:{s+15}], a[{k2}:{k2+1}], v[{q2}:{q2+1}], v[{s}:{s+15}]")
    ex(4)
    S.e(f"v_smfmac_f32_32x32x32_bf16 v[{o}:{o+15}], a[{vb}:{vb+3}], v[{p}:{p+7}], v{vIDX}")
    if it == 1 and u == 0:
        S.e("s_cbranch_scc1 L_att_nosync\ns_waitcnt vmcnt(0)\ns_barrier\nL_att_nosync:")
    vn = VB + 8*(t & 1)
    if j == 0: S.e(f"ds_read_b128 a[{vn}:{vn+3}], v{vV} offset:{base + 4608 + 1216*t}")
    if j == 1: S.e(f"ds_read_b128 a[{vn+4}:{vn+7}], v{vV} offset:{base + 4608 + 1216*t + 608}")
    if j == 2:
        kn = K1B + 4*((t+1) & 1)
        off = base + 512 + 1024*(t+1) if t < 3 else base + KV_IT + 512
        S.e(f"ds_read_b128 a[{kn}:{kn+3}], v{vK1} offset:{off}")
        if t == 2:
            k2n = K2B + 2*((it+1) & 1)
            S.e(f"ds_read_b64 a[{k2n}:{k2n+1}], v{vK2} offset:{base + KV_IT}")
    if j == 3 and it == 1 and t == 3:
        S.e(f"v_add_u32 v{vK1}, {2*KV_IT}, v{vK1}\nv_add_u32 v{vV}, {2*KV_IT}, v{vV}\nv_add_u32 v{vK2}, {2*KV_IT}, v{vK2}")
    ex(8)
    S.e(f"v_smfmac_f32_32x32x32_bf16 v[{o}:{o+15}], a[{vb+4}:{vb+7}], v[{p+8}:{p+15}], v{vIDX}")
    if j == 3: S.e("s_waitcnt lgkmcnt(0)")
    ex(12)
for it in range(2):
    for u in range(16): att_step(S, it, u)
S.e("s_cbranch_scc1 L_att_loop")
S = seg("att_tail")
stamp(S, 7)
vb = VB + 8
p = SS + 32; o = OO + 32; e = SS + 48
S.e(f"v_smfmac_f32_32x32x32_bf16 v[{o}:{o+15}], a[{vb}:{vb+3}], v[{p}:{p+7}], v{vIDX}")
for i in range(8): S.e(f"v_exp_f32 v{e+i}, v{e+i}")
S.e(f"v_smfmac_f32_32x32x32_bf16 v[{o}:{o+15}], a[{vb+4}:{vb+7}], v[{p+8}:{p+15}], v{vIDX}")
for i in range(8, 16): S.e(f"v_exp_f32 v{e+i}, v{e+i}")
p = SS + 48; o = OO + 48
S.e(f"v_smfmac_f32_32x32x32_bf16 v[{o}:{o+15}], a[{vb}:{vb+3}], v[{p}:{p+7}], v{vIDX}")
S.e(f"v_smfmac_f32_32x32x32_bf16 v[{o}:{o+15}], a[{vb+4}:{vb+7}], v[{p+8}:{p+15}], v{vIDX}")
S.e(f"""s_lshl_b32 s{sT0}, s{sR}, 2
s_add_u32 s{sT0}, s{sT0}, s{sW}
s_mul_i32 s{sT0}, s{sT0}, {36*1024}
s_add_u32 s{sT0}, s{sT0}, {O_OFF}
s_lshl_b32 s{sT1}, s{sS}, 12
s_add_u32 s{sT1}, s{sT1}, s{sT0}
s_lshl_b32 s{sT2}, s{sS}, 9
s_add_u32 s{sT2}, s{sT2}, s{sT0}
s_add_u32 s{sT2}, s{sT2}, {32*1024}
v_lshlrev_b32 v{vK1}, 4, v{vLANE}
""")
for j in range(4):
    o = OO + 16*j; l = vT + 2*j; P = 64 + 4*j
    S.e(f"v_mov_b32 v{l}, v{o+10}\nv_mov_b32 v{l+1}, v{o+10}\nv_permlane32_swap_b32 v{l}, v{l+1}\nv_rcp_f32 v{l}, v{l}")
    for i in range(10): S.e(f"v_mul_f32 v{o+i}, v{o+i}, v{l}")
    for d in range(4): S.e(f"v_cvt_pk_bf16_f32 v{P+d}, v{o+2*d}, v{o+2*d+1}")
    S.e(f"v_cvt_pk_bf16_f32 v{80+j}, v{o+8}, v{o+9}")
    S.e(f"buffer_store_dwordx4 v[{P}:{P+3}], v{vK1}, {srd(sWs)}, s{sT1} offen offset:{1024*j} sc1")
S.e(f"""s_mov_b32 exec_hi, 0
buffer_store_dwordx4 v[80:83], v{vK1}, {srd(sWs)}, s{sT2} offen sc1
s_mov_b64 exec, -1
s_waitcnt vmcnt(0)
s_barrier""")
set_flag(S, "of", 1, 128)
stamp(S, 8)
stamp_out(S)
S.e("s_endpgm")

S = seg("att_fb")
S.e(f"""L_att_fb:
s_waitcnt vmcnt(0)
s_barrier
s_mov_b32 s{sFB}, 1
s_mov_b32 s{sCNT}, 0
""")
mx = vT
for j in range(4): S.e(f"v_mov_b32 v{mx+j}, 0xff800000")
S.e(f"v_mov_b32 v{vT+4}, v{vK1}\nv_mov_b32 v{vT+5}, v{vK2}")
S2 = seg("att_fb_loop"); S = S2
S.e("L_att_fb_loop:")
S.e(f"ds_read_b64 a[{K2B}:{K2B+1}], v{vT+5}")
for t in range(4): S.e(f"ds_read_b128 a[{44+4*t}:{47+4*t}], v{vT+4} offset:{512+1024*t}")
S.e(f"v_add_u32 v{vT+4}, {KV_IT}, v{vT+4}\nv_add_u32 v{vT+5}, {KV_IT}, v{vT+5}\ns_waitcnt lgkmcnt(0)")
for t in range(4):
    for j in range(4):
        s = SS + 16*j; q2 = Q2V + 8*j + 2*t
        S.e(f"v_mfma_f32_32x32x16_bf16 v[{s}:{s+15}], a[{44+4*t}:{47+4*t}], a[{4*j}:{4*j+3}], 0")
        S.e(f"v_mfma_f32_32x32x8_bf16 v[{s}:{s+15}], a[{K2B}:{K2B+1}], v[{q2}:{q2+1}], v[{s}:{s+15}]")
    for j in range(4):
        s = SS + 16*j
        for i in range(0, 16, 2): S.e(f"v_max3_f32 v{mx+j}, v{s+i}, v{s+i+1}, v{mx+j}")
S.e(f"s_add_u32 s{sCNT}, s{sCNT}, 1\ns_cmp_lt_u32 s{sCNT}, 16\ns_cbranch_scc1 L_att_fb_loop")
S = seg("att_fb_end")
for j in range(4):
    S.e(f"v_mov_b32 v{vT+4}, v{mx+j}\nv_permlane32_swap_b32 v{mx+j}, v{vT+4}\nv_max_f32 v{mx+j}, v{mx+j}, v{vT+4}")
    for i in range(16): S.e(f"v_sub_f32 v{CC+16*j+i}, 0, v{mx+j}")
for i in range(32, 64): S.e(f"v_mov_b32 v{i}, 0")
S.e("s_branch L_att_go")
S = seg("end")
S.e("L_exit:\ns_endpgm\n.p2align 6\nL_codeend:")

by = {s.name: s for s in segs}
prev = []
for s in segs:
    s.autopad(prev[-40:])
    prev = s.ins
    if s.padded: print(f"seg {s.name}: {s.padded} pads", file=sys.stderr)
paths = [["entry", "att_pro", "att_loop", "att_loop", "att_tail"],
         ["ffn_pro", "ffn_main"], ["ffn_kv", "ffn_kvdone"], ["ffn_tail", "ffn_o3"],
         ["att_fb_loop", "att_fb_loop"]]
for p in paths:
    seq = sum((by[n].ins for n in p), [])
    for i, miss, who in violations(seq):
        print("VIOLATION path", p, seq[i].text, "<-", who.text, miss, file=sys.stderr); sys.exit(1)

hdr = open("cdna_kernels/" + NAME + ".s.ref").read().split("; Override launch")[0]
out = hdr + "; Generated by a hand-written generator (dev/gen.py): one persistent launch, 128 FFN + 128 attention workgroups.\n"
out += "; @launch grid=(256,1,1) block=(256,1,1) lds=163840\n"
out += f""".amdgcn_target "amdgcn-amd-amdhsa--gfx950"
.text
.globl {NAME}_kernel
.p2align 8
.type {NAME}_kernel,@function
{NAME}_kernel:
"""
out += "".join(s.text() for s in segs)
out += f""".section .rodata,"a"
.p2align 6
.amdhsa_kernel {NAME}_kernel
  .amdhsa_next_free_vgpr 512
  .amdhsa_next_free_sgpr 102
  .amdhsa_accum_offset 256
  .amdhsa_group_segment_fixed_size 0
  .amdhsa_kernarg_size 88
  .amdhsa_user_sgpr_count 2
  .amdhsa_user_sgpr_kernarg_segment_ptr 1
  .amdhsa_system_sgpr_workgroup_id_x 1
.end_amdhsa_kernel
"""
dst = [a for a in sys.argv[1:] if not a.startswith("--")]
open(dst[0] if dst else "cdna_kernels/" + NAME + ".s", "w").write(out)
```

```python
import sys, math, struct
from asmlib import Seg, Q, I, violations

NAME = "parallel_sum__grouped_kv_mqa__dense_activation_silu__prompt"
STAMP = "--stamp" in sys.argv
FORCE_FB = "--force-fallback" in sys.argv
MAPPING = 2
for a in sys.argv:
    if a.startswith("--map="): MAPPING = int(a[6:])

def f2u(x): return struct.unpack("<I", struct.pack("<f", x))[0]
LOG2E = 1.4426950408889634
LN2 = 0.6931471805599453

NOPF = "--nopf" in sys.argv

VT = 1344
KV_IT = 512 + 4096 + 4*VT
KV_BYTES = 16 * KV_IT
KN_OFF = 0x28000
KC_OFF = 0x2e000
FL_OFF = 0x29000
O_OFF = 0x38000
P_OFF = 0x280000
ST_OFF = 0x2000000
WS_BYTES = 0x4000000
SK, SV = 2, 3
NW = {0: 16, 1: 8, 2: 4, 3: 2}[MAPPING]
NX = 32 // NW

sF = 26
sX, sWa, sWb, sWo, sKV, sOut, sDbg, sWs = 28, 32, 36, 40, 44, 48, 52, 56
sR, sS, sROLE, sW, sM0, sOFF, sXB = 60, 61, 62, 63, 64, 65, 66
sT0, sT1, sT2, sT3 = 67, 68, 69, 72
sEX = 70
sPL = 73
sCNT = 74
sK = 75
sSEL0, sSEL1, sONES = 76, 77, 78
sSPIN = 79
sCOL = 80
sST = 89
sFLB = 3
sHSA, sHSK = 14, 15
sHI = 97
def srd(b): return f"s[{b}:{b+3}]"
vLANE = 255

segs = []
def seg(name):
    s = Seg(name); segs.append(s); return s

def stamp(S, k):
    if STAMP:
        S.e(f"s_memtime s[98:99]\ns_memrealtime s[100:101]\ns_waitcnt lgkmcnt(0)\nv_writelane_b32 v253, s98, {k}\nv_writelane_b32 v253, s100, {16+k}")
def stamp_out(S):
    if STAMP:
        S.e(f"""s_lshl_b32 s{sT0}, s2, 2
        s_add_u32 s{sT0}, s{sT0}, s{sW}
        s_lshl_b32 s{sT0}, s{sT0}, 8
        s_add_u32 s{sT0}, s{sT0}, {ST_OFF}
        v_lshlrev_b32 v0, 2, v{vLANE}
        buffer_store_dword v253, v0, {srd(sWs)}, s{sT0} offen
        s_waitcnt vmcnt(0)""")

def mk_srd(S, b, lo, nbytes, add=None, shrink=False):
    if add is None:
        S.e(f"s_mov_b32 s{b}, s{lo}\ns_mov_b32 s{b+1}, s{lo+1}")
    else:
        S.e(f"s_add_u32 s{b}, s{lo}, s{add}\ns_addc_u32 s{b+1}, s{lo+1}, 0")
    S.e(f"s_mov_b32 s{b+2}, {nbytes}\ns_mov_b32 s{b+3}, 0x20000")
    if shrink: S.e(f"s_sub_u32 s{b+2}, s{b+2}, s{add}")

TX = 144
vXD0, vXD1, vXR0, vXR1 = TX, TX+1, TX+2, TX+3
vTID = TX + 4
vSTA = TX + 6
S = seg("entry")
S.e(f"""
s_cmp_ge_u32 s2, 256
s_cbranch_scc1 L_exit
s_load_dwordx16 s[4:19], s[0:1], 0
s_load_dwordx4 s[20:23], s[0:1], 64
s_load_dwordx2 s[24:25], s[0:1], 80
""")
if STAMP: S.e("s_memrealtime s[100:101]\ns_memtime s[98:99]")
S.e(f"""
v_lshrrev_b32 v1, 6, v0
v_and_b32 v{vLANE}, 63, v0
v_readfirstlane_b32 s{sW}, v1
s_and_b32 s{sT0}, s2, 7
s_lshr_b32 s{sT1}, s2, 3
s_and_b32 s{sROLE}, s{sT1}, 1
s_lshr_b32 s{sT1}, s{sT1}, 1
""")
lg = int(math.log2(NW))
S.e(f"""s_and_b32 s{sR}, s{sT0}, {16//NW - 1}
s_lshl_b32 s{sR}, s{sR}, {lg}
s_and_b32 s{sT2}, s{sT1}, {NW - 1}
s_add_u32 s{sR}, s{sR}, s{sT2}
s_and_b32 s{sS}, s{sT0}, {7 & ~(16//NW - 1)}
s_lshr_b32 s{sT2}, s{sT1}, {lg}
s_add_u32 s{sS}, s{sS}, s{sT2}
s_lshr_b32 s{sCNT}, s2, 3
s_lshl_b32 s{sM0}, s{sW}, 10
s_lshl_b32 s{sT0}, s{sR}, 7
s_lshl_b32 s{sT1}, s{sW}, 5
s_add_u32 s{sT0}, s{sT0}, s{sT1}
s_mul_i32 s{sXB}, s{sT0}, 1152
s_mul_i32 s{sT3}, s{sW}, 36864
v_mov_b32 v{vTID}, v0
v_lshrrev_b32 v1, 3, v{vLANE}
v_mul_u32_u24 v1, 1152, v1
v_lshrrev_b32 v2, 4, v{vLANE}
v_and_b32 v3, 7, v{vLANE}
v_xor_b32 v3, v3, v2
v_lshl_add_u32 v{vXD0}, v3, 4, v1
v_xor_b32 v{vXD1}, 64, v{vXD0}
s_lshl_b32 s{sT2}, s{sT2}, 1
s_add_u32 s{sT2}, s{sT2}, s{sROLE}
s_mul_i32 s{sT2}, s{sT2}, {147456 // NX}
s_mul_i32 s{sT0}, s{sR}, 147456
s_add_u32 s{sT2}, s{sT2}, s{sT0}
v_lshlrev_b32 v4, 7, v0
v_min_u32 v4, {147456 // NX - 128}, v4
s_waitcnt lgkmcnt(0)
""")
if STAMP: S.e(f"v_mov_b32 v253, 0\nv_writelane_b32 v253, s98, 0\nv_writelane_b32 v253, s100, 16")
mk_srd(S, sX, 4, 2048*1152)
vm = Q("vmcnt", 63)
if not NOPF:
    nl = 1152 // NX
    for i in range(-(-nl // 256)):
        if i: S.e(f"s_add_u32 s{sT2}, s{sT2}, 32768")
        if nl - 256*i < 256:
            S.e(f"s_cmp_ge_u32 s{sM0}, {((nl - 256*i + 63)//64)*1024}\ns_cbranch_scc1 L_nxpf")
            if i: S.e(f"v_min_u32 v4, {(nl - 256*i)*128 - 128}, v4")
        S.e(f"buffer_load_dword v5, v4, {srd(sX)}, s{sT2} offen")
    S.e("L_nxpf:")
sXM = sSPIN
def x_dma(S, vm, c):
    for o in range(4):
        S.e(f"""s_add_u32 m0, s{sXM}, {c*4096 + o*1024}
        s_add_u32 s{sOFF}, s{sXB}, {8*o*1152 + 128*c}
        buffer_load_dwordx4 v{vXD0 + (o & 1)}, {srd(sX)}, s{sOFF} offen lds""")
        vm.issue(("x", c))
S.e(f"s_mov_b32 s{sXM}, s{sT3}")
XPRE = 3
for c in range(XPRE): x_dma(S, vm, c)
mk_srd(S, sWs, 24, WS_BYTES)
S.e(f"""s_lshl_b32 s{sFLB}, s{sR}, 10
s_add_u32 s{sFLB}, s{sFLB}, {FL_OFF}
s_xor_b32 s{sT0}, s{sS}, {SK}
s_or_b32 s{sT0}, s{sT0}, s{sROLE}
s_or_b32 s{sT0}, s{sT0}, s{sW}
s_cbranch_scc1 L_nzero
v_lshlrev_b32 v1, 4, v{vLANE}
v_mov_b32 v8, 0
v_mov_b32 v9, 0
v_mov_b32 v10, 0
v_mov_b32 v11, 0
buffer_store_dwordx4 v[8:11], v1, {srd(sWs)}, s{sFLB} offen sc1
L_nzero:
""")
S.e(f"""
s_getpc_b64 s[{sEX}:{sEX+1}]
L_pc:
s_mul_i32 s{sT0}, s{sCNT}, (L_codeend-L_pc+4095)/4096*128
v_lshl_add_u32 v1, v{vLANE}, 7, s{sT0}
v_min_u32 v1, L_codeend-L_pc-16, v1
v_mov_b32 v3, s{sEX+1}
v_add_co_u32 v2, vcc, s{sEX}, v1
v_addc_co_u32 v3, vcc, 0, v3, vcc
s_cmp_lg_u32 s{sW}, 3
s_cbranch_scc1 L_ncpf
global_load_dword v{TX+5}, v[2:3], off
L_ncpf:
""")
mk_srd(S, sOut, 20, 2048*1152)
mk_srd(S, sDbg, 22, 256)
mk_srd(S, sWo, 12, 576*1152)
S.e(f"s_mul_i32 s{sT0}, s{sS}, {576*1152}")
mk_srd(S, sWb, 18, 576*1152, add=sT0)
S.e(f"""
s_mov_b32 s{sSEL0}, 0x3f80
s_mov_b32 s{sSEL1}, 0x3f800000
s_mov_b32 s{sONES}, 0x3f803f80
s_mov_b32 s{sHI}, 0xffff0000
s_mov_b32 s{sK}, {f2u(-LOG2E)}
v_and_b32 v1, 15, v{vLANE}
v_lshrrev_b32 v2, 3, v1
v_lshlrev_b32 v2, 10, v2
v_and_b32 v3, 7, v1
v_lshl_add_u32 v2, v3, 7, v2
v_lshrrev_b32 v1, 1, v1
v_lshrrev_b32 v3, 4, v{vLANE}
v_xor_b32 v1, v1, v3
v_lshl_add_u32 v2, v1, 4, v2
v_add_u32 v{vXR0}, s{sT3}, v2
v_xor_b32 v{vXR1}, 64, v{vXR0}
s_lshl_b32 s{sT3}, s{sS}, 7
""")
for q in range(7):
    S.e(f"s_add_u32 s{sT0}, s{sS}, {q+1}\ns_and_b32 s{sT0}, s{sT0}, 7\ns_lshl_b32 s{sCOL+q}, s{sT0}, 7")
S.e(f"s_mov_b32 s{sCOL+7}, 1024\ns_mov_b32 s{sCOL+8}, s{sT3}")
S.e(f"s_cmp_eq_u32 s{sROLE}, 1\ns_cbranch_scc1 L_att")
vm_entry = list(vm.q)

def x_read_stats(S, vm, T, hook=None):
    lq = Q("lgkmcnt", 15)
    def stats(c):
        S.e(lq.wait(lambda t: t <= c))
        for kk in range(2):
            for d in range(4):
                for rb in range(2):
                    r = 8*(2*c + kk) + 4*rb + d
                    first = (c == 0 and kk == 0 and d == 0)
                    S.e(f"v_dot2_f32_bf16 v{T+rb}, v{r}, s{sONES}, {'0' if first else 'v%d' % (T+rb)}")
                    S.e(f"v_dot2_f32_bf16 v{T+2+rb}, v{r}, v{r}, {'0' if first else 'v%d' % (T+2+rb)}")
    for c in range(9):
        S.e(vm.wait(lambda t: t[0] == "x" and t[1] <= c))
        if c + XPRE < 9: x_dma(S, vm, c + XPRE)
        for kk in range(2):
            for rb in range(2):
                r = 8*(2*c + kk) + 4*rb
                S.e(f"ds_read_b128 v[{r}:{r+3}], v{vXR0+kk} offset:{c*4096 + rb*2048}"); lq.issue(c)
        if c: stats(c - 1)
    if hook: hook()
    S.e("s_waitcnt lgkmcnt(0)\ns_barrier")
    lq.q = [8]
    return lambda: stats(8)

def ln_finish(S, T, alpha, items=(), centre_only=False):
    U = T + 12
    for op in ("v_permlane16_swap_b32", "v_permlane32_swap_b32"):
        for i in range(4): S.e(f"v_mov_b32 v{U+i}, v{T+i}")
        for i in range(4): S.e(f"{op} v{T+i}, v{U+i}")
        for i in range(4): S.e(f"v_add_f32 v{T+i}, v{T+i}, v{U+i}")
    for i in range(4): S.e(f"v_mul_f32 v{T+i}, {f2u(1.0/576)}, v{T+i}")
    for rb in range(2): S.e(f"v_fma_f32 v{T+2+rb}, -v{T+rb}, v{T+rb}, v{T+2+rb}")
    for rb in range(2): S.e(f"v_max_f32 v{T+2+rb}, 0, v{T+2+rb}")
    for rb in range(2): S.e(f"v_add_f32 v{T+2+rb}, {f2u(1e-5)}, v{T+2+rb}")
    for rb in range(2): S.e(f"v_rsq_f32 v{T+2+rb}, v{T+2+rb}")
    for rb in range(2): S.e(f"v_mul_f32 v{T+4+4*rb}, {f2u(alpha)}, v{T+2+rb}")
    for rb in range(2 * (not centre_only)): S.e(f"v_mul_f32_e64 v{T+6+4*rb}, -v{T+rb}, v{T+4+4*rb}")
    for rb in range(2 * (not centre_only)): S.e(f"v_mov_b32 v{T+5+4*rb}, v{T+4+4*rb}\nv_mov_b32 v{T+7+4*rb}, v{T+6+4*rb}")
    if centre_only:
        for rb in range(2): S.e(f"v_sub_f32 v{T+rb}, 0, v{T+rb}\nv_accvgpr_write_b32 a{201+rb}, v{T+4+4*rb}")
        assert U % 8 == 4
    t0, t1 = U, U + 2
    items = list(items); ni = len(items); done = 0
    for r in range(0, 144, 2):
        while done < ni and done*72 <= (r // 2)*ni*1.15: items[done](); done += 1
        a = T + 4 + 4*((r >> 2) & 1); b = a + 2
        if centre_only:
            m = T + ((r >> 2) & 1)
            S.e(f"""v_dot2_f32_bf16 v{t0}, v{r}, s{sSEL0}, v{m}
            v_dot2_f32_bf16 v{t0+1}, v{r}, s{sSEL1}, v{m}
            v_dot2_f32_bf16 v{t1}, v{r+1}, s{sSEL0}, v{m}
            v_dot2_f32_bf16 v{t1+1}, v{r+1}, s{sSEL1}, v{m}""")
            if r: S.e(f"v_cvt_pk_bf16_f32 v{r-2}, v{t0^4}, v{(t0^4)+1}\nv_cvt_pk_bf16_f32 v{r-1}, v{t1^4}, v{(t1^4)+1}")
            t0 ^= 4; t1 ^= 4
            if r == 142: S.e(f"v_cvt_pk_bf16_f32 v{r}, v{t0^4}, v{(t0^4)+1}\nv_cvt_pk_bf16_f32 v{r+1}, v{t1^4}, v{(t1^4)+1}")
            continue
        S.e(f"""v_lshlrev_b32 v{t0}, 16, v{r}
        v_and_b32 v{t0+1}, s{sHI}, v{r}
        v_lshlrev_b32 v{t1}, 16, v{r+1}
        v_and_b32 v{t1+1}, s{sHI}, v{r+1}
        v_pk_fma_f32 v[{t0}:{t0+1}], v[{t0}:{t0+1}], v[{a}:{a+1}], v[{b}:{b+1}]
        v_pk_fma_f32 v[{t1}:{t1+1}], v[{t1}:{t1+1}], v[{a}:{a+1}], v[{b}:{b+1}]
        v_cvt_pk_bf16_f32 v{r}, v{t0}, v{t0+1}
        v_cvt_pk_bf16_f32 v{r+1}, v{t1}, v{t1+1}""")

def tr_lane(S, dst, mode, t1):
    S.e(f"""
    v_bfe_u32 v{t1}, v{vLANE}, 2, 2
    v_lshlrev_b32 v{dst}, 6, v{t1}
    v_and_b32 v{t1}, 3, v{vLANE}
    v_lshl_add_u32 v{dst}, v{t1}, 3, v{dst}
    v_bfe_u32 v{t1}, v{vLANE}, 4, 1
    """)
    if mode == 'A':
        S.e(f"v_lshl_add_u32 v{dst}, v{t1}, 5, v{dst}\nv_lshrrev_b32 v{t1}, 4, v{vLANE}\nv_lshl_add_u32 v{dst}, v{t1}, 10, v{dst}")
    else:
        S.e(f"v_mul_u32_u24 v{t1}, 288, v{t1}\nv_add_u32 v{dst}, v{dst}, v{t1}\nv_lshrrev_b32 v{t1}, 5, v{vLANE}\nv_lshl_add_u32 v{dst}, v{t1}, 10, v{dst}")

def dma_lane(S, dst, stride, row, mode, t1):
    S.e(f"v_mul_u32_u24 v{dst}, {stride}, v{row}\nv_lshrrev_b32 v{t1}, 5, v{vLANE}\nv_lshl_add_u32 v{dst}, v{t1}, 6, v{dst}\nv_and_b32 v{t1}, 3, v{vLANE}\nv_lshl_add_u32 v{dst}, v{t1}, 4, v{dst}")
    if mode == 'A':
        S.e(f"s_and_b32 s{sT0}, s{sW}, 1\ns_lshl_b32 s{sT0}, s{sT0}, 5\nv_xor_b32 v{dst}, s{sT0}, v{dst}")
    else:
        S.e(f"v_and_b32 v{t1}, 16, v{vLANE}\nv_lshlrev_b32 v{t1}, 1, v{t1}\nv_xor_b32 v{dst}, v{dst}, v{t1}")

def spin_head(S, name):
    S.e(f"s_mov_b32 s{sSPIN}, 0\nL_{name}_spin:")
def spin_tail(S, name, sl=1):
    S.e(f"s_sleep {sl}\ns_add_u32 s{sSPIN}, s{sSPIN}, 1\ns_cmp_lt_u32 s{sSPIN}, 0x80000\ns_cbranch_scc1 L_{name}_spin")
def poll_all(S, name, srdb, vaddr, soff, v0, first_load=True):
    ld = f"buffer_load_dword v{v0}, v{vaddr}, {srd(srdb)}, {soff} offen sc1"
    if not first_load: S.e(f"v_cmp_eq_u32 vcc, 0x1010101, v{v0}\ns_cmp_eq_u64 vcc, -1\ns_cbranch_scc1 L_{name}_done")
    spin_head(S, name)
    S.e(f"{ld}\ns_waitcnt vmcnt(0)\nv_cmp_eq_u32 vcc, 0x1010101, v{v0}\ns_cmp_eq_u64 vcc, -1\ns_cbranch_scc1 L_{name}_done")
    spin_tail(S, name, 4)
    S.e(f"L_{name}_done:")
def poll_line(S, name, vaddr, off, v0):
    spin_head(S, name)
    S.e(f"""buffer_load_dwordx2 v[{v0}:{v0+1}], v{vaddr}, {srd(sWs)}, 0 offen offset:{off} sc1
    s_waitcnt vmcnt(0)
    v_readfirstlane_b32 s{sT0}, v{v0}
    v_readfirstlane_b32 s{sT1}, v{v0+1}
    s_and_b32 s{sT0}, s{sT0}, s{sT1}
    s_cmp_eq_u32 s{sT0}, 0x1010101
    s_cbranch_scc1 L_{name}_done""")
    spin_tail(S, name)
    S.e(f"L_{name}_done:")
def line_addr(S, dst, nl, kind, t1):
    S.e(f"""s_lshl_b32 s{sT0}, s{sW}, 3
    s_add_u32 s{sT0}, s{sT0}, s{sS}
    s_add_u32 s{sT0}, s{sT0}, {32*kind}
    v_lshl_add_u32 v{dst}, v{vLANE}, 7, s{sT0}
    v_mov_b32 v{t1}, {WS_BYTES}
    v_cmp_gt_u32 vcc, {nl}, v{vLANE}
    v_cndmask_b32 v{dst}, v{t1}, v{dst}, vcc""")
def line_store(vval, vaddr, soff): return f"buffer_store_byte v{vval}, v{vaddr}, {srd(sWs)}, s{soff} offen sc1"

def wave_max(S, v):
    for sh in (1, 2, 4, 8):
        S.e(f"v_max_f32_dpp v{v}, v{v}, v{v} row_shr:{sh} row_mask:0xf bank_mask:0xf")
    S.e(f"v_max_f32_dpp v{v}, v{v}, v{v} row_bcast:15 row_mask:0xa bank_mask:0xf")
    S.e(f"v_max_f32_dpp v{v}, v{v}, v{v} row_bcast:31 row_mask:0xc bank_mask:0xf")

def mf16(a, A, B, first):
    return f"v_mfma_f32_16x16x32_bf16 v[{a}:{a+3}], {A}, {B}, {'0' if first else 'v[%d:%d]' % (a, a+3)}"

FR = 144
DR = 4
def simple_gemm(S, nunits, rd, unit, pre_wait=None, post=None):
    lq = Q("lgkmcnt", 15)
    for j in range(DR):
        for x in rd(j): S.e(x); lq.issue(j)
    S.e(lq.wait(lambda t: t <= 0))
    if pre_wait: pre_wait(0)
    for i in range(nunits):
        m = unit(i); r = rd(i + DR) if i + DR < nunits else []
        S.e(m[0])
        if pre_wait and i + 1 < nunits: pre_wait(i + 1)
        if r: S.e(r[0]); lq.issue(i + DR)
        S.e(m[1])
        x = lq.wait(lambda t: t <= i + 1)
        if x: S.e(x)
        if r: S.e(r[1]); lq.issue(i + DR)
def frag(j): return FR + 4*(j % 8)
def trr(f, base, o1, o2, base2=None):
    return [f"ds_read_b64_tr_b16 a[{f}:{f+1}], v{base} offset:{o1}", f"ds_read_b64_tr_b16 a[{f+2}:{f+3}], v{base if base2 is None else base2} offset:{o2}"]

ACC = 144
HV = 208
vT = 224
vRA, vRB = 236, 242
vD1, vD2, vPS, vFA, vFV, vKA = 248, 249, 250, 251, 252, 254
SLOT = 24576
KVIMG = 5 * SLOT
aST = 240
RR, PT0, PT1, XR = 16, 48, 64, 80
vD3, vD4, vFR, vXRA, vOA, vLA, vLA8, vFL = 96, 97, 98, 99, 100, 101, 104, 102
vHS = 190

def hreg(k, rb):
    i = 8*k + 4*rb
    kind, reg = hdst(i)
    return f"{kind}[{reg}:{reg+3}]"
def hdst(i):
    if i < 112: return ('a', i)
    if i < 128: return ('v', HV + i - 112)
    return ('v', i - 128)

S = seg("ffn_pro")
vm = Q("vmcnt", 63); vm.q = list(vm_entry)
S.e(f"s_mul_i32 s{sT0}, s{sS}, 1152")
mk_srd(S, sWa, 16, 576*9216, add=sT0, shrink=True)
S.e(f"""s_cmp_eq_u32 s{sS}, {SK}
s_cselect_b32 s{sKV}, s8, s10
s_cselect_b32 s{sKV+1}, s9, s11
s_mov_b32 s{sKV+2}, {576*36}
s_mov_b32 s{sKV+3}, 0x20000
""")
t0, t1, t2 = vT, vT+1, vT+2
S.e(f"v_bfe_u32 v{t0}, v{vLANE}, 2, 3\nv_lshl_add_u32 v{t1}, s{sW}, 3, v{t0}")
dma_lane(S, vD1, 9216, t1, 'A', t2)
dma_lane(S, vD2, 1152, t1, 'B', t2)
tr_lane(S, vRA, 'A', t2); tr_lane(S, vRB, 'B', t2)
for b in (vRA, vRB):
    S.e(f"v_xor_b32 v{b+1}, 32, v{b}")
    for sg in (1, 2): S.e(f"v_add_u32 v{b+2*sg}, {2*sg*SLOT}, v{b}\nv_add_u32 v{b+2*sg+1}, {2*sg*SLOT}, v{b+1}")
S.e(f"""s_and_b32 s{sT0}, s{sW}, 1
s_lshr_b32 s{sT1}, s{sW}, 1
s_mul_i32 s{sT2}, s{sT0}, 18
s_lshl_b32 s{sEX}, s{sT1}, 3
s_add_u32 s{sT2}, s{sT2}, s{sEX}
v_add_u32 v{t1}, s{sT2}, v{t0}
""")
dma_lane(S, vT+3, 1152, t1, 'B', t2)
S.e(f"""v_accvgpr_write_b32 a{aST}, v{vT+3}
s_and_b32 s{sT0}, s{sW}, 1
s_mul_i32 s{sT0}, s{sT0}, 144
s_mul_i32 s{sT1}, s{sT1}, 36
s_add_u32 s{sT0}, s{sT0}, s{sT1}
s_add_u32 s{sT0}, s{sT0}, 16
v_lshrrev_b32 v{t1}, 2, v{t0}
v_mul_u32_u24 v{t1}, 72, v{t1}
v_bfe_u32 v{t2}, v{t0}, 1, 1
v_mul_u32_u24 v{t2}, 18, v{t2}
v_add_u32 v{t1}, v{t1}, v{t2}
v_and_b32 v{t2}, 1, v{t0}
v_add3_u32 v{t1}, v{t1}, v{t2}, s{sT0}
""")
dma_lane(S, vT+3, 1152, t1, 'B', t2)
S.e(f"""v_accvgpr_write_b32 a{aST+1}, v{vT+3}
s_lshl_b32 s{sT0}, s{sW}, 3
s_add_u32 s{sT0}, s{sT0}, s{sT3}
s_add_u32 s{sT0}, s{sT0}, s{sFLB}
v_mov_b32 v{t1}, s{sT0}
v_accvgpr_write_b32 a{aST+2}, v{t1}
s_lshl_b32 s{sT0}, s{sR}, 3
v_and_b32 v{t1}, 15, v{vLANE}
v_mul_u32_u24 v{t1}, 1152, v{t1}
v_add_u32 v{t1}, s{sXB}, v{t1}
v_bfe_u32 v{t2}, v{vLANE}, 4, 1
v_lshl_add_u32 v{t1}, v{t2}, 5, v{t1}
v_lshrrev_b32 v{t2}, 5, v{vLANE}
v_lshl_add_u32 v{t1}, v{t2}, 4, v{t1}
v_accvgpr_write_b32 a{aST+4}, v{t1}
s_lshl_b32 s{sT1}, s{sW}, 12
v_lshl_add_u32 v{vPS}, v{vLANE}, 4, s{sT1}
s_add_u32 s{sT0}, s{sT0}, s{sS}
s_mul_i32 s{sT0}, s{sT0}, 147456
s_add_u32 s{sT0}, s{sT0}, {P_OFF}
s_mul_i32 s{sPL}, s{sR}, {8*147456}
s_lshl_b32 s{sT1}, s{sS}, 14
s_add_u32 s{sPL}, s{sPL}, s{sT1}
s_add_u32 s{sPL}, s{sPL}, {P_OFF}
""")
for q in range(8): S.e(f"s_lshl_b32 s{sT1}, s{sCOL+q}, 7\ns_add_u32 s{sST+q}, s{sT1}, s{sT0}")
line_addr(S, vT+3, 1, 0, t1)
S.e(f"v_accvgpr_write_b32 a{aST+5}, v{vT+3}")
line_addr(S, vT+3, 2, 1, t1)
S.e(f"""v_accvgpr_write_b32 a{aST+6}, v{vT+3}
s_lshl_b32 s{sT0}, s{sR}, 1
s_add_u32 s{sT2}, s{sT0}, s{sS}
s_sub_u32 s{sT2}, s{sT2}, {SK}
s_and_b32 s{sT1}, s{sS}, 6
s_xor_b32 s{sT1}, s{sT1}, {SK}
s_or_b32 s{sT1}, s{sT1}, s{sW}
s_cselect_b32 s{sT2}, 1024, s{sT2}
s_cselect_b32 s{sT1}, 0, 16
v_lshl_add_u32 v{vFA}, v{vLANE}, 8, s{sT2}
v_lshlrev_b32 v{vHS}, 7, v{vLANE}
v_add_u32 v{vHS}, {KC_OFF}, v{vHS}
v_mov_b32 v{vHS+1}, {WS_BYTES}
v_cmp_gt_u32 vcc, s{sT1}, v{vLANE}
v_cndmask_b32 v{vHS}, v{vHS+1}, v{vHS}, vcc
s_mov_b32 s{sHSA}, s{sT0}
s_lshl_b32 s{sHSK}, s{sW}, 4
s_add_u32 s{sHSK}, s{sHSK}, s{sS}
v_mov_b32 v{vFV}, 1""")
aXR, aX8 = 224, 216
vXC = vT + 4
S.e(f"""v_lshrrev_b32 v{t1}, 4, v{vLANE}
v_lshrrev_b32 v{t2}, 5, v{vLANE}
v_xor_b32 v{t2}, v{t1}, v{t2}
v_lshlrev_b32 v{t2}, 4, v{t2}
v_xor_b32 v{t2}, v{vXR0}, v{t2}
v_and_b32 v{t1}, 1, v{t1}
v_lshl_add_u32 v{t2}, v{t1}, 3, v{t2}
s_lshl_b32 s{sT0}, s{sS}, 12
s_and_b32 s{sT1}, s{sS}, 1
s_lshl_b32 s{sT1}, s{sT1}, 6
v_xor_b32 v{vXC+4}, s{sT1}, v{t2}
v_xor_b32 v{vXC+5}, 32, v{vXC+4}
v_add_u32 v{vXC}, s{sT0}, v{t2}""")
for ct in range(1, 4): S.e(f"v_xor_b32 v{vXC+ct}, {32*ct}, v{vXC}")
def xres():
    for ct in range(4):
        for rb in range(2): S.e(f"ds_read_b64 a[{aXR+4*ct+2*rb}:{aXR+4*ct+2*rb+1}], v{vXC+ct} offset:{2048*rb}")
    for z in range(2):
        for rb in range(2): S.e(f"ds_read_b64 a[{aX8+4*z+2*rb}:{aX8+4*z+2*rb+1}], v{vXC+4+z} offset:{32768 + 2048*rb}")
fin = x_read_stats(S, vm, vT, xres)
stamp(S, 1)

def dma_src(T, n):
    P, sg = T // 3, T % 3
    if P < 9:  return sWa, vD1, (192*sg + 32*n) * 9216 + P*128, None
    if P < 18: return sWb, vD2, (192*sg + 32*n) * 1152, sCOL + P - 9
    extra = sT3 if P == 18 else None
    col = 0 if P == 18 else 8*128
    if sg == 2 and n >= 4: return sWo, vD4, 288*(n-4)*1152 + col, extra
    return sWo, vD3, 36*(6*sg + n)*1152 + col, extra
def dma_soff(T, n):
    _, _, c, extra = dma_src(T, n)
    return f"s_mov_b32 s{sOFF}, {c}" if extra is None else f"s_add_u32 s{sOFF}, s{extra}, {c}"
def dma_m0(T, n): return f"s_add_u32 m0, s{sM0}, {(T%6)*SLOT + n*4096}"
def dma_go(T, n):
    b, v, _, _ = dma_src(T, n)
    return f"buffer_load_dwordx4 v{v}, {srd(b)}, s{sOFF} offen lds"
KT = ACC + 8
S.e(f"""s_and_b32 s{sT0}, s{sS}, 6
s_cmp_lg_u32 s{sT0}, {SK}
s_cbranch_scc1 L_ffn_nokv1
v_mul_u32_u24 v{vKA}, 12, v{vLANE}
s_mul_i32 s{sT0}, s{sW}, 756""")
for j in range(7):
    S.e(f"buffer_load_dwordx3 v[{KT+4*j}:{KT+4*j+2}], v{vKA}, {srd(sKV)}, s{sT0} offen")
    if j < 6: S.e(f"s_add_u32 s{sT0}, s{sT0}, 3024")
S.e(f"""v_mul_u32_u24 v{KT+3}, 86, v{vLANE}
v_lshrrev_b32 v{KT+3}, 8, v{KT+3}
v_lshl_add_u32 v{vKA}, v{KT+3}, 2, v{vKA}
s_mul_i32 s{sT0}, s{sW}, 840
s_add_u32 s{sT0}, s{sT0}, {KVIMG}
v_add_u32 v{vKA}, s{sT0}, v{vKA}
L_ffn_nokv1:""")
def dma_item(T, n):
    def f(): S.e(dma_m0(T, n)); S.e(dma_soff(T, n)); S.e(dma_go(T, n)); vm.issue(("dma", T))
    return f
def kv_image():
    S.e(f"s_and_b32 s{sT0}, s{sS}, 6\ns_cmp_lg_u32 s{sT0}, {SK}\ns_cbranch_scc1 L_ffn_kvw\ns_waitcnt vmcnt({len(vm.q)})")
    for j in range(7):
        b = KT + 4*j
        if j: S.e(f"v_add_u32 v{vKA}, 3360, v{vKA}")
        S.e(f"ds_write2_b32 v{vKA}, v{b}, v{b+1} offset0:0 offset1:1\nds_write_b32 v{vKA}, v{b+2} offset:8")
    S.e("L_ffn_kvw:")
items = [dma_item(T, n) for T in range(2) for n in range(6)]
items.insert(9, kv_image)
for f in items[:6]: f()
fin()
for i in range(4): S.e(f"v_mov_b32 v{HV+i}, v{vT+i}")
ln_finish(S, HV, -LOG2E, items[6:])
stamp(S, 2)
S.e(f"s_and_b32 s{sT0}, s{sS}, 6\ns_cmp_lg_u32 s{sT0}, {SK}\ns_cbranch_scc1 L_ffn_main")

S = seg("ffn_kv")
S.e(f"""
v_bfe_u32 v{t0}, v{vLANE}, 2, 2
v_lshrrev_b32 v{t1}, 4, v{vLANE}
v_lshl_add_u32 v{t0}, v{t1}, 3, v{t0}
v_mul_u32_u24 v{t0}, 40, v{t0}
v_add_u32 v{vT+3}, {KVIMG+32}, v{t0}
v_and_b32 v{t1}, 3, v{vLANE}
v_lshl_add_u32 v{t0}, v{t1}, 3, v{t0}
v_add_u32 v{vKA}, {KVIMG}, v{t0}
s_waitcnt lgkmcnt(0)
s_barrier
s_cmp_eq_u32 s{sS}, {SV}
s_cbranch_scc1 L_ffn_v
""")
def kv_chain(S, swapped):
    def rd(j):
        k, ct = j // 2, j % 2
        return trr(frag(j), vKA if ct == 0 else vT+3, 1280*k, 1280*k + 160)
    def unit(j):
        k, ct = j // 2, j % 2
        out = []
        for q in range(2):
            rb = q ^ ct; w = f"a[{frag(j)}:{frag(j)+3}]"; x = f"v[{8*k+4*rb}:{8*k+4*rb+3}]"
            out.append(mf16(ACC + 8*ct + 4*rb, *((x, w) if swapped else (w, x)), k == 0))
        return out
    simple_gemm(S, 36, rd, unit)
kv_chain(S, False)
nrm = vT + 4
S.e(f"""
s_mul_i32 s{sT0}, s{sR}, {KV_IT}
v_and_b32 v{t0}, 15, v{vLANE}
v_lshrrev_b32 v{t1}, 5, v{vLANE}
v_lshlrev_b32 v{t1}, 9, v{t1}
v_lshl_add_u32 v{t1}, v{t0}, 4, v{t1}
v_bfe_u32 v{t2}, v{vLANE}, 4, 1
v_lshl_add_u32 v{t1}, v{t2}, 3, v{t1}
v_add_u32 v{t1}, s{sM0}, v{t1}
s_lshr_b32 s{sT1}, s{sW}, 1
s_lshl_b32 s{sT1}, s{sT1}, 8
s_and_b32 s{sT2}, s{sW}, 1
s_lshl_b32 s{sT2}, s{sT2}, 2
s_add_u32 s{sT1}, s{sT1}, s{sT2}
v_lshl_add_u32 v{t0}, v{t0}, 3, s{sT1}
v_cmp_gt_u32 vcc, 16, v{vLANE}
""")
for rb in range(2):
    for i in (0, 1, 2, 3, 8, 9): S.e(f"v_mul_f32 v{ACC+4*rb+i}, {f2u(-LN2)}, v{ACC+4*rb+i}")
for rb in range(2):
    a = ACC + 4*rb; p = ACC + 16 + 4*rb
    S.e(f"v_cvt_pk_bf16_f32 v{p}, v{a}, v{a+1}\nv_cvt_pk_bf16_f32 v{p+1}, v{a+2}, v{a+3}\nv_cvt_pk_bf16_f32 v{p+2}, v{a+8}, v{a+9}")
    S.e(f"buffer_store_dwordx2 v[{p}:{p+1}], v{t1}, {srd(sWs)}, s{sT0} offen offset:{512+256*rb} sc1")
S.e("s_mov_b64 exec, 0xffff")
for rb in range(2): S.e(f"buffer_store_dword v{ACC+18+4*rb}, v{t0}, {srd(sWs)}, s{sT0} offen offset:{128*rb} sc1")
S.e("s_mov_b64 exec, -1")
for rb in range(2):
    a = ACC + 4*rb; n = nrm + rb
    S.e(f"v_mul_f32 v{n}, v{a+8}, v{a+8}\nv_fmac_f32 v{n}, v{a+9}, v{a+9}\nv_cndmask_b32 v{n}, 0, v{n}, vcc")
    for i in range(4): S.e(f"v_fmac_f32 v{n}, v{a+i}, v{a+i}")
for op in ("v_permlane16_swap_b32", "v_permlane32_swap_b32"):
    for rb in range(2): S.e(f"v_mov_b32 v{nrm+2+rb}, v{nrm+rb}")
    for rb in range(2): S.e(f"{op} v{nrm+rb}, v{nrm+2+rb}")
    for rb in range(2): S.e(f"v_add_f32 v{nrm+rb}, v{nrm+rb}, v{nrm+2+rb}")
S.e(f"v_max_f32 v{nrm}, v{nrm}, v{nrm+1}")
wave_max(S, nrm)
S.e(f"""v_readlane_b32 s{sT1}, v{nrm}, 63
s_lshl_b32 s{sT0}, s{sR}, 2
s_add_u32 s{sT0}, s{sT0}, s{sW}
s_lshl_b32 s{sT0}, s{sT0}, 2
s_add_u32 s{sT0}, s{sT0}, {KN_OFF}
v_mov_b32 v{nrm}, s{sT1}
v_mov_b32 v{nrm+1}, 0
s_mov_b64 exec, 1
buffer_store_dword v{nrm}, v{nrm+1}, {srd(sWs)}, s{sT0} offen sc1
s_mov_b64 exec, -1
s_branch L_ffn_kvdone
""")
S = seg("ffn_v")
S.e("L_ffn_v:")
kv_chain(S, True)
S.e(f"""
s_mul_i32 s{sT0}, s{sR}, {KV_IT}
s_mul_i32 s{sT1}, s{sW}, {VT}
s_add_u32 s{sT0}, s{sT0}, s{sT1}
s_add_u32 s{sT0}, s{sT0}, {512+4096}
v_and_b32 v{t0}, 15, v{vLANE}
v_lshrrev_b32 v{t1}, 5, v{vLANE}
v_mul_u32_u24 v{t1}, 336, v{t1}
v_lshl_add_u32 v{t1}, v{t0}, 4, v{t1}
v_bfe_u32 v{t2}, v{vLANE}, 4, 1
v_lshl_add_u32 v{t1}, v{t2}, 3, v{t1}
v_cmp_eq_u32 vcc, 2, v{t0}
v_mov_b32 v{t2}, s{sONES}
v_cndmask_b32 v{t2}, 0, v{t2}, vcc
v_cmp_gt_u32 vcc, 2, v{t0}
""")
for i in range(16): S.e(f"v_mul_f32 v{ACC+i}, {f2u(-LN2)}, v{ACC+i}")
for i in range(8): S.e(f"v_cvt_pk_bf16_f32 v{ACC+16+i}, v{ACC+2*i}, v{ACC+2*i+1}")
for i in range(4, 8): S.e(f"v_cndmask_b32 v{ACC+16+i}, v{t2}, v{ACC+16+i}, vcc")
for rb in range(2): S.e(f"buffer_store_dwordx2 v[{ACC+16+2*rb}:{ACC+17+2*rb}], v{t1}, {srd(sWs)}, s{sT0} offen offset:{672*rb} sc1")
S.e("s_mov_b32 exec_lo, 0x1f001f\ns_mov_b32 exec_hi, 0x1f001f")
for rb in range(2): S.e(f"buffer_store_dwordx2 v[{ACC+20+2*rb}:{ACC+21+2*rb}], v{t1}, {srd(sWs)}, s{sT0} offen offset:{672*rb+256} sc1")
S.e("s_mov_b64 exec, -1")
S = seg("ffn_kvdone")
S.e("L_ffn_kvdone:")

S = seg("ffn_main")
S.e("L_ffn_main:")
stamp(S, 3)
NU = 18*72
lg = Q("lgkmcnt", 15)
def rd_ins(j):
    P = j // 72; T = j // 24; ks = (j % 24) >> 2; ct = j & 3
    slot = T % 6
    base = (vRA if P < 9 else vRB) + 2*(slot // 2) + (ct & 1)
    off = (slot % 2)*SLOT + ks*4096 + (ct >> 1)*512
    return trr(frag(j), base, off, off + (256 if P < 9 else 2048))
class Op:
    def __init__(self, cost, text, kind="v", tag=None, early=0, hd=None, label=None):
        self.cost, self.text, self.kind, self.tag, self.early, self.hd = cost, text, kind, tag, early, hd
def silu_ops(P):
    acc = ACC + 32*(P % 2); ops = []
    for g in range(16):
        ct, rb, d = g >> 2, (g >> 1) & 1, g & 1
        e = 8*ct + 4*rb + 2*d; ta = vT + 2*(g % 3); tb = ta + 1
        hi = 8*(2*P + (ct >> 1)) + 4*rb + 2*(ct & 1) + d
        kind, reg = hdst(hi)
        dst = reg if kind == 'v' else vT + 6 + (g % 3)
        ops += [Op(8, f"v_exp_f32 v{ta}, v{acc+e}"), Op(8, f"v_exp_f32 v{tb}, v{acc+e+1}"),
                Op(4, f"v_fma_f32 v{ta}, v{ta}, s{sK}, s{sK}"), Op(4, f"v_fma_f32 v{tb}, v{tb}, s{sK}, s{sK}"),
                Op(8, f"v_rcp_f32 v{ta}, v{ta}"), Op(8, f"v_rcp_f32 v{tb}, v{tb}"),
                Op(4, f"v_mul_f32 v{ta}, v{acc+e}, v{ta}"), Op(4, f"v_mul_f32 v{tb}, v{acc+e+1}, v{tb}"),
                Op(4, f"v_cvt_pk_bf16_f32 v{dst}, v{ta}, v{tb}", hd=hi if kind == 'v' else None)]
        if kind == 'a': ops.append(Op(4, f"v_accvgpr_write_b32 a{reg}, v{dst}", hd=hi))
    return ops
def store_ops(q):
    P = 9 + q; acc = ACC + 32*(P % 2); ops = []
    for ct in range(4):
        t = vT + 4*(ct % 3)
        for d in range(4): ops.append(Op(4, f"v_cvt_pk_bf16_f32 v{t+d}, v{acc+8*ct+2*d}, v{acc+8*ct+2*d+1}"))
        ops.append(Op(24, f"buffer_store_dwordx4 v[{t}:{t+3}], v{vPS}, {srd(sWs)}, s{sST+q} offen offset:{1024*ct} sc1", "big", ("st", q)))
    return ops
stubs = []
def poll_op(early): return [Op(8, f"buffer_load_dwordx2 v[{vFL}:{vFL+1}], v{vFR}, {srd(sWs)}, 0 offen sc1", "big", ("fl",), early)]
def check_ops(qp, PT, early, mid=()):
    ops = [Op(0, f"s_sub_u32 s{sT0}, s{sS}, {qp+1}", "s", early=early), Op(0, f"s_and_b32 s{sT0}, s{sT0}, 7", "s"),
           Op(0, f"s_lshl_b32 s{sT1}, s{sT0}, 3", "s"), Op(0, f"s_mul_i32 s{sT0}, s{sT0}, 147456", "s"), Op(0, f"s_add_u32 s{sT0}, s{sT0}, s{sPL}", "s"),
           Op(0, None, "vmwait", lambda t: t == ("fl",), early + 10), *mid,
           Op(4, f"v_readfirstlane_b32 s{sF}, v{vFL}"), Op(4, f"v_readfirstlane_b32 s{sF+1}, v{vFL+1}"),
           Op(16, f"s_lshr_b64 s[{sF}:{sF+1}], s[{sF}:{sF+1}], s{sT1}\ns_and_b32 s{sF}, s{sF}, 0xff\ns_cbranch_scc0 L_chk{qp}\nL_chk{qp}_ok:", "blk")]
    stubs.append(qp)
    for ct in range(4):
        ops.append(Op(8, f"buffer_load_dwordx4 v[{PT+4*ct}:{PT+4*ct+3}], v{vPS}, {srd(sWs)}, s{sT0} offen offset:{1024*ct} sc1", "big", ("pl", qp)))
    return ops
def add_ops(qp, PT, early):
    ops = [Op(0, None, "vmwait", lambda t: t == ("pl", qp), early)]
    for d in range(16):
        ta = vT + 2*(d % 2); e = RR + 2*d
        ops += [Op(4, f"v_lshlrev_b32 v{ta}, 16, v{PT+d}"), Op(4, f"v_and_b32 v{ta+1}, s{sHI}, v{PT+d}"),
                Op(4, f"v_add_f32 v{e}, v{e}, v{ta}"), Op(4, f"v_add_f32 v{e+1}, v{e+1}, v{ta+1}")]
    return ops
def pos_ops(q):
    ops = []
    PT = lambda qp: PT1 if qp & 1 else PT0
    if q == 1:
        for i, r in enumerate((vD3, vD4, vFR, None, vOA, vLA, vLA8)):
            if r: ops.append(Op(4, f"v_accvgpr_read_b32 v{r}, a{aST+i}"))
    ops += store_ops(q - 1)
    if q >= 3: ops += poll_op(0)
    fill = []
    if q == 2:
        for d in range(16):
            ta = vT + (d % 2)
            fill += [Op(4, f"v_accvgpr_read_b32 v{ta}, a{aXR+d}"), Op(4, f"v_lshlrev_b32 v{RR+2*d}, 16, v{ta}"), Op(4, f"v_and_b32 v{RR+2*d+1}, s{sHI}, v{ta}")]
    if q >= 4: fill = add_ops(q - 4, PT(q - 4), 0)
    if q <= 7: flag = [Op(0, f"s_add_u32 s{sT2}, s{sFLB}, s{sCOL+q-1}", "s"), Op(8, line_store(vFV, vLA, sT2), "big", ("flag",))]
    else: flag = [Op(8, line_store(vFV, vLA8, sFLB), "big", ("flag",))]
    ops += fill[:37]
    if q >= 3: ops += check_ops(q - 3, PT(q - 3), 84, flag)
    else: ops += [Op(0, None, "vmwait", lambda t: t == ("st", q - 1), 100)] + flag
    if q == 8: ops += fill[37:53] + poll_op(0) + fill[53:]
    else: ops += fill[37:]
    return ops
def hs_sites(P):
    if 1 <= P <= 8: S.e(f"s_cmp_eq_u32 s{sHSK}, {P-1}\ns_cbranch_scc1 L_hsl{P}\nL_hsl{P}_ok:")
    if 3 <= P <= 10: S.e(f"s_cmp_eq_u32 s{sHSK}, {P-3}\ns_cbranch_scc1 L_hsc{P}\nL_hsc{P}_ok:")
hdone = set()
def put(o):
    if o.kind == "vmwait":
        x = vm.wait(o.tag)
        if x: S.e(x)
        return
    S.e(o.text)
    if o.kind == "big": vm.issue(o.tag)
    if o.hd is not None: hdone.add(o.hd)
S.e(vm.wait(lambda t: t == ("dma", 0))); S.e("s_barrier")
rq = [(j, h) for j in range(NU) for h in range(2)]
rp = 0
for _ in range(2*DR):
    j, h = rq[rp]; S.e(rd_ins(j)[h]); lg.issue(j); rp += 1
S.e(lg.wait(lambda t: t <= 0))
dq = [(T, n) for T in (2, 3, 4) for n in range(6)]
owed = 0
est = 0; est_p = []
m0_set = None
for P in range(18):
    phaseA = 1 <= P <= 9
    ops = [] if P == 0 else (silu_ops(P-1) if phaseA else pos_ops(P - 9))
    ntot = len(ops); oi = 0
    G0, G1 = 3, (143 if P < 9 else 132)
    acc = ACC + 32*(P % 2)
    e0 = est
    if P in (1, 5, 9, 11, 12, 15): stamp(S, 8 + (1, 5, 9, 11, 12, 15).index(P))
    for u in range(72):
        i = 72*P + u; k, ct = u >> 2, u & 3
        for h in range(2):
            G = 2*u + h
            rb = h ^ (ct & 1); a = acc + 8*ct + 4*rb
            if P < 9: b = f"v[{8*k+4*rb}:{8*k+4*rb+3}]"
            else:
                b = hreg(k, rb)
                assert all(8*k + 4*rb + d in hdone for d in range(4)), (P, u)
            S.e(mf16(a, f"a[{frag(i)}:{frag(i)+3}]", b, k == 0))
            cost = 8
            if G == 1: hs_sites(P)
            dma_now = None
            slot_free = True
            if h == 1:
                if i + 1 < NU:
                    assert rp >= 2*(i + 2), (P, u, rp)
                    x = lg.wait(lambda t: t <= i + 1)
                    if x: S.e(x); slot_free = False
            elif dq and m0_set == dq[0] and (u % 4 == 2 or (P == 0 and u % 2 == 0)):
                dma_now = dq.pop(0); S.e(dma_soff(*dma_now)); slot_free = False
            elif dq and (u % 4 == 1 or (P == 0 and u % 2 == 1)):
                S.e(dma_m0(*dq[0])); m0_set = dq[0]; slot_free = False
            if slot_free and oi < ntot and ops[oi].kind in ("s", "vmwait") and G >= ops[oi].early:
                put(ops[oi]); oi += 1
            if rp < len(rq) and rq[rp][0] <= i + DR: owed = sum(1 for z in rq[rp:rp+6] if 2*z[0] + z[1] <= 2*(i + DR) + h)
            else: owed = 0
            big = dma_now is not None
            if not big and not phaseA and oi < ntot and ops[oi].kind in ("big", "blk") and G >= max(G0, ops[oi].early) and owed <= 1:
                big = True
            if big and owed <= 1:
                nr = 0
            else:
                nr = min(owed, 2)
            for _ in range(nr):
                j, hh = rq[rp]
                if hh == 0 and j % 24 == 0:
                    T = j // 24
                    S.e(vm.wait(lambda t: t == ("dma", T))); S.e("s_barrier"); cost += 8
                    if T == 1:
                        S.e(f"buffer_atomic_add v{vFV}, v{vHS}, {srd(sWs)}, 0 offen sc1\nbuffer_store_byte v{vFV}, v{vFA}, {srd(sDbg)}, 0 offen sc1")
                        vm.issue(("flag",)); vm.issue(("flag",)); cost += 24
                        stamp(S, 14)
                    if T == 2: stamp(S, 15)
                    if T + 4 <= 57: dq += [(T + 4, n) for n in range(6)]
                S.e(rd_ins(j)[hh]); lg.issue(j); rp += 1; cost += 4
            if dma_now is not None:
                S.e(dma_go(*dma_now)); vm.issue(("dma", dma_now[0])); cost += 8
            elif big:
                cost += ops[oi].cost; put(ops[oi]); oi += 1
            if G >= G0:
                if phaseA:
                    tgt = -(-ntot*(G - G0 + 1) // (G1 - G0 + 1))
                    while oi < ntot and oi < tgt and (cost < 16 or (dma_now is None and cost + ops[oi].cost <= 24) or oi < tgt - 1):
                        cost += ops[oi].cost; put(ops[oi]); oi += 1
                else:
                    while oi < ntot and G >= ops[oi].early and ((ops[oi].kind in ("v", "s", "vmwait") and cost + 4 <= 16) or G == 143):
                        cost += max(4, ops[oi].cost); put(ops[oi]); oi += 1
            est += max(16, cost)
    assert oi == ntot, (P, oi, ntot)
    est_p.append(est - e0)
assert not dq
print("ffn stream estimate:", est, est_p, file=sys.stderr)

S = seg("ffn_tail")
stamp(S, 4)
acc = ACC + 32
for o in check_ops(6, PT0, 0): put(o)
def dot_add(R, P, n):
    for d in range(n):
        S.e(f"v_dot2_f32_bf16 v{R+2*d}, v{P+d}, s{sSEL0}, v{R+2*d}\nv_dot2_f32_bf16 v{R+2*d+1}, v{P+d}, s{sSEL1}, v{R+2*d+1}")
S.e(vm.wait(lambda t: t == ("pl", 5)))
dot_add(RR, PT1, 16)
for e in range(0, 32, 2): S.e(f"v_pk_add_f32 v[{acc+e}:{acc+e+1}], v[{acc+e}:{acc+e+1}], v[{RR+e}:{RR+e+1}]")
S.e(vm.wait(lambda t: t == ("pl", 6)))
dot_add(acc, PT0, 16)
S.e(f"s_cmp_ge_u32 s{sS}, 2\ns_cbranch_scc1 L_ffn_nox2")
S.e("s_barrier")
for T in (58, 59):
    for n in range(6):
        S.e(dma_m0(T, n)); S.e(dma_soff(T, n)); S.e(dma_go(T, n))
poll_line(S, "pp", vFR, 32, vT)
S.e(f"""s_mul_i32 s{sT0}, s{sR}, {8*147456}
s_lshl_b32 s{sT1}, s{sS}, 11
s_add_u32 s{sT0}, s{sT0}, s{sT1}
s_add_u32 s{sT0}, s{sT0}, {P_OFF + 8*16384}""")
q = Q("vmcnt", 63)
A3 = ACC
for sp in range(8):
    for k in range(2):
        r = 4*(2*sp + k)
        S.e(f"buffer_load_dwordx4 v[{r}:{r+3}], v{vPS}, {srd(sWs)}, s{sT0} offen offset:{1024*k} sc1"); q.issue(sp)
    if sp < 7: S.e(f"s_add_u32 s{sT0}, s{sT0}, 147456")
S.e(f"""s_lshl_b32 s{sT1}, s{sS}, 9""")
for i in range(4): S.e(f"v_add_u32 v{vT+4+i}, s{sT1}, v{vRB+2+i}")
for d in range(8):
    S.e(f"v_accvgpr_read_b32 v{XR+d}, a{aX8+d}")
for d in range(8):
    S.e(f"v_lshlrev_b32 v{A3+2*d}, 16, v{XR+d}\nv_and_b32 v{A3+2*d+1}, s{sHI}, v{XR+d}")
for sp in range(8):
    x = q.wait(lambda t: t <= sp)
    if x: S.e(x)
    for d in range(8):
        S.e(f"v_dot2_f32_bf16 v{A3+2*d}, v{8*sp+d}, s{sSEL0}, v{A3+2*d}\nv_dot2_f32_bf16 v{A3+2*d+1}, v{8*sp+d}, s{sSEL1}, v{A3+2*d+1}")
S.e("L_ffn_nox2:")
stamp(S, 5)
S.e("s_waitcnt vmcnt(0)\ns_barrier")
poll_line(S, "po", vFR, 64, vT)
stamp(S, 6)
S.e(f"""s_lshl_b32 s{sT0}, s{sR}, 2
s_add_u32 s{sT0}, s{sT0}, s{sW}
s_mul_i32 s{sT0}, s{sT0}, {36*1024}
s_add_u32 s{sT0}, s{sT0}, {O_OFF}
v_lshlrev_b32 v{vT+2}, 4, v{vLANE}
""")
oq = Q("vmcnt", 63)
def o_load(S, oq, k):
    S.e(f"buffer_load_dwordx4 a[{4*k}:{4*k+3}], v{vT+2}, {srd(sWs)}, s{sT0} offen offset:{1024*(k%4)} sc1"); oq.issue(k // 2)
    if k % 4 == 3 and k < 35: S.e(f"s_add_u32 s{sT0}, s{sT0}, 4096")
NPRE = 12
for k in range(NPRE): o_load(S, oq, k)
S.e(f"s_cmp_lt_u32 s{sS}, 2\ns_cbranch_scc1 L_ffn_o3")

def oproj(S, nct, oq0):
    oq = Q("vmcnt", 63); oq.q = list(oq0.q)
    nxt = [NPRE]
    def rd(j):
        k, ct = j // nct, j % nct
        if ct < 4:
            slot = k // 6; base = vRB + 2*(slot // 2) + (ct & 1); off = (slot % 2)*SLOT + (k % 6)*4096 + (ct >> 1)*512
        else:
            slot = 3 + k // 6; base = vT + 4 + 2*(slot // 2 - 1) + (ct & 1); off = (slot % 2)*SLOT + (k % 6)*4096
        return trr(frag(j), base, off, off + 2048)
    def areg(ct, rb): return (acc + 8*ct if ct < 4 else A3 + 8*(ct - 4)) + 4*rb
    def unit(j):
        k, ct = j // nct, j % nct
        return [mf16(areg(ct, h ^ (ct & 1)), f"a[{frag(j)}:{frag(j)+3}]", f"a[{8*k+4*(h ^ (ct & 1))}:{8*k+4*(h ^ (ct & 1))+3}]", False) for h in range(2)]
    def pre(j):
        k, ct = j // nct, j % nct
        if ct in (1, 2) and nxt[0] < 36: o_load(S, oq, nxt[0]); nxt[0] += 1
        if ct == 0:
            x = oq.wait(lambda t: t <= k)
            if x: S.e(x)
    simple_gemm(S, 18*nct, rd, unit, pre)
    S.e(f"s_add_u32 s{sT2}, s{sT3}, {16*1152}")
    if nct == 6: S.e(f"s_lshl_b32 s{sT0}, s{sS}, 6\ns_add_u32 s{sT0}, s{sT0}, 1024\ns_add_u32 s{sT1}, s{sT0}, {16*1152}")
    for c in range(nct // 2):
        for rb in range(2):
            p = 8*c + 4*rb
            for z in range(2):
                a = areg(2*c + z, rb)
                S.e(f"v_cvt_pk_bf16_f32 v{p+2*z}, v{a}, v{a+1}\nv_cvt_pk_bf16_f32 v{p+2*z+1}, v{a+2}, v{a+3}")
        for rb in range(2):
            p = 8*c + 4*rb
            S.e(f"v_permlane16_swap_b32 v{p}, v{p+2}\nv_permlane16_swap_b32 v{p+1}, v{p+3}")
        for rb in range(2):
            p = 8*c + 4*rb
            so = (sT2 if rb else sT3) if c < 2 else (sT1 if rb else sT0)
            S.e(f"buffer_store_dwordx4 v[{p}:{p+3}], v{vOA}, {srd(sOut)}, s{so} offen offset:{64*c if c < 2 else 0}")
S = seg("ffn_o2")
oproj(S, 4, oq)
S.e("s_branch L_ffn_end")
S = seg("ffn_o3")
S.e("L_ffn_o3:")
oproj(S, 6, oq)
S = seg("ffn_end")
S.e("L_ffn_end:")
if STAMP: S.e("s_waitcnt vmcnt(0)")
stamp(S, 7)
stamp_out(S)
S.e("s_endpgm")
S = seg("ffn_stubs")
for qp in stubs:
    S.e(f"L_chk{qp}:")
    spin_head(S, f"chk{qp}")
    S.e(f"""buffer_load_dwordx2 v[{vFL}:{vFL+1}], v{vFR}, {srd(sWs)}, 0 offen sc1
    s_waitcnt vmcnt(0)
    v_readfirstlane_b32 s{sF}, v{vFL}
    v_readfirstlane_b32 s{sF+1}, v{vFL+1}
    s_lshr_b64 s[{sF}:{sF+1}], s[{sF}:{sF+1}], s{sT1}
    s_and_b32 s{sF}, s{sF}, 0xff
    s_cbranch_scc1 L_chk{qp}_ok""")
    spin_tail(S, f"chk{qp}")
    S.e(f"s_branch L_chk{qp}_ok")
for P in range(1, 9):
    S.e(f"L_hsl{P}:\nbuffer_load_ubyte a247, off, {srd(sDbg)}, s{sHSA} sc1\ns_branch L_hsl{P}_ok")
S.e("L_hs_sub:")
spin_head(S, "hs")
S.e(f"""v_accvgpr_read_b32 v{vFA}, a247
v_readfirstlane_b32 s{sT0}, v{vFA}
s_cmp_eq_u32 s{sT0}, 1
s_cbranch_scc1 L_hs_ret
buffer_load_ubyte a247, off, {srd(sDbg)}, s{sHSA} sc1
s_waitcnt vmcnt(0)""")
spin_tail(S, "hs")
S.e(f"L_hs_ret:")
for P in range(3, 10): S.e(f"s_cmp_eq_u32 s{sHSK}, {P-3}\ns_cbranch_scc1 L_hsc{P}_ok")
S.e("s_branch L_hsc10_ok")
for P in range(3, 11): S.e(f"L_hsc{P}:")
S.e("s_branch L_hs_sub")

QSH = 110592; QST = 152
SS, Q2V, CC, OO = 0, 64, 96, 184
K1B, VB, K2B = 16, 24, 40
vQA = 248
sPF = sKV
sW1 = sOut
S = seg("att_pro")
S.e("L_att:")
vm = Q("vmcnt", 63); vm.q = list(vm_entry)
S.e(f"s_lshl_b32 s{sHSA}, s{sR}, 7\ns_add_u32 s{sHSA}, s{sHSA}, {KC_OFF}\ns_cmp_lg_u32 s{sW}, 0\ns_cbranch_scc1 L_nsnap\nbuffer_load_dword a204, off, {srd(sWs)}, s{sHSA} sc1\nL_nsnap:")
S.e(f"s_mul_i32 s{sT0}, s{sS}, 144\ns_and_b32 s{sT2}, s{sT0}, 63\ns_and_b32 s{sT0}, s{sT0}, 0xffc0")
mk_srd(S, sWa, 6, 576*1152, add=sT0, shrink=True)
S.e(f"s_mul_i32 s{sT0}, s{sS}, 1152")
mk_srd(S, sPF, 16, 576*9216, add=sT0, shrink=True)
AT = TX + 8
t0, t1, t2 = AT+4, AT+5, AT+6
vDQ, vDQ2, vPFR, vPF = 168, 169, 170, 171
LPW = 144 // NW
t3 = AT + 7
S.e(f"""v_lshrrev_b32 v{t0}, 2, v{vLANE}
v_lshl_add_u32 v{t0}, s{sW}, 4, v{t0}
v_mul_u32_u24 v{t0}, 1152, v{t0}
v_lshrrev_b32 v{t1}, 5, v{vLANE}
v_lshlrev_b32 v{t2}, 1, v{t1}
v_xor_b32 v{t2}, v{t2}, v{vLANE}
v_and_b32 v{t2}, 3, v{t2}
v_lshl_add_u32 v{vDQ}, v{t2}, 4, v{t0}
v_mul_u32_u24 v{t0}, 3072, v{t1}
v_bfe_u32 v{t1}, v{vLANE}, 2, 2
v_lshl_add_u32 v{t0}, v{t1}, 6, v{t0}
v_bfe_u32 v{t1}, v{vLANE}, 4, 1
v_lshl_add_u32 v{t0}, v{t1}, 9, v{t0}
v_lshlrev_b32 v{t1}, 5, v{t1}
s_mul_i32 s{sT1}, s{sW}, 3072""")
for ct in range(5):
    S.e(f"""v_and_b32 v{t2}, {3 if ct < 4 else 1}, v{vLANE}
    v_lshl_add_u32 v{t2}, v{t2}, 3, s{sT2}
    v_add_u32 v{t2}, {32*ct}, v{t2}
    v_lshrrev_b32 v{t3}, 6, v{t2}
    v_lshl_add_u32 v{t3}, v{t3}, 10, v{t0}
    v_and_b32 v{t2}, 63, v{t2}
    v_xor_b32 v{t2}, v{t2}, v{t1}
    v_add_u32 v{vQA+ct}, v{t2}, v{t3}""")
S.e(f"""s_mov_b32 s{sPL}, s{sT1}
s_and_b32 s{sT0}, s{sR}, {NW-1}
s_lshl_b32 s{sT0}, s{sT0}, 2
s_add_u32 s{sT0}, s{sT0}, s{sW}
s_mul_i32 s{sT0}, s{sT0}, {LPW}
v_min_u32 v{254}, {min(LPW, 64) - 1}, v{vLANE}
v_add_u32 v254, s{sT0}, v254
""")
for i in range(64): S.e(f"v_mov_b32 v{OO+i}, 0")
fin = x_read_stats(S, vm, AT)
stamp(S, 1)
def wq_item(n):
    def f():
        m, t = n // 3, n % 3
        S.e(f"s_add_u32 m0, s{sPL}, {m*12288 + t*1024}\ns_mov_b32 s{sOFF}, {64*m*1152 + 64*t}\nbuffer_load_dwordx4 v{vDQ}, {srd(sWa)}, s{sOFF} offen lds"); vm.issue(("wq",))
    return f
items = [wq_item(n) for n in range(27)]
for f in items[:9]: f()
fin()
ln_finish(S, AT, LOG2E / math.sqrt(18.0), items[9:], centre_only=True)
stamp(S, 2)
S.e(vm.wait(lambda t: t == ("wq",))); S.e("s_barrier")
QA = 144
def rdq(j):
    k, ct = j // 5, j % 5
    r = trr(frag(j), vQA + ct, (k % 9)*6144, (k % 9)*6144 + 256)
    if k == 8: r[1] += f"\nv_add_u32 v{vQA+ct}, {9*6144}, v{vQA+ct}"
    return r
def unitq(j):
    k, ct = j // 5, j % 5
    return [mf16(QA + 8*ct + 4*(h ^ (j & 1)), f"a[{frag(j)}:{frag(j)+3}]", f"v[{8*k+4*(h ^ (j & 1))}:{8*k+4*(h ^ (j & 1))+3}]", k == 0) for h in range(2)]
def preq(j):
    if not NOPF and j in (10, 30, 50, 70): S.e(f"buffer_load_dword a200, v254, {srd(sPF)}, 0 offen offset:{128*((j + 10)//20)}")
S.e(f"v_accvgpr_write_b32 a203, v254\nv_mul_u32_u24 v254, 9216, v254")
simple_gemm(S, 90, rdq, unitq, preq)
stamp(S, 3)
cq = LOG2E / math.sqrt(18.0)
U = 96
vQW, vQR, vQR2, vKP = U, U+1, U+2, U+3
S.e(f"""s_mul_i32 s{sT0}, s{sW}, {32*QST}
s_add_u32 s{sT0}, s{sT0}, {QSH}
v_and_b32 v{U+4}, 15, v{vLANE}
v_and_b32 v{vKP}, 7, v{vLANE}
v_lshlrev_b32 v{vKP}, 2, v{vKP}
v_accvgpr_read_b32 v{U+17}, a204
v_add_u32 v{U+17}, 32, v{U+17}
v_mul_u32_u24 v{U+4}, {QST}, v{U+4}
v_lshrrev_b32 v{U+5}, 4, v{vLANE}
v_lshl_add_u32 v{U+4}, v{U+5}, 3, v{U+4}
v_add_u32 v{vQW}, s{sT0}, v{U+4}
v_and_b32 v{U+4}, 31, v{vLANE}
v_mul_u32_u24 v{U+4}, {QST}, v{U+4}
v_add_u32 v{vQR2}, s{sT0}, v{U+4}
v_lshrrev_b32 v{U+5}, 5, v{vLANE}
v_lshl_add_u32 v{vQR}, v{U+5}, 4, v{vQR2}
v_accvgpr_read_b32 v{U+6}, a201
v_accvgpr_read_b32 v{U+7}, a201
v_accvgpr_read_b32 v{U+8}, a202
v_accvgpr_read_b32 v{U+9}, a202
""")
for e in range(0, 40, 2):
    z = U + 6 + 2*((e >> 2) & 1)
    S.e(f"v_pk_mul_f32 v[{QA+e}:{QA+e+1}], v[{QA+e}:{QA+e+1}], v[{z}:{z+1}]")
for ct in range(5):
    for rb in range(2):
        a = QA + 8*ct + 4*rb; p = 4*ct + 2*rb
        S.e(f"v_cvt_pk_bf16_f32 v{p}, v{a}, v{a+1}\nv_cvt_pk_bf16_f32 v{p+1}, v{a+2}, v{a+3}")
    if ct == 4: S.e("s_mov_b32 exec_hi, 0")
    for rb in range(2):
        p = 4*ct + 2*rb
        S.e(f"ds_write_b64 v{vQW}, v[{p}:{p+1}] offset:{16*QST*rb + 32*ct}")
S.e("s_mov_b64 exec, -1\ns_waitcnt lgkmcnt(0)")
Q1 = 32
for j in range(4):
    S.e(f"ds_read2_b32 v[{Q1+4*j}:{Q1+4*j+1}], v{vQR} offset0:{9*j} offset1:{9*j+1}")
    S.e(f"ds_read2_b32 v[{Q1+4*j+2}:{Q1+4*j+3}], v{vQR} offset0:{9*j+2} offset1:{9*j+3}")
    S.e(f"ds_read_b32 v{Q1+16+j}, v{vQR2} offset:{36*j+32}")
vK1, vV, vK2, vIDX, vKN, vKD, vOF, vHA = 160, 161, 162, 163, 164, 165, 166, 167
S.e(f"""v_lshlrev_b32 v{vK1}, 4, v{vLANE}
v_lshlrev_b32 v{vK2}, 3, v{vLANE}
v_and_b32 v{U+4}, 31, v{vLANE}
v_subrev_u32 v{U+5}, 20, v{U+4}
v_cmp_gt_u32 vcc, 8, v{U+5}
v_min_u32 v{U+4}, 19, v{U+4}
v_addc_co_u32 v{U+4}, vcc, 0, v{U+4}, vcc
v_lshrrev_b32 v{U+5}, 5, v{vLANE}
v_mul_u32_u24 v{U+5}, 336, v{U+5}
v_lshl_add_u32 v{vV}, v{U+4}, 4, v{U+5}
v_mov_b32 v{vIDX}, 0xdddddddd
v_lshlrev_b32 v{vKN}, 2, v{vLANE}
s_lshl_b32 s{sM0}, s{sW}, 12
v_cmp_gt_u32 vcc, 32, v{vLANE}
""")
for j in range(4):
    b = Q2V + 8*j
    for z in (1, 2, 5, 6): S.e(f"v_mov_b32 v{b+z}, 0")
S.e("s_waitcnt lgkmcnt(0)")
for j in range(4):
    b = Q2V + 8*j
    S.e(f"""v_cndmask_b32 v{b}, 0, v{Q1+16+j}, vcc
    v_cndmask_b32 v{b+3}, 0, v{Q1+16+j}, vcc
    v_cndmask_b32 v{b+4}, v{Q1+16+j}, v{b+1}, vcc
    v_cndmask_b32 v{b+7}, v{Q1+16+j}, v{b+1}, vcc""")
for i in range(16): S.e(f"v_accvgpr_write_b32 a{i}, v{Q1+i}")
stamp(S, 4)
S.e(f"s_cmp_lg_u32 s{sW}, 0\ns_cbranch_scc1 L_pk_done")
spin_head(S, "pk")
S.e(f"""buffer_load_dword v{U+16}, off, {srd(sWs)}, s{sHSA} sc1
s_waitcnt vmcnt(0)
v_cmp_eq_u32 vcc, v{U+16}, v{U+17}
s_cbranch_vccnz L_pk_done
s_and_b32 s{sT0}, s{sSPIN}, 15
s_cmp_lg_u32 s{sT0}, 15
s_cbranch_scc1 L_pk_next
buffer_load_dword v{U+16}, v{vKP}, {srd(sDbg)}, 0 offen sc1
s_waitcnt vmcnt(0)
v_cmp_ne_u32 vcc, 0x1010101, v{U+16}
s_cbranch_vccz L_pk_done
L_pk_next:""")
spin_tail(S, "pk", 2)
S.e("L_pk_done:")
S.e("s_barrier")
stamp(S, 5)
vm = Q("vmcnt", 63)
S.e(f"s_mov_b32 s{sOFF}, {KN_OFF}\nbuffer_load_dword v{U+4}, v{vKN}, {srd(sWs)}, s{sOFF} offen sc1"); vm.issue("kn")
def kv_blk(m): return f"s_add_u32 m0, s{sM0}, {m*16384}\ns_add_u32 s{sOFF}, s{sM0}, {m*16384}"
def kv_dma(z): return f"buffer_load_dwordx4 v{vK1}, {srd(sWs)}, s{sOFF} offen offset:{1024*z} sc1 lds"
for m in range(2):
    S.e(kv_blk(m))
    for z in range(4): S.e(kv_dma(z)); vm.issue(m)
qn = U + 8
for j in range(4): S.e(f"v_dot2_f32_bf16 v{qn+j}, v{Q2V+8*j}, v{Q2V+8*j}, 0")
for d in range(4):
    for j in range(4): S.e(f"v_dot2_f32_bf16 v{qn+j}, v{Q1+4*j+d}, v{Q1+4*j+d}, v{qn+j}")
for j in range(4): S.e(f"v_mov_b32 v{qn+4+j}, v{qn+j}")
for j in range(4): S.e(f"v_permlane32_swap_b32 v{qn+j}, v{qn+4+j}")
for j in range(4): S.e(f"v_add_f32 v{qn+j}, v{qn+j}, v{qn+4+j}")
S.e(f"v_max_f32 v{qn}, v{qn}, v{qn+1}\nv_max3_f32 v{qn}, v{qn}, v{qn+2}, v{qn+3}")
S.e(f"s_mov_b32 s{sF}, 0x8765\ns_mov_b32 s{sF+1}, 0x80000000")
for q in range(9):
    it = 4 + q
    S.e(f"s_lshr_b32 s{sT0}, s{sCOL+q}, 7\ns_lshl_b32 s{sT0}, s{sT0}, {4*(it % 8)}\ns_or_b32 s{sF + it//8}, s{sF + it//8}, s{sT0}")
S.e(f"s_mul_i32 s{sT0}, s{sS}, 0x1100000\ns_or_b32 s{sF+1}, s{sF+1}, s{sT0}")
S.e(f"v_accvgpr_read_b32 v{vPFR}, a203\nv_mov_b32 v{vPF}, v254")
line_addr(S, vOF, 8, 2, U+5)
S.e(vm.wait(lambda t: t == "kn"))
wave_max(S, U+4)
S.e(f"""v_mov_b32 v{U+5}, {f2u(-1.0 if FORCE_FB else 4096.0)}
v_readlane_b32 s{sT0}, v{U+4}, 63
v_mul_f32 v{qn}, s{sT0}, v{qn}
v_cmp_nle_f32 vcc, v{qn}, v{U+5}
""")
S.e(vm.wait(lambda t: t == 0))
S.e(f"""s_barrier
s_cbranch_vccnz L_att_fb
ds_read_b64 a[{K2B}:{K2B+1}], v{vK2}
ds_read_b128 a[{K1B}:{K1B+3}], v{vK1} offset:512
s_mov_b32 s{sCNT}, 1
v_mov_b32 v{vKD}, v{vK1}
s_waitcnt lgkmcnt(0)
""")
stamp(S, 6)

def att_step(S, it, u, mode):
    j, t = u & 3, u >> 2
    s = SS + 16*j; e = SS + 16*((j-1) & 3); p = SS + 16*((j-2) & 3); o = OO + 16*((j-2) & 3)
    vb = VB + 8*(((u-2) >> 2) & 1)
    kb = K1B + 4*(t & 1); k2 = K2B + 2*(it & 1)
    base = it*KV_IT
    first = mode == 'peel' and it == 0
    def ex(a):
        if first and u == 0: return
        for i in range(4): S.e(f"v_exp_f32 v{e+a+i}, v{e+a+i}")
    pv = not (first and u < 2)
    pf = mode != 'fb' and not NOPF
    dmas = first
    c = f"v[{CC+16*j}:{CC+16*j+15}]" if mode == 'fb' else "0"
    S.e(f"v_mfma_f32_32x32x16_bf16 v[{s}:{s+15}], a[{kb}:{kb+3}], a[{4*j}:{4*j+3}], {c}")
    if j == 2: S.e("s_waitcnt lgkmcnt(0)")
    if mode != 'peel':
        if it == 1 and u == 1: S.e(f"s_add_u32 s{sCNT}, s{sCNT}, 1")
        if it == 1 and u == 15: S.e(f"s_cmp_lt_u32 s{sCNT}, 8")
    if pf and u == 4: S.e(f"s_and_b32 s{sT0}, s{sF}, 15")
    if pf and u == 5: S.e(f"s_lshl_b32 s{sT0}, s{sT0}, 7")
    if pf and u == 9: S.e(f"s_lshr_b64 s[{sF}:{sF+1}], s[{sF}:{sF+1}], 4")
    ex(0)
    q2 = Q2V + 8*j + 2*t
    S.e(f"v_mfma_f32_32x32x8_bf16 v[{s}:{s+15}], a[{k2}:{k2+1}], v[{q2}:{q2+1}], v[{s}:{s+15}]")
    ex(4)
    if pv: S.e(f"v_smfmac_f32_32x32x32_bf16 v[{o}:{o+15}], a[{vb}:{vb+3}], v[{p}:{p+7}], v{vIDX}")
    if dmas and u % 2 == 0: S.e(kv_blk(2 + u // 2))
    if mode == 'peel' and it == 1 and u == 0:
        S.e(vm.wait(lambda t: t == 1)); S.e("s_barrier")
    if pf and mode == 'loop' and it == 0:
        if u == 0: S.e(f"s_cmp_ge_u32 s{sCNT}, 2\ns_cselect_b32 s{sPF}, s{sWb}, s{sPF}")
        if u == 1: S.e(f"s_cselect_b32 s{sPF+1}, s{sWb+1}, s{sPF+1}\ns_cselect_b32 s{sPF+2}, s{sWb+2}, s{sPF+2}")
        if u == 2: S.e(f"s_cmp_ge_u32 s{sCNT}, 7")
        if u == 3: S.e(f"s_cselect_b32 s{sPF}, s{sWo}, s{sPF}\ns_cselect_b32 s{sPF+1}, s{sWo+1}, s{sPF+1}")
    vn = VB + 8*(t & 1)
    if j == 0: S.e(f"ds_read_b128 a[{vn}:{vn+3}], v{vV} offset:{base + 4608 + VT*t}")
    if j == 1: S.e(f"ds_read_b128 a[{vn+4}:{vn+7}], v{vV} offset:{base + 4608 + VT*t + 672}")
    if j == 2:
        kn = K1B + 4*((t+1) & 1)
        off = base + 512 + 1024*(t+1) if t < 3 else base + KV_IT + 512
        S.e(f"ds_read_b128 a[{kn}:{kn+3}], v{vK1} offset:{off}")
        if t == 2:
            k2n = K2B + 2*((it+1) & 1)
            S.e(f"ds_read_b64 a[{k2n}:{k2n+1}], v{vK2} offset:{base + KV_IT}")
    if j == 3 and it == 1 and t == 3:
        S.e(f"v_add_u32 v{vK1}, {2*KV_IT}, v{vK1}\nv_add_u32 v{vV}, {2*KV_IT}, v{vV}\nv_add_u32 v{vK2}, {2*KV_IT}, v{vK2}")
    if dmas: S.e(kv_dma((2*u) % 4).replace(f"v{vK1},", f"v{vKD},")); vm.issue(2 + u // 2)
    if pf and u == 7: S.e(f"buffer_load_dword a200, v{vPF}, {srd(sPF)}, s{sT0} offen"); vm.issue("pf")
    ex(8)
    if pv: S.e(f"v_smfmac_f32_32x32x32_bf16 v[{o}:{o+15}], a[{vb+4}:{vb+7}], v[{p+8}:{p+15}], v{vIDX}")
    if j == 3: S.e("s_waitcnt lgkmcnt(0)")
    if pf and mode == 'loop' and it == 0 and u == 1: S.e(f"s_cselect_b32 s{sT1}, 1152, s{sT2}")
    if pf and mode == 'loop' and it == 0 and u == 3: S.e(f"v_mul_u32_u24 v{vPF}, s{sT1}, v{vPFR}")
    if dmas: S.e(kv_dma((2*u + 1) % 4).replace(f"v{vK1},", f"v{vKD},")); vm.issue(2 + u // 2)
    ex(12)
S = seg("att_peel")
S.e(f"s_mov_b32 s{sT2}, 9216")
for it in range(2):
    for u in range(16): att_step(S, it, u, 'peel')
S.e(vm.wait(lambda t: t == 9)); S.e("s_barrier")
S = seg("att_loop")
S.e(".p2align 6\nL_att_loop:")
for it in range(2):
    for u in range(16): att_step(S, it, u, 'loop')
S.e("s_cbranch_scc1 L_att_loop")
S = seg("att_tail")
S.e("L_att_tail:")
stamp(S, 7)
vb = VB + 8
p = SS + 32; o = OO + 32; e = SS + 48
S.e(f"v_smfmac_f32_32x32x32_bf16 v[{o}:{o+15}], a[{vb}:{vb+3}], v[{p}:{p+7}], v{vIDX}")
for i in range(8): S.e(f"v_exp_f32 v{e+i}, v{e+i}")
S.e(f"v_smfmac_f32_32x32x32_bf16 v[{o}:{o+15}], a[{vb+4}:{vb+7}], v[{p+8}:{p+15}], v{vIDX}")
for i in range(8, 16): S.e(f"v_exp_f32 v{e+i}, v{e+i}")
S.e(f"""s_lshl_b32 s{sT0}, s{sR}, 2
s_add_u32 s{sT0}, s{sT0}, s{sW}
s_mul_i32 s{sT0}, s{sT0}, {36*1024}
s_add_u32 s{sT0}, s{sT0}, {O_OFF}""")
p = SS + 48; o = OO + 48
S.e(f"v_smfmac_f32_32x32x32_bf16 v[{o}:{o+15}], a[{vb}:{vb+3}], v[{p}:{p+7}], v{vIDX}")
S.e(f"""s_lshl_b32 s{sT1}, s{sS}, 12
s_add_u32 s{sT1}, s{sT1}, s{sT0}
v_bfe_u32 v{U+8}, v{vLANE}, 4, 1
v_lshlrev_b32 v{U+8}, 10, v{U+8}
v_lshrrev_b32 v{U+9}, 5, v{vLANE}
v_lshl_add_u32 v{U+8}, v{U+9}, 8, v{U+8}""")
S.e(f"v_smfmac_f32_32x32x32_bf16 v[{o}:{o+15}], a[{vb+4}:{vb+7}], v[{p+8}:{p+15}], v{vIDX}")
S.e(f"""s_lshr_b32 s{sT2}, s{sS}, 2
s_lshl_b32 s{sT2}, s{sT2}, 11
v_and_b32 v{U+9}, 15, v{vLANE}
v_lshl_add_u32 v{vK1}, v{U+9}, 4, v{U+8}
s_add_u32 s{sT0}, s{sT0}, s{sT2}
s_and_b32 s{sT2}, s{sS}, 3
s_lshl_b32 s{sT2}, s{sT2}, 8
s_add_u32 s{sT0}, s{sT0}, s{sT2}
s_add_u32 s{sT2}, s{sT0}, 32768
v_mov_b32 v{U+10}, 1
""")
for j in range(4):
    o = OO + 16*j; l = U + 2*j; P = 64 + 4*j
    S.e(f"v_mov_b32 v{l}, v{o+10}\nv_mov_b32 v{l+1}, v{o+10}\nv_permlane32_swap_b32 v{l}, v{l+1}\nv_rcp_f32 v{l}, v{l}\ns_nop 0\nv_mov_b32 v{l+1}, v{l}")
    for i in range(0, 10, 2): S.e(f"v_pk_mul_f32 v[{o+i}:{o+i+1}], v[{o+i}:{o+i+1}], v[{l}:{l+1}]")
    for d in range(4): S.e(f"v_cvt_pk_bf16_f32 v{P+d}, v{o+2*d}, v{o+2*d+1}")
    S.e(f"v_cvt_pk_bf16_f32 v{80+j}, v{o+8}, v{o+9}")
    S.e(f"buffer_store_dwordx4 v[{P}:{P+3}], v{vK1}, {srd(sWs)}, s{sT1} offen offset:{2048*(j >> 1) + 512*(j & 1)} sc1")
S.e(f"""s_mov_b32 exec_hi, 0
buffer_store_dwordx4 v[80:83], v{vK1}, {srd(sWs)}, s{sT2} offen sc1
s_mov_b64 exec, -1
s_waitcnt vmcnt(0)""")
S.e(line_store(U+10, vOF, sFLB))
stamp(S, 8)
stamp_out(S)
S.e("s_endpgm")

S = seg("att_fb")
S.e("L_att_fb:")
for m in range(2, 10):
    S.e(kv_blk(m))
    for z in range(4): S.e(kv_dma(z))
S.e(f"s_waitcnt vmcnt(0)\ns_barrier\ns_barrier\ns_mov_b32 s{sCNT}, 0")
mx = 172
for j in range(4): S.e(f"v_mov_b32 v{mx+j}, 0xff800000")
S.e(f"v_mov_b32 v{mx+4}, v{vK1}\nv_mov_b32 v{mx+5}, v{vK2}")
S = seg("att_fb_max")
S.e("L_att_fb_max:")
S.e(f"ds_read_b64 a[{K2B}:{K2B+1}], v{mx+5}")
for t in range(4): S.e(f"ds_read_b128 a[{44+4*t}:{47+4*t}], v{mx+4} offset:{512+1024*t}")
S.e(f"v_add_u32 v{mx+4}, {KV_IT}, v{mx+4}\nv_add_u32 v{mx+5}, {KV_IT}, v{mx+5}\ns_waitcnt lgkmcnt(0)")
for t in range(4):
    for j in range(4):
        s = SS + 16*j; q2 = Q2V + 8*j + 2*t
        S.e(f"v_mfma_f32_32x32x16_bf16 v[{s}:{s+15}], a[{44+4*t}:{47+4*t}], a[{4*j}:{4*j+3}], 0")
        S.e(f"v_mfma_f32_32x32x8_bf16 v[{s}:{s+15}], a[{K2B}:{K2B+1}], v[{q2}:{q2+1}], v[{s}:{s+15}]")
    for j in range(4):
        s = SS + 16*j
        for i in range(0, 16, 2): S.e(f"v_max3_f32 v{mx+j}, v{s+i}, v{s+i+1}, v{mx+j}")
S.e(f"s_add_u32 s{sCNT}, s{sCNT}, 1\ns_cmp_lt_u32 s{sCNT}, 16\ns_cbranch_scc1 L_att_fb_max")
S = seg("att_fb_init")
for j in range(4):
    S.e(f"v_mov_b32 v{mx+4}, v{mx+j}\nv_permlane32_swap_b32 v{mx+j}, v{mx+4}\nv_max_f32 v{mx+j}, v{mx+j}, v{mx+4}")
    for i in range(16): S.e(f"v_sub_f32 v{CC+16*j+i}, 0, v{mx+j}")
for i in range(32, 64): S.e(f"v_mov_b32 v{i}, 0")
for i in range(8): S.e(f"v_accvgpr_write_b32 a{VB+8+i}, 0")
S.e(f"""ds_read_b64 a[{K2B}:{K2B+1}], v{vK2}
ds_read_b128 a[{K1B}:{K1B+3}], v{vK1} offset:512
s_mov_b32 s{sCNT}, 0
s_waitcnt lgkmcnt(0)""")
S = seg("att_fb_loop")
S.e("L_att_fb_loop:")
for it in range(2):
    for u in range(16): att_step(S, it, u, 'fb')
S.e("s_cbranch_scc1 L_att_fb_loop\ns_branch L_att_tail")
S = seg("end")
S.e("L_exit:\ns_endpgm\n.p2align 6\nL_codeend:")

by = {s.name: s for s in segs}
prev = []
for s in segs:
    s.autopad(prev[-40:])
    prev = s.ins
    if s.padded: print(f"seg {s.name}: {s.padded} pads", file=sys.stderr)
paths = [["entry", "att_pro", "att_peel", "att_loop", "att_loop", "att_tail"],
         ["ffn_pro", "ffn_main"], ["ffn_kv", "ffn_kvdone"], ["ffn_tail", "ffn_o3"],
         ["att_fb_max", "att_fb_max"], ["att_fb_loop", "att_fb_loop", "att_tail"]]
for p in paths:
    seq = sum((by[n].ins for n in p), [])
    for i, miss, who in violations(seq):
        print("VIOLATION path", p, seq[i].text, "<-", who.text, miss, file=sys.stderr); sys.exit(1)

hdr = open("cdna_kernels/" + NAME + ".s.ref").read().split("; Override launch")[0]
out = hdr + "; Generated by a hand-written generator (dev/gen.py): one persistent launch, 128 FFN + 128 attention workgroups.\n"
out += "; @launch grid=(256,1,1) block=(256,1,1) lds=163840\n"
out += f""".amdgcn_target "amdgcn-amd-amdhsa--gfx950"
.text
.globl {NAME}_kernel
.p2align 8
.type {NAME}_kernel,@function
{NAME}_kernel:
"""
out += "".join(s.text() for s in segs)
out += f""".section .rodata,"a"
.p2align 6
.amdhsa_kernel {NAME}_kernel
  .amdhsa_next_free_vgpr 512
  .amdhsa_next_free_sgpr 102
  .amdhsa_accum_offset 256
  .amdhsa_group_segment_fixed_size 0
  .amdhsa_kernarg_size 88
  .amdhsa_user_sgpr_count 2
  .amdhsa_user_sgpr_kernarg_segment_ptr 1
  .amdhsa_system_sgpr_workgroup_id_x 1
.end_amdhsa_kernel
"""
dst = [a for a in sys.argv[1:] if not a.startswith("--")]
open(dst[0] if dst else "cdna_kernels/" + NAME + ".s", "w").write(out)
```

```python
import sys, math, struct
from asmlib import Seg, Q, I, violations

NAME = "parallel_sum__grouped_kv_mqa__dense_activation_silu__prompt"
STAMP = "--stamp" in sys.argv
FORCE_FB = "--force-fallback" in sys.argv
MAPPING = 2
for a in sys.argv:
    if a.startswith("--map="): MAPPING = int(a[6:])

def f2u(x): return struct.unpack("<I", struct.pack("<f", x))[0]
LOG2E = 1.4426950408889634
LN2 = 0.6931471805599453

NOPF = "--nopf" in sys.argv

VT = 1344
KV_IT = 512 + 4096 + 4*VT
KV_BYTES = 16 * KV_IT
KN_OFF = 0x28000
KC_OFF = 0x2e000
FL_OFF = 0x29000
O_OFF = 0x38000
P_OFF = 0x280000
ST_OFF = 0x2000000
WS_BYTES = 0x4000000
SK, SV = 2, 3
NW = {0: 16, 1: 8, 2: 4, 3: 2}[MAPPING]
NX = 32 // NW

sF = 26
sX, sWa, sWb, sWo, sKV, sOut, sDbg, sWs = 28, 32, 36, 40, 44, 48, 52, 56
sR, sS, sROLE, sW, sM0, sOFF, sXB = 60, 61, 62, 63, 64, 65, 66
sT0, sT1, sT2, sT3 = 67, 68, 69, 72
sEX = 70
sPL = 73
sCNT = 74
sK = 75
sSEL0, sSEL1, sONES = 76, 77, 78
sSPIN = 79
sCOL = 80
sST = 89
sFLB = 3
sHSA, sHSK = 14, 15
sHI = 97
def srd(b): return f"s[{b}:{b+3}]"
vLANE = 255

segs = []
def seg(name):
    s = Seg(name); segs.append(s); return s

def stamp(S, k):
    if STAMP:
        S.e(f"s_memtime s[98:99]\ns_memrealtime s[100:101]\ns_waitcnt lgkmcnt(0)\nv_writelane_b32 v253, s98, {k}\nv_writelane_b32 v253, s100, {16+k}")
def stamp_out(S):
    if STAMP:
        S.e(f"""s_lshl_b32 s{sT0}, s2, 2
        s_add_u32 s{sT0}, s{sT0}, s{sW}
        s_lshl_b32 s{sT0}, s{sT0}, 8
        s_add_u32 s{sT0}, s{sT0}, {ST_OFF}
        v_lshlrev_b32 v0, 2, v{vLANE}
        buffer_store_dword v253, v0, {srd(sWs)}, s{sT0} offen
        s_waitcnt vmcnt(0)""")
        if "--dbgout" in sys.argv:
            wg = 0 if "ffn" in S.name else 8
            sel = (1, 2, 8, 10, 4, 6, 7) if wg == 0 else (1, 3, 5, 6, 7, 8)
            S.e(f"s_lshl_b32 s{sT0}, s2, 2\ns_add_u32 s{sT0}, s{sT0}, s{sW}\ns_cmp_lg_u32 s{sT0}, {4*wg}\ns_cbranch_scc1 L_nd{wg}\nv_readlane_b32 s{sT0}, v253, 16\nv_mov_b32 v0, 0")
            for i, k in enumerate(sel):
                S.e(f"v_readlane_b32 s{sT1}, v253, {16+k}\ns_sub_u32 s{sT1}, s{sT1}, s{sT0}\nv_mov_b32 v1, s{sT1}\nbuffer_store_short v1, v0, {srd(sDbg)}, 0 offen offset:{32 + (0 if wg == 0 else 16) + 2*i}\ns_waitcnt vmcnt(0)")
            S.e(f"L_nd{wg}:")

def mk_srd(S, b, lo, nbytes, add=None, shrink=False):
    if add is None:
        S.e(f"s_mov_b32 s{b}, s{lo}\ns_mov_b32 s{b+1}, s{lo+1}")
    else:
        S.e(f"s_add_u32 s{b}, s{lo}, s{add}\ns_addc_u32 s{b+1}, s{lo+1}, 0")
    S.e(f"s_mov_b32 s{b+2}, {nbytes}\ns_mov_b32 s{b+3}, 0x20000")
    if shrink: S.e(f"s_sub_u32 s{b+2}, s{b+2}, s{add}")

TX = 144
vXD0, vXD1, vXR0, vXR1 = TX, TX+1, TX+2, TX+3
vTID = TX + 4
vSTA = TX + 6
S = seg("entry")
S.e(f"""
s_cmp_ge_u32 s2, 256
s_cbranch_scc1 L_exit
s_load_dwordx16 s[4:19], s[0:1], 0
s_load_dwordx4 s[20:23], s[0:1], 64
s_load_dwordx2 s[24:25], s[0:1], 80
""")
if STAMP: S.e("s_memrealtime s[100:101]\ns_memtime s[98:99]")
S.e(f"""
v_lshrrev_b32 v1, 6, v0
v_and_b32 v{vLANE}, 63, v0
v_readfirstlane_b32 s{sW}, v1
s_and_b32 s{sT0}, s2, 7
s_lshr_b32 s{sT1}, s2, 3
s_and_b32 s{sROLE}, s{sT1}, 1
s_lshr_b32 s{sT1}, s{sT1}, 1
""")
lg = int(math.log2(NW))
S.e(f"""s_and_b32 s{sR}, s{sT0}, {16//NW - 1}
s_lshl_b32 s{sR}, s{sR}, {lg}
s_and_b32 s{sT2}, s{sT1}, {NW - 1}
s_add_u32 s{sR}, s{sR}, s{sT2}
s_and_b32 s{sS}, s{sT0}, {7 & ~(16//NW - 1)}
s_lshr_b32 s{sT2}, s{sT1}, {lg}
s_add_u32 s{sS}, s{sS}, s{sT2}
s_lshr_b32 s{sCNT}, s2, 3
s_lshl_b32 s{sM0}, s{sW}, 10
s_lshl_b32 s{sT0}, s{sR}, 7
s_lshl_b32 s{sT1}, s{sW}, 5
s_add_u32 s{sT0}, s{sT0}, s{sT1}
s_mul_i32 s{sXB}, s{sT0}, 1152
s_mul_i32 s{sT3}, s{sW}, 36864
v_mov_b32 v{vTID}, v0
v_lshrrev_b32 v1, 3, v{vLANE}
v_mul_u32_u24 v1, 1152, v1
v_lshrrev_b32 v2, 4, v{vLANE}
v_and_b32 v3, 7, v{vLANE}
v_xor_b32 v3, v3, v2
v_lshl_add_u32 v{vXD0}, v3, 4, v1
v_xor_b32 v{vXD1}, 64, v{vXD0}
s_lshl_b32 s{sT2}, s{sT2}, 1
s_add_u32 s{sT2}, s{sT2}, s{sROLE}
s_mul_i32 s{sT2}, s{sT2}, {147456 // NX}
s_mul_i32 s{sT0}, s{sR}, 147456
s_add_u32 s{sT2}, s{sT2}, s{sT0}
v_lshlrev_b32 v4, 7, v0
v_min_u32 v4, {147456 // NX - 128}, v4
s_waitcnt lgkmcnt(0)
""")
if STAMP: S.e(f"v_mov_b32 v253, 0\nv_writelane_b32 v253, s98, 0\nv_writelane_b32 v253, s100, 16")
mk_srd(S, sX, 4, 2048*1152)
vm = Q("vmcnt", 63)
if not NOPF:
    nl = 1152 // NX
    for i in range(-(-nl // 256)):
        if i: S.e(f"s_add_u32 s{sT2}, s{sT2}, 32768")
        if nl - 256*i < 256:
            S.e(f"s_cmp_ge_u32 s{sM0}, {((nl - 256*i + 63)//64)*1024}\ns_cbranch_scc1 L_nxpf")
            if i: S.e(f"v_min_u32 v4, {(nl - 256*i)*128 - 128}, v4")
        S.e(f"buffer_load_dword v5, v4, {srd(sX)}, s{sT2} offen")
    S.e("L_nxpf:")
sXM = sSPIN
def x_dma(S, vm, c):
    for o in range(4):
        S.e(f"""s_add_u32 m0, s{sXM}, {c*4096 + o*1024}
        s_add_u32 s{sOFF}, s{sXB}, {8*o*1152 + 128*c}
        buffer_load_dwordx4 v{vXD0 + (o & 1)}, {srd(sX)}, s{sOFF} offen lds""")
        vm.issue(("x", c))
S.e(f"s_mov_b32 s{sXM}, s{sT3}")
XPRE = 3
for c in range(XPRE): x_dma(S, vm, c)
mk_srd(S, sWs, 24, WS_BYTES)
S.e(f"""s_lshl_b32 s{sFLB}, s{sR}, 10
s_add_u32 s{sFLB}, s{sFLB}, {FL_OFF}
s_xor_b32 s{sT0}, s{sS}, {SK}
s_or_b32 s{sT0}, s{sT0}, s{sROLE}
s_or_b32 s{sT0}, s{sT0}, s{sW}
s_cbranch_scc1 L_nzero
v_lshlrev_b32 v1, 4, v{vLANE}
v_mov_b32 v8, 0
v_mov_b32 v9, 0
v_mov_b32 v10, 0
v_mov_b32 v11, 0
buffer_store_dwordx4 v[8:11], v1, {srd(sWs)}, s{sFLB} offen sc1
L_nzero:
""")
S.e(f"""
s_getpc_b64 s[{sEX}:{sEX+1}]
L_pc:
s_mul_i32 s{sT0}, s{sCNT}, (L_codeend-L_pc+4095)/4096*128
v_lshl_add_u32 v1, v{vLANE}, 7, s{sT0}
v_min_u32 v1, L_codeend-L_pc-16, v1
v_mov_b32 v3, s{sEX+1}
v_add_co_u32 v2, vcc, s{sEX}, v1
v_addc_co_u32 v3, vcc, 0, v3, vcc
s_cmp_lg_u32 s{sW}, 3
s_cbranch_scc1 L_ncpf
global_load_dword v{TX+5}, v[2:3], off
L_ncpf:
""")
mk_srd(S, sOut, 20, 2048*1152)
mk_srd(S, sDbg, 22, 256)
mk_srd(S, sWo, 12, 576*1152)
S.e(f"s_mul_i32 s{sT0}, s{sS}, {576*1152}")
mk_srd(S, sWb, 18, 576*1152, add=sT0)
S.e(f"""
s_mov_b32 s{sSEL0}, 0x3f80
s_mov_b32 s{sSEL1}, 0x3f800000
s_mov_b32 s{sONES}, 0x3f803f80
s_mov_b32 s{sHI}, 0xffff0000
s_mov_b32 s{sK}, {f2u(-LOG2E)}
v_and_b32 v1, 15, v{vLANE}
v_lshrrev_b32 v2, 3, v1
v_lshlrev_b32 v2, 10, v2
v_and_b32 v3, 7, v1
v_lshl_add_u32 v2, v3, 7, v2
v_lshrrev_b32 v1, 1, v1
v_lshrrev_b32 v3, 4, v{vLANE}
v_xor_b32 v1, v1, v3
v_lshl_add_u32 v2, v1, 4, v2
v_add_u32 v{vXR0}, s{sT3}, v2
v_xor_b32 v{vXR1}, 64, v{vXR0}
s_lshl_b32 s{sT3}, s{sS}, 7
""")
for q in range(7):
    S.e(f"s_add_u32 s{sT0}, s{sS}, {q+1}\ns_and_b32 s{sT0}, s{sT0}, 7\ns_lshl_b32 s{sCOL+q}, s{sT0}, 7")
S.e(f"s_mov_b32 s{sCOL+7}, 1024\ns_mov_b32 s{sCOL+8}, s{sT3}")
S.e(f"s_cmp_eq_u32 s{sROLE}, 1\ns_cbranch_scc1 L_att")
vm_entry = list(vm.q)

def x_read_stats(S, vm, T, hook=None):
    lq = Q("lgkmcnt", 15)
    def stats(c):
        S.e(lq.wait(lambda t: t <= c))
        for kk in range(2):
            for d in range(4):
                for rb in range(2):
                    r = 8*(2*c + kk) + 4*rb + d
                    first = (c == 0 and kk == 0 and d == 0)
                    S.e(f"v_dot2_f32_bf16 v{T+rb}, v{r}, s{sONES}, {'0' if first else 'v%d' % (T+rb)}")
                    S.e(f"v_dot2_f32_bf16 v{T+2+rb}, v{r}, v{r}, {'0' if first else 'v%d' % (T+2+rb)}")
    for c in range(9):
        S.e(vm.wait(lambda t: t[0] == "x" and t[1] <= c))
        if c + XPRE < 9: x_dma(S, vm, c + XPRE)
        for kk in range(2):
            for rb in range(2):
                r = 8*(2*c + kk) + 4*rb
                S.e(f"ds_read_b128 v[{r}:{r+3}], v{vXR0+kk} offset:{c*4096 + rb*2048}"); lq.issue(c)
        if c: stats(c - 1)
    if hook: hook()
    S.e("s_waitcnt lgkmcnt(0)\ns_barrier")
    lq.q = [8]
    return lambda: stats(8)

def ln_finish(S, T, alpha, items=(), centre_only=False):
    U = T + 12
    for op in ("v_permlane16_swap_b32", "v_permlane32_swap_b32"):
        for i in range(4): S.e(f"v_mov_b32 v{U+i}, v{T+i}")
        for i in range(4): S.e(f"{op} v{T+i}, v{U+i}")
        for i in range(4): S.e(f"v_add_f32 v{T+i}, v{T+i}, v{U+i}")
    for i in range(4): S.e(f"v_mul_f32 v{T+i}, {f2u(1.0/576)}, v{T+i}")
    for rb in range(2): S.e(f"v_fma_f32 v{T+2+rb}, -v{T+rb}, v{T+rb}, v{T+2+rb}")
    for rb in range(2): S.e(f"v_max_f32 v{T+2+rb}, 0, v{T+2+rb}")
    for rb in range(2): S.e(f"v_add_f32 v{T+2+rb}, {f2u(1e-5)}, v{T+2+rb}")
    for rb in range(2): S.e(f"v_rsq_f32 v{T+2+rb}, v{T+2+rb}")
    for rb in range(2): S.e(f"v_mul_f32 v{T+4+4*rb}, {f2u(alpha)}, v{T+2+rb}")
    for rb in range(2 * (not centre_only)): S.e(f"v_mul_f32_e64 v{T+6+4*rb}, -v{T+rb}, v{T+4+4*rb}")
    for rb in range(2 * (not centre_only)): S.e(f"v_mov_b32 v{T+5+4*rb}, v{T+4+4*rb}\nv_mov_b32 v{T+7+4*rb}, v{T+6+4*rb}")
    if centre_only:
        for rb in range(2): S.e(f"v_sub_f32 v{T+rb}, 0, v{T+rb}\nv_accvgpr_write_b32 a{201+rb}, v{T+4+4*rb}")
        assert U % 8 == 4
    t0, t1 = U, U + 2
    items = list(items); ni = len(items); done = 0
    for r in range(0, 144, 2):
        while done < ni and done*72 <= (r // 2)*ni*1.15: items[done](); done += 1
        a = T + 4 + 4*((r >> 2) & 1); b = a + 2
        if centre_only:
            m = T + ((r >> 2) & 1)
            S.e(f"""v_dot2_f32_bf16 v{t0}, v{r}, s{sSEL0}, v{m}
            v_dot2_f32_bf16 v{t0+1}, v{r}, s{sSEL1}, v{m}
            v_dot2_f32_bf16 v{t1}, v{r+1}, s{sSEL0}, v{m}
            v_dot2_f32_bf16 v{t1+1}, v{r+1}, s{sSEL1}, v{m}""")
            if r: S.e(f"v_cvt_pk_bf16_f32 v{r-2}, v{t0^4}, v{(t0^4)+1}\nv_cvt_pk_bf16_f32 v{r-1}, v{t1^4}, v{(t1^4)+1}")
            t0 ^= 4; t1 ^= 4
            if r == 142: S.e(f"v_cvt_pk_bf16_f32 v{r}, v{t0^4}, v{(t0^4)+1}\nv_cvt_pk_bf16_f32 v{r+1}, v{t1^4}, v{(t1^4)+1}")
            continue
        S.e(f"""v_lshlrev_b32 v{t0}, 16, v{r}
        v_and_b32 v{t0+1}, s{sHI}, v{r}
        v_lshlrev_b32 v{t1}, 16, v{r+1}
        v_and_b32 v{t1+1}, s{sHI}, v{r+1}
        v_pk_fma_f32 v[{t0}:{t0+1}], v[{t0}:{t0+1}], v[{a}:{a+1}], v[{b}:{b+1}]
        v_pk_fma_f32 v[{t1}:{t1+1}], v[{t1}:{t1+1}], v[{a}:{a+1}], v[{b}:{b+1}]
        v_cvt_pk_bf16_f32 v{r}, v{t0}, v{t0+1}
        v_cvt_pk_bf16_f32 v{r+1}, v{t1}, v{t1+1}""")

def tr_lane(S, dst, mode, t1):
    S.e(f"""
    v_bfe_u32 v{t1}, v{vLANE}, 2, 2
    v_lshlrev_b32 v{dst}, 6, v{t1}
    v_and_b32 v{t1}, 3, v{vLANE}
    v_lshl_add_u32 v{dst}, v{t1}, 3, v{dst}
    v_bfe_u32 v{t1}, v{vLANE}, 4, 1
    """)
    if mode == 'A':
        S.e(f"v_lshl_add_u32 v{dst}, v{t1}, 5, v{dst}\nv_lshrrev_b32 v{t1}, 4, v{vLANE}\nv_lshl_add_u32 v{dst}, v{t1}, 10, v{dst}")
    else:
        S.e(f"v_mul_u32_u24 v{t1}, 288, v{t1}\nv_add_u32 v{dst}, v{dst}, v{t1}\nv_lshrrev_b32 v{t1}, 5, v{vLANE}\nv_lshl_add_u32 v{dst}, v{t1}, 10, v{dst}")

def dma_lane(S, dst, stride, row, mode, t1):
    S.e(f"v_mul_u32_u24 v{dst}, {stride}, v{row}\nv_lshrrev_b32 v{t1}, 5, v{vLANE}\nv_lshl_add_u32 v{dst}, v{t1}, 6, v{dst}\nv_and_b32 v{t1}, 3, v{vLANE}\nv_lshl_add_u32 v{dst}, v{t1}, 4, v{dst}")
    if mode == 'A':
        S.e(f"s_and_b32 s{sT0}, s{sW}, 1\ns_lshl_b32 s{sT0}, s{sT0}, 5\nv_xor_b32 v{dst}, s{sT0}, v{dst}")
    else:
        S.e(f"v_and_b32 v{t1}, 16, v{vLANE}\nv_lshlrev_b32 v{t1}, 1, v{t1}\nv_xor_b32 v{dst}, v{dst}, v{t1}")

def spin_head(S, name):
    S.e(f"s_mov_b32 s{sSPIN}, 0\nL_{name}_spin:")
def spin_tail(S, name, sl=1):
    S.e(f"s_sleep {sl}\ns_add_u32 s{sSPIN}, s{sSPIN}, 1\ns_cmp_lt_u32 s{sSPIN}, 0x80000\ns_cbranch_scc1 L_{name}_spin")
def poll_all(S, name, srdb, vaddr, soff, v0, first_load=True):
    ld = f"buffer_load_dword v{v0}, v{vaddr}, {srd(srdb)}, {soff} offen sc1"
    if not first_load: S.e(f"v_cmp_eq_u32 vcc, 0x1010101, v{v0}\ns_cmp_eq_u64 vcc, -1\ns_cbranch_scc1 L_{name}_done")
    spin_head(S, name)
    S.e(f"{ld}\ns_waitcnt vmcnt(0)\nv_cmp_eq_u32 vcc, 0x1010101, v{v0}\ns_cmp_eq_u64 vcc, -1\ns_cbranch_scc1 L_{name}_done")
    spin_tail(S, name, 4)
    S.e(f"L_{name}_done:")
def poll_line(S, name, vaddr, off, v0):
    spin_head(S, name)
    S.e(f"""buffer_load_dwordx2 v[{v0}:{v0+1}], v{vaddr}, {srd(sWs)}, 0 offen offset:{off} sc1
    s_waitcnt vmcnt(0)
    v_readfirstlane_b32 s{sT0}, v{v0}
    v_readfirstlane_b32 s{sT1}, v{v0+1}
    s_and_b32 s{sT0}, s{sT0}, s{sT1}
    s_cmp_eq_u32 s{sT0}, 0x1010101
    s_cbranch_scc1 L_{name}_done""")
    spin_tail(S, name)
    S.e(f"L_{name}_done:")
def line_addr(S, dst, nl, kind, t1):
    S.e(f"""s_lshl_b32 s{sT0}, s{sW}, 3
    s_add_u32 s{sT0}, s{sT0}, s{sS}
    s_add_u32 s{sT0}, s{sT0}, {32*kind}
    v_lshl_add_u32 v{dst}, v{vLANE}, 7, s{sT0}
    v_mov_b32 v{t1}, {WS_BYTES}
    v_cmp_gt_u32 vcc, {nl}, v{vLANE}
    v_cndmask_b32 v{dst}, v{t1}, v{dst}, vcc""")
def line_store(vval, vaddr, soff): return f"buffer_store_byte v{vval}, v{vaddr}, {srd(sWs)}, s{soff} offen sc1"

def wave_max(S, v):
    for sh in (1, 2, 4, 8):
        S.e(f"v_max_f32_dpp v{v}, v{v}, v{v} row_shr:{sh} row_mask:0xf bank_mask:0xf")
    S.e(f"v_max_f32_dpp v{v}, v{v}, v{v} row_bcast:15 row_mask:0xa bank_mask:0xf")
    S.e(f"v_max_f32_dpp v{v}, v{v}, v{v} row_bcast:31 row_mask:0xc bank_mask:0xf")

def mf16(a, A, B, first):
    return f"v_mfma_f32_16x16x32_bf16 v[{a}:{a+3}], {A}, {B}, {'0' if first else 'v[%d:%d]' % (a, a+3)}"

FR = 144
DR = 4
def simple_gemm(S, nunits, rd, unit, pre_wait=None, post=None):
    lq = Q("lgkmcnt", 15)
    for j in range(DR):
        for x in rd(j): S.e(x); lq.issue(j)
    S.e(lq.wait(lambda t: t <= 0))
    if pre_wait: pre_wait(0)
    for i in range(nunits):
        m = unit(i); r = rd(i + DR) if i + DR < nunits else []
        S.e(m[0])
        if pre_wait and i + 1 < nunits: pre_wait(i + 1)
        if r: S.e(r[0]); lq.issue(i + DR)
        S.e(m[1])
        x = lq.wait(lambda t: t <= i + 1)
        if x: S.e(x)
        if r: S.e(r[1]); lq.issue(i + DR)
def frag(j): return FR + 4*(j % 8)
def trr(f, base, o1, o2, base2=None):
    return [f"ds_read_b64_tr_b16 a[{f}:{f+1}], v{base} offset:{o1}", f"ds_read_b64_tr_b16 a[{f+2}:{f+3}], v{base if base2 is None else base2} offset:{o2}"]

ACC = 144
HV = 208
vT = 224
vRA, vRB = 236, 242
vD1, vD2, vPS, vFA, vFV, vKA = 248, 249, 250, 251, 252, 254
SLOT = 24576
KVIMG = 5 * SLOT
aST = 240
RR, PT0, PT1, XR = 16, 48, 64, 80
vD3, vD4, vFR, vXRA, vOA, vLA, vLA8, vFL = 96, 97, 98, 99, 100, 101, 104, 102
vHS = 190

def hreg(k, rb):
    i = 8*k + 4*rb
    kind, reg = hdst(i)
    return f"{kind}[{reg}:{reg+3}]"
def hdst(i):
    if i < 112: return ('a', i)
    if i < 128: return ('v', HV + i - 112)
    return ('v', i - 128)

S = seg("ffn_pro")
vm = Q("vmcnt", 63); vm.q = list(vm_entry)
S.e(f"s_mul_i32 s{sT0}, s{sS}, 1152")
mk_srd(S, sWa, 16, 576*9216, add=sT0, shrink=True)
S.e(f"""s_cmp_eq_u32 s{sS}, {SK}
s_cselect_b32 s{sKV}, s8, s10
s_cselect_b32 s{sKV+1}, s9, s11
s_mov_b32 s{sKV+2}, {576*36}
s_mov_b32 s{sKV+3}, 0x20000
""")
t0, t1, t2 = vT, vT+1, vT+2
S.e(f"v_bfe_u32 v{t0}, v{vLANE}, 2, 3\nv_lshl_add_u32 v{t1}, s{sW}, 3, v{t0}")
dma_lane(S, vD1, 9216, t1, 'A', t2)
dma_lane(S, vD2, 1152, t1, 'B', t2)
tr_lane(S, vRA, 'A', t2); tr_lane(S, vRB, 'B', t2)
for b in (vRA, vRB):
    S.e(f"v_xor_b32 v{b+1}, 32, v{b}")
    for sg in (1, 2): S.e(f"v_add_u32 v{b+2*sg}, {2*sg*SLOT}, v{b}\nv_add_u32 v{b+2*sg+1}, {2*sg*SLOT}, v{b+1}")
S.e(f"""s_and_b32 s{sT0}, s{sW}, 1
s_lshr_b32 s{sT1}, s{sW}, 1
s_mul_i32 s{sT2}, s{sT0}, 18
s_lshl_b32 s{sEX}, s{sT1}, 3
s_add_u32 s{sT2}, s{sT2}, s{sEX}
v_add_u32 v{t1}, s{sT2}, v{t0}
""")
dma_lane(S, vT+3, 1152, t1, 'B', t2)
S.e(f"""v_accvgpr_write_b32 a{aST}, v{vT+3}
s_and_b32 s{sT0}, s{sW}, 1
s_mul_i32 s{sT0}, s{sT0}, 144
s_mul_i32 s{sT1}, s{sT1}, 36
s_add_u32 s{sT0}, s{sT0}, s{sT1}
s_add_u32 s{sT0}, s{sT0}, 16
v_lshrrev_b32 v{t1}, 2, v{t0}
v_mul_u32_u24 v{t1}, 72, v{t1}
v_bfe_u32 v{t2}, v{t0}, 1, 1
v_mul_u32_u24 v{t2}, 18, v{t2}
v_add_u32 v{t1}, v{t1}, v{t2}
v_and_b32 v{t2}, 1, v{t0}
v_add3_u32 v{t1}, v{t1}, v{t2}, s{sT0}
""")
dma_lane(S, vT+3, 1152, t1, 'B', t2)
S.e(f"""v_accvgpr_write_b32 a{aST+1}, v{vT+3}
s_lshl_b32 s{sT0}, s{sW}, 3
s_add_u32 s{sT0}, s{sT0}, s{sT3}
s_add_u32 s{sT0}, s{sT0}, s{sFLB}
v_mov_b32 v{t1}, s{sT0}
v_accvgpr_write_b32 a{aST+2}, v{t1}
s_lshl_b32 s{sT0}, s{sR}, 3
v_and_b32 v{t1}, 15, v{vLANE}
v_mul_u32_u24 v{t1}, 1152, v{t1}
v_add_u32 v{t1}, s{sXB}, v{t1}
v_bfe_u32 v{t2}, v{vLANE}, 4, 1
v_lshl_add_u32 v{t1}, v{t2}, 5, v{t1}
v_lshrrev_b32 v{t2}, 5, v{vLANE}
v_lshl_add_u32 v{t1}, v{t2}, 4, v{t1}
v_accvgpr_write_b32 a{aST+4}, v{t1}
s_lshl_b32 s{sT1}, s{sW}, 12
v_lshl_add_u32 v{vPS}, v{vLANE}, 4, s{sT1}
s_add_u32 s{sT0}, s{sT0}, s{sS}
s_mul_i32 s{sT0}, s{sT0}, 147456
s_add_u32 s{sT0}, s{sT0}, {P_OFF}
s_mul_i32 s{sPL}, s{sR}, {8*147456}
s_lshl_b32 s{sT1}, s{sS}, 14
s_add_u32 s{sPL}, s{sPL}, s{sT1}
s_add_u32 s{sPL}, s{sPL}, {P_OFF}
""")
for q in range(8): S.e(f"s_lshl_b32 s{sT1}, s{sCOL+q}, 7\ns_add_u32 s{sST+q}, s{sT1}, s{sT0}")
line_addr(S, vT+3, 1, 0, t1)
S.e(f"v_accvgpr_write_b32 a{aST+5}, v{vT+3}")
line_addr(S, vT+3, 2, 1, t1)
S.e(f"""v_accvgpr_write_b32 a{aST+6}, v{vT+3}
s_lshl_b32 s{sT0}, s{sR}, 1
s_add_u32 s{sT2}, s{sT0}, s{sS}
s_sub_u32 s{sT2}, s{sT2}, {SK}
s_and_b32 s{sT1}, s{sS}, 6
s_xor_b32 s{sT1}, s{sT1}, {SK}
s_or_b32 s{sT1}, s{sT1}, s{sW}
s_cselect_b32 s{sT2}, 1024, s{sT2}
s_cselect_b32 s{sT1}, 0, 16
v_lshl_add_u32 v{vFA}, v{vLANE}, 8, s{sT2}
v_lshlrev_b32 v{vHS}, 7, v{vLANE}
v_add_u32 v{vHS}, {KC_OFF}, v{vHS}
v_mov_b32 v{vHS+1}, {WS_BYTES}
v_cmp_gt_u32 vcc, s{sT1}, v{vLANE}
v_cndmask_b32 v{vHS}, v{vHS+1}, v{vHS}, vcc
s_mov_b32 s{sHSA}, s{sT0}
s_lshl_b32 s{sHSK}, s{sW}, 4
s_add_u32 s{sHSK}, s{sHSK}, s{sS}
v_mov_b32 v{vFV}, 1""")
aXR, aX8 = 224, 216
vXC = vT + 4
S.e(f"""v_lshrrev_b32 v{t1}, 4, v{vLANE}
v_lshrrev_b32 v{t2}, 5, v{vLANE}
v_xor_b32 v{t2}, v{t1}, v{t2}
v_lshlrev_b32 v{t2}, 4, v{t2}
v_xor_b32 v{t2}, v{vXR0}, v{t2}
v_and_b32 v{t1}, 1, v{t1}
v_lshl_add_u32 v{t2}, v{t1}, 3, v{t2}
s_lshl_b32 s{sT0}, s{sS}, 12
s_and_b32 s{sT1}, s{sS}, 1
s_lshl_b32 s{sT1}, s{sT1}, 6
v_xor_b32 v{vXC+4}, s{sT1}, v{t2}
v_xor_b32 v{vXC+5}, 32, v{vXC+4}
v_add_u32 v{vXC}, s{sT0}, v{t2}""")
for ct in range(1, 4): S.e(f"v_xor_b32 v{vXC+ct}, {32*ct}, v{vXC}")
def xres():
    for ct in range(4):
        for rb in range(2): S.e(f"ds_read_b64 a[{aXR+4*ct+2*rb}:{aXR+4*ct+2*rb+1}], v{vXC+ct} offset:{2048*rb}")
    for z in range(2):
        for rb in range(2): S.e(f"ds_read_b64 a[{aX8+4*z+2*rb}:{aX8+4*z+2*rb+1}], v{vXC+4+z} offset:{32768 + 2048*rb}")
fin = x_read_stats(S, vm, vT, xres)
stamp(S, 1)

def dma_src(T, n):
    P, sg = T // 3, T % 3
    if P < 9:  return sWa, vD1, (192*sg + 32*n) * 9216 + P*128, None
    if P < 18: return sWb, vD2, (192*sg + 32*n) * 1152, sCOL + P - 9
    extra = sT3 if P == 18 else None
    col = 0 if P == 18 else 8*128
    if sg == 2 and n >= 4: return sWo, vD4, 288*(n-4)*1152 + col, extra
    return sWo, vD3, 36*(6*sg + n)*1152 + col, extra
def dma_soff(T, n):
    _, _, c, extra = dma_src(T, n)
    return f"s_mov_b32 s{sOFF}, {c}" if extra is None else f"s_add_u32 s{sOFF}, s{extra}, {c}"
def dma_m0(T, n): return f"s_add_u32 m0, s{sM0}, {(T%6)*SLOT + n*4096}"
def dma_go(T, n):
    b, v, _, _ = dma_src(T, n)
    return f"buffer_load_dwordx4 v{v}, {srd(b)}, s{sOFF} offen lds"
KT = ACC + 8
S.e(f"""s_and_b32 s{sT0}, s{sS}, 6
s_cmp_lg_u32 s{sT0}, {SK}
s_cbranch_scc1 L_ffn_nokv1
v_mul_u32_u24 v{vKA}, 12, v{vLANE}
s_mul_i32 s{sT0}, s{sW}, 756""")
for j in range(7):
    S.e(f"buffer_load_dwordx3 v[{KT+4*j}:{KT+4*j+2}], v{vKA}, {srd(sKV)}, s{sT0} offen")
    if j < 6: S.e(f"s_add_u32 s{sT0}, s{sT0}, 3024")
S.e(f"""v_mul_u32_u24 v{KT+3}, 86, v{vLANE}
v_lshrrev_b32 v{KT+3}, 8, v{KT+3}
v_lshl_add_u32 v{vKA}, v{KT+3}, 2, v{vKA}
s_mul_i32 s{sT0}, s{sW}, 840
s_add_u32 s{sT0}, s{sT0}, {KVIMG}
v_add_u32 v{vKA}, s{sT0}, v{vKA}
L_ffn_nokv1:""")
def dma_item(T, n):
    def f(): S.e(dma_m0(T, n)); S.e(dma_soff(T, n)); S.e(dma_go(T, n)); vm.issue(("dma", T))
    return f
def kv_image():
    S.e(f"s_and_b32 s{sT0}, s{sS}, 6\ns_cmp_lg_u32 s{sT0}, {SK}\ns_cbranch_scc1 L_ffn_kvw\ns_waitcnt vmcnt({len(vm.q)})")
    for j in range(7):
        b = KT + 4*j
        if j: S.e(f"v_add_u32 v{vKA}, 3360, v{vKA}")
        S.e(f"ds_write2_b32 v{vKA}, v{b}, v{b+1} offset0:0 offset1:1\nds_write_b32 v{vKA}, v{b+2} offset:8")
    S.e("L_ffn_kvw:")
items = [dma_item(T, n) for T in range(2) for n in range(6)]
items.insert(9, kv_image)
for f in items[:6]: f()
fin()
for i in range(4): S.e(f"v_mov_b32 v{HV+i}, v{vT+i}")
ln_finish(S, HV, -LOG2E, items[6:])
stamp(S, 2)
S.e(f"s_and_b32 s{sT0}, s{sS}, 6\ns_cmp_lg_u32 s{sT0}, {SK}\ns_cbranch_scc1 L_ffn_main")

S = seg("ffn_kv")
S.e(f"""
v_bfe_u32 v{t0}, v{vLANE}, 2, 2
v_lshrrev_b32 v{t1}, 4, v{vLANE}
v_lshl_add_u32 v{t0}, v{t1}, 3, v{t0}
v_mul_u32_u24 v{t0}, 40, v{t0}
v_add_u32 v{vT+3}, {KVIMG+32}, v{t0}
v_and_b32 v{t1}, 3, v{vLANE}
v_lshl_add_u32 v{t0}, v{t1}, 3, v{t0}
v_add_u32 v{vKA}, {KVIMG}, v{t0}
s_waitcnt lgkmcnt(0)
s_barrier
s_cmp_eq_u32 s{sS}, {SV}
s_cbranch_scc1 L_ffn_v
""")
def kv_chain(S, swapped):
    def rd(j):
        k, ct = j // 2, j % 2
        return trr(frag(j), vKA if ct == 0 else vT+3, 1280*k, 1280*k + 160)
    def unit(j):
        k, ct = j // 2, j % 2
        out = []
        for q in range(2):
            rb = q ^ ct; w = f"a[{frag(j)}:{frag(j)+3}]"; x = f"v[{8*k+4*rb}:{8*k+4*rb+3}]"
            out.append(mf16(ACC + 8*ct + 4*rb, *((x, w) if swapped else (w, x)), k == 0))
        return out
    simple_gemm(S, 36, rd, unit)
kv_chain(S, False)
nrm = vT + 4
S.e(f"""
s_mul_i32 s{sT0}, s{sR}, {KV_IT}
v_and_b32 v{t0}, 15, v{vLANE}
v_lshrrev_b32 v{t1}, 5, v{vLANE}
v_lshlrev_b32 v{t1}, 9, v{t1}
v_lshl_add_u32 v{t1}, v{t0}, 4, v{t1}
v_bfe_u32 v{t2}, v{vLANE}, 4, 1
v_lshl_add_u32 v{t1}, v{t2}, 3, v{t1}
v_add_u32 v{t1}, s{sM0}, v{t1}
s_lshr_b32 s{sT1}, s{sW}, 1
s_lshl_b32 s{sT1}, s{sT1}, 8
s_and_b32 s{sT2}, s{sW}, 1
s_lshl_b32 s{sT2}, s{sT2}, 2
s_add_u32 s{sT1}, s{sT1}, s{sT2}
v_lshl_add_u32 v{t0}, v{t0}, 3, s{sT1}
v_cmp_gt_u32 vcc, 16, v{vLANE}
""")
for rb in range(2):
    for i in (0, 1, 2, 3, 8, 9): S.e(f"v_mul_f32 v{ACC+4*rb+i}, {f2u(-LN2)}, v{ACC+4*rb+i}")
for rb in range(2):
    a = ACC + 4*rb; p = ACC + 16 + 4*rb
    S.e(f"v_cvt_pk_bf16_f32 v{p}, v{a}, v{a+1}\nv_cvt_pk_bf16_f32 v{p+1}, v{a+2}, v{a+3}\nv_cvt_pk_bf16_f32 v{p+2}, v{a+8}, v{a+9}")
    S.e(f"buffer_store_dwordx2 v[{p}:{p+1}], v{t1}, {srd(sWs)}, s{sT0} offen offset:{512+256*rb} sc1")
S.e("s_mov_b64 exec, 0xffff")
for rb in range(2): S.e(f"buffer_store_dword v{ACC+18+4*rb}, v{t0}, {srd(sWs)}, s{sT0} offen offset:{128*rb} sc1")
S.e("s_mov_b64 exec, -1")
for rb in range(2):
    a = ACC + 4*rb; n = nrm + rb
    S.e(f"v_mul_f32 v{n}, v{a+8}, v{a+8}\nv_fmac_f32 v{n}, v{a+9}, v{a+9}\nv_cndmask_b32 v{n}, 0, v{n}, vcc")
    for i in range(4): S.e(f"v_fmac_f32 v{n}, v{a+i}, v{a+i}")
for op in ("v_permlane16_swap_b32", "v_permlane32_swap_b32"):
    for rb in range(2): S.e(f"v_mov_b32 v{nrm+2+rb}, v{nrm+rb}")
    for rb in range(2): S.e(f"{op} v{nrm+rb}, v{nrm+2+rb}")
    for rb in range(2): S.e(f"v_add_f32 v{nrm+rb}, v{nrm+rb}, v{nrm+2+rb}")
S.e(f"v_max_f32 v{nrm}, v{nrm}, v{nrm+1}")
wave_max(S, nrm)
S.e(f"""v_readlane_b32 s{sT1}, v{nrm}, 63
s_lshl_b32 s{sT0}, s{sR}, 2
s_add_u32 s{sT0}, s{sT0}, s{sW}
s_lshl_b32 s{sT0}, s{sT0}, 2
s_add_u32 s{sT0}, s{sT0}, {KN_OFF}
v_mov_b32 v{nrm}, s{sT1}
v_mov_b32 v{nrm+1}, 0
s_mov_b64 exec, 1
buffer_store_dword v{nrm}, v{nrm+1}, {srd(sWs)}, s{sT0} offen sc1
s_mov_b64 exec, -1
s_branch L_ffn_kvdone
""")
S = seg("ffn_v")
S.e("L_ffn_v:")
kv_chain(S, True)
S.e(f"""
s_mul_i32 s{sT0}, s{sR}, {KV_IT}
s_mul_i32 s{sT1}, s{sW}, {VT}
s_add_u32 s{sT0}, s{sT0}, s{sT1}
s_add_u32 s{sT0}, s{sT0}, {512+4096}
v_and_b32 v{t0}, 15, v{vLANE}
v_lshrrev_b32 v{t1}, 5, v{vLANE}
v_mul_u32_u24 v{t1}, 336, v{t1}
v_lshl_add_u32 v{t1}, v{t0}, 4, v{t1}
v_bfe_u32 v{t2}, v{vLANE}, 4, 1
v_lshl_add_u32 v{t1}, v{t2}, 3, v{t1}
v_cmp_eq_u32 vcc, 2, v{t0}
v_mov_b32 v{t2}, s{sONES}
v_cndmask_b32 v{t2}, 0, v{t2}, vcc
v_cmp_gt_u32 vcc, 2, v{t0}
""")
for i in range(16): S.e(f"v_mul_f32 v{ACC+i}, {f2u(-LN2)}, v{ACC+i}")
for i in range(8): S.e(f"v_cvt_pk_bf16_f32 v{ACC+16+i}, v{ACC+2*i}, v{ACC+2*i+1}")
for i in range(4, 8): S.e(f"v_cndmask_b32 v{ACC+16+i}, v{t2}, v{ACC+16+i}, vcc")
for rb in range(2): S.e(f"buffer_store_dwordx2 v[{ACC+16+2*rb}:{ACC+17+2*rb}], v{t1}, {srd(sWs)}, s{sT0} offen offset:{672*rb} sc1")
S.e("s_mov_b32 exec_lo, 0x1f001f\ns_mov_b32 exec_hi, 0x1f001f")
for rb in range(2): S.e(f"buffer_store_dwordx2 v[{ACC+20+2*rb}:{ACC+21+2*rb}], v{t1}, {srd(sWs)}, s{sT0} offen offset:{672*rb+256} sc1")
S.e("s_mov_b64 exec, -1")
S = seg("ffn_kvdone")
S.e("L_ffn_kvdone:")

S = seg("ffn_main")
S.e("L_ffn_main:")
stamp(S, 3)
NU = 18*72
lg = Q("lgkmcnt", 15)
def rd_ins(j):
    P = j // 72; T = j // 24; ks = (j % 24) >> 2; ct = j & 3
    slot = T % 6
    base = (vRA if P < 9 else vRB) + 2*(slot // 2) + (ct & 1)
    off = (slot % 2)*SLOT + ks*4096 + (ct >> 1)*512
    return trr(frag(j), base, off, off + (256 if P < 9 else 2048))
class Op:
    def __init__(self, cost, text, kind="v", tag=None, early=0, hd=None, label=None):
        self.cost, self.text, self.kind, self.tag, self.early, self.hd = cost, text, kind, tag, early, hd
def silu_ops(P):
    acc = ACC + 32*(P % 2); ops = []
    for g in range(16):
        ct, rb, d = g >> 2, (g >> 1) & 1, g & 1
        e = 8*ct + 4*rb + 2*d; ta = vT + 2*(g % 3); tb = ta + 1
        hi = 8*(2*P + (ct >> 1)) + 4*rb + 2*(ct & 1) + d
        kind, reg = hdst(hi)
        dst = reg if kind == 'v' else vT + 6 + (g % 3)
        ops += [Op(8, f"v_exp_f32 v{ta}, v{acc+e}"), Op(8, f"v_exp_f32 v{tb}, v{acc+e+1}"),
                Op(4, f"v_fma_f32 v{ta}, v{ta}, s{sK}, s{sK}"), Op(4, f"v_fma_f32 v{tb}, v{tb}, s{sK}, s{sK}"),
                Op(8, f"v_rcp_f32 v{ta}, v{ta}"), Op(8, f"v_rcp_f32 v{tb}, v{tb}"),
                Op(4, f"v_mul_f32 v{ta}, v{acc+e}, v{ta}"), Op(4, f"v_mul_f32 v{tb}, v{acc+e+1}, v{tb}"),
                Op(4, f"v_cvt_pk_bf16_f32 v{dst}, v{ta}, v{tb}", hd=hi if kind == 'v' else None)]
        if kind == 'a': ops.append(Op(4, f"v_accvgpr_write_b32 a{reg}, v{dst}", hd=hi))
    return ops
def store_ops(q):
    P = 9 + q; acc = ACC + 32*(P % 2); ops = []
    for ct in range(4):
        t = vT + 4*(ct % 3)
        for d in range(4): ops.append(Op(4, f"v_cvt_pk_bf16_f32 v{t+d}, v{acc+8*ct+2*d}, v{acc+8*ct+2*d+1}"))
        ops.append(Op(24, f"buffer_store_dwordx4 v[{t}:{t+3}], v{vPS}, {srd(sWs)}, s{sST+q} offen offset:{1024*ct} sc1", "big", ("st", q)))
    return ops
stubs = []
def poll_op(early): return [Op(8, f"buffer_load_dwordx2 v[{vFL}:{vFL+1}], v{vFR}, {srd(sWs)}, 0 offen sc1", "big", ("fl",), early)]
def check_ops(qp, PT, early, mid=()):
    ops = [Op(0, f"s_sub_u32 s{sT0}, s{sS}, {qp+1}", "s", early=early), Op(0, f"s_and_b32 s{sT0}, s{sT0}, 7", "s"),
           Op(0, f"s_lshl_b32 s{sT1}, s{sT0}, 3", "s"), Op(0, f"s_mul_i32 s{sT0}, s{sT0}, 147456", "s"), Op(0, f"s_add_u32 s{sT0}, s{sT0}, s{sPL}", "s"),
           Op(0, None, "vmwait", lambda t: t == ("fl",), early + 10), *mid,
           Op(4, f"v_readfirstlane_b32 s{sF}, v{vFL}"), Op(4, f"v_readfirstlane_b32 s{sF+1}, v{vFL+1}"),
           Op(16, f"s_lshr_b64 s[{sF}:{sF+1}], s[{sF}:{sF+1}], s{sT1}\ns_and_b32 s{sF}, s{sF}, 0xff\ns_cbranch_scc0 L_chk{qp}\nL_chk{qp}_ok:", "blk")]
    stubs.append(qp)
    for ct in range(4):
        ops.append(Op(8, f"buffer_load_dwordx4 v[{PT+4*ct}:{PT+4*ct+3}], v{vPS}, {srd(sWs)}, s{sT0} offen offset:{1024*ct} sc1", "big", ("pl", qp)))
    return ops
def add_ops(qp, PT, early):
    ops = [Op(0, None, "vmwait", lambda t: t == ("pl", qp), early)]
    for d in range(16):
        ta = vT + 2*(d % 2); e = RR + 2*d
        ops += [Op(4, f"v_lshlrev_b32 v{ta}, 16, v{PT+d}"), Op(4, f"v_and_b32 v{ta+1}, s{sHI}, v{PT+d}"),
                Op(4, f"v_add_f32 v{e}, v{e}, v{ta}"), Op(4, f"v_add_f32 v{e+1}, v{e+1}, v{ta+1}")]
    return ops
def pos_ops(q):
    ops = []
    PT = lambda qp: PT1 if qp & 1 else PT0
    if q == 1:
        for i, r in enumerate((vD3, vD4, vFR, None, vOA, vLA, vLA8)):
            if r: ops.append(Op(4, f"v_accvgpr_read_b32 v{r}, a{aST+i}"))
    ops += store_ops(q - 1)
    if q >= 3: ops += poll_op(0)
    fill = []
    if q == 2:
        for d in range(16):
            ta = vT + (d % 2)
            fill += [Op(4, f"v_accvgpr_read_b32 v{ta}, a{aXR+d}"), Op(4, f"v_lshlrev_b32 v{RR+2*d}, 16, v{ta}"), Op(4, f"v_and_b32 v{RR+2*d+1}, s{sHI}, v{ta}")]
    if q >= 4: fill = add_ops(q - 4, PT(q - 4), 0)
    if q <= 7: flag = [Op(0, f"s_add_u32 s{sT2}, s{sFLB}, s{sCOL+q-1}", "s"), Op(8, line_store(vFV, vLA, sT2), "big", ("flag",))]
    else: flag = [Op(8, line_store(vFV, vLA8, sFLB), "big", ("flag",))]
    ops += fill[:37]
    if q >= 3: ops += check_ops(q - 3, PT(q - 3), 84, flag)
    else: ops += [Op(0, None, "vmwait", lambda t: t == ("st", q - 1), 100)] + flag
    if q == 8: ops += fill[37:53] + poll_op(0) + fill[53:]
    else: ops += fill[37:]
    return ops
def hs_sites(P):
    if 1 <= P <= 8: S.e(f"s_cmp_eq_u32 s{sHSK}, {P-1}\ns_cbranch_scc1 L_hsl{P}\nL_hsl{P}_ok:")
    if 3 <= P <= 10: S.e(f"s_cmp_eq_u32 s{sHSK}, {P-3}\ns_cbranch_scc1 L_hsc{P}\nL_hsc{P}_ok:")
hdone = set()
def put(o):
    if o.kind == "vmwait":
        x = vm.wait(o.tag)
        if x: S.e(x)
        return
    S.e(o.text)
    if o.kind == "big": vm.issue(o.tag)
    if o.hd is not None: hdone.add(o.hd)
S.e(vm.wait(lambda t: t == ("dma", 0))); S.e("s_barrier")
rq = [(j, h) for j in range(NU) for h in range(2)]
rp = 0
for _ in range(2*DR):
    j, h = rq[rp]; S.e(rd_ins(j)[h]); lg.issue(j); rp += 1
S.e(lg.wait(lambda t: t <= 0))
dq = [(T, n) for T in (2, 3, 4) for n in range(6)]
owed = 0
est = 0; est_p = []
m0_set = None
for P in range(18):
    phaseA = 1 <= P <= 9
    ops = [] if P == 0 else (silu_ops(P-1) if phaseA else pos_ops(P - 9))
    ntot = len(ops); oi = 0
    G0, G1 = 3, (143 if P < 9 else 132)
    acc = ACC + 32*(P % 2)
    e0 = est
    if P in (1, 5, 9, 11, 12, 15): stamp(S, 8 + (1, 5, 9, 11, 12, 15).index(P))
    for u in range(72):
        i = 72*P + u; k, ct = u >> 2, u & 3
        for h in range(2):
            G = 2*u + h
            rb = h ^ (ct & 1); a = acc + 8*ct + 4*rb
            if P < 9: b = f"v[{8*k+4*rb}:{8*k+4*rb+3}]"
            else:
                b = hreg(k, rb)
                assert all(8*k + 4*rb + d in hdone for d in range(4)), (P, u)
            S.e(mf16(a, f"a[{frag(i)}:{frag(i)+3}]", b, k == 0))
            cost = 8
            if G == 1: hs_sites(P)
            dma_now = None
            slot_free = True
            if h == 1:
                if i + 1 < NU:
                    assert rp >= 2*(i + 2), (P, u, rp)
                    x = lg.wait(lambda t: t <= i + 1)
                    if x: S.e(x); slot_free = False
            elif dq and m0_set == dq[0] and (u % 4 == 2 or (P == 0 and u % 2 == 0)):
                dma_now = dq.pop(0); S.e(dma_soff(*dma_now)); slot_free = False
            elif dq and (u % 4 == 1 or (P == 0 and u % 2 == 1)):
                S.e(dma_m0(*dq[0])); m0_set = dq[0]; slot_free = False
            if slot_free and oi < ntot and ops[oi].kind in ("s", "vmwait") and G >= ops[oi].early:
                put(ops[oi]); oi += 1
            if rp < len(rq) and rq[rp][0] <= i + DR: owed = sum(1 for z in rq[rp:rp+6] if 2*z[0] + z[1] <= 2*(i + DR) + h)
            else: owed = 0
            big = dma_now is not None
            if not big and not phaseA and oi < ntot and ops[oi].kind in ("big", "blk") and G >= max(G0, ops[oi].early) and owed <= 1:
                big = True
            if big and owed <= 1:
                nr = 0
            else:
                nr = min(owed, 2)
            for _ in range(nr):
                j, hh = rq[rp]
                if hh == 0 and j % 24 == 0:
                    T = j // 24
                    S.e(vm.wait(lambda t: t == ("dma", T))); S.e("s_barrier"); cost += 8
                    if T == 1:
                        S.e(f"buffer_atomic_add v{vFV}, v{vHS}, {srd(sWs)}, 0 offen sc1\nbuffer_store_byte v{vFV}, v{vFA}, {srd(sDbg)}, 0 offen sc1")
                        vm.issue(("flag",)); vm.issue(("flag",)); cost += 24
                        stamp(S, 14)
                    if T == 2: stamp(S, 15)
                    if T + 4 <= 57: dq += [(T + 4, n) for n in range(6)]
                S.e(rd_ins(j)[hh]); lg.issue(j); rp += 1; cost += 4
            if dma_now is not None:
                S.e(dma_go(*dma_now)); vm.issue(("dma", dma_now[0])); cost += 8
            elif big:
                cost += ops[oi].cost; put(ops[oi]); oi += 1
            if G >= G0:
                if phaseA:
                    tgt = -(-ntot*(G - G0 + 1) // (G1 - G0 + 1))
                    while oi < ntot and oi < tgt and (cost < 16 or (dma_now is None and cost + ops[oi].cost <= 24) or oi < tgt - 1):
                        cost += ops[oi].cost; put(ops[oi]); oi += 1
                else:
                    while oi < ntot and G >= ops[oi].early and ((ops[oi].kind in ("v", "s", "vmwait") and cost + 4 <= 16) or G == 143):
                        cost += max(4, ops[oi].cost); put(ops[oi]); oi += 1
            est += max(16, cost)
    assert oi == ntot, (P, oi, ntot)
    est_p.append(est - e0)
assert not dq
print("ffn stream estimate:", est, est_p, file=sys.stderr)

S = seg("ffn_tail")
stamp(S, 4)
acc = ACC + 32
for o in check_ops(6, PT0, 0): put(o)
def dot_add(R, P, n):
    for d in range(n):
        S.e(f"v_dot2_f32_bf16 v{R+2*d}, v{P+d}, s{sSEL0}, v{R+2*d}\nv_dot2_f32_bf16 v{R+2*d+1}, v{P+d}, s{sSEL1}, v{R+2*d+1}")
S.e(vm.wait(lambda t: t == ("pl", 5)))
dot_add(RR, PT1, 16)
for e in range(0, 32, 2): S.e(f"v_pk_add_f32 v[{acc+e}:{acc+e+1}], v[{acc+e}:{acc+e+1}], v[{RR+e}:{RR+e+1}]")
S.e(vm.wait(lambda t: t == ("pl", 6)))
dot_add(acc, PT0, 16)
S.e(f"s_cmp_ge_u32 s{sS}, 2\ns_cbranch_scc1 L_ffn_nox2")
S.e("s_barrier")
for T in (58, 59):
    for n in range(6):
        S.e(dma_m0(T, n)); S.e(dma_soff(T, n)); S.e(dma_go(T, n))
poll_line(S, "pp", vFR, 32, vT)
S.e(f"""s_mul_i32 s{sT0}, s{sR}, {8*147456}
s_lshl_b32 s{sT1}, s{sS}, 11
s_add_u32 s{sT0}, s{sT0}, s{sT1}
s_add_u32 s{sT0}, s{sT0}, {P_OFF + 8*16384}""")
q = Q("vmcnt", 63)
A3 = ACC
for sp in range(8):
    for k in range(2):
        r = 4*(2*sp + k)
        S.e(f"buffer_load_dwordx4 v[{r}:{r+3}], v{vPS}, {srd(sWs)}, s{sT0} offen offset:{1024*k} sc1"); q.issue(sp)
    if sp < 7: S.e(f"s_add_u32 s{sT0}, s{sT0}, 147456")
S.e(f"""s_lshl_b32 s{sT1}, s{sS}, 9""")
for i in range(4): S.e(f"v_add_u32 v{vT+4+i}, s{sT1}, v{vRB+2+i}")
for d in range(8):
    S.e(f"v_accvgpr_read_b32 v{XR+d}, a{aX8+d}")
for d in range(8):
    S.e(f"v_lshlrev_b32 v{A3+2*d}, 16, v{XR+d}\nv_and_b32 v{A3+2*d+1}, s{sHI}, v{XR+d}")
for sp in range(8):
    x = q.wait(lambda t: t <= sp)
    if x: S.e(x)
    for d in range(8):
        S.e(f"v_dot2_f32_bf16 v{A3+2*d}, v{8*sp+d}, s{sSEL0}, v{A3+2*d}\nv_dot2_f32_bf16 v{A3+2*d+1}, v{8*sp+d}, s{sSEL1}, v{A3+2*d+1}")
S.e("L_ffn_nox2:")
stamp(S, 5)
S.e("s_waitcnt vmcnt(0)\ns_barrier")
poll_line(S, "po", vFR, 64, vT)
stamp(S, 6)
S.e(f"""s_lshl_b32 s{sT0}, s{sR}, 2
s_add_u32 s{sT0}, s{sT0}, s{sW}
s_mul_i32 s{sT0}, s{sT0}, {36*1024}
s_add_u32 s{sT0}, s{sT0}, {O_OFF}
v_lshlrev_b32 v{vT+2}, 4, v{vLANE}
""")
oq = Q("vmcnt", 63)
def o_load(S, oq, k):
    S.e(f"buffer_load_dwordx4 a[{4*k}:{4*k+3}], v{vT+2}, {srd(sWs)}, s{sT0} offen offset:{1024*(k%4)} sc1"); oq.issue(k // 2)
    if k % 4 == 3 and k < 35: S.e(f"s_add_u32 s{sT0}, s{sT0}, 4096")
NPRE = 12
for k in range(NPRE): o_load(S, oq, k)
S.e(f"s_cmp_lt_u32 s{sS}, 2\ns_cbranch_scc1 L_ffn_o3")

def oproj(S, nct, oq0):
    oq = Q("vmcnt", 63); oq.q = list(oq0.q)
    nxt = [NPRE]
    def rd(j):
        k, ct = j // nct, j % nct
        if ct < 4:
            slot = k // 6; base = vRB + 2*(slot // 2) + (ct & 1); off = (slot % 2)*SLOT + (k % 6)*4096 + (ct >> 1)*512
        else:
            slot = 3 + k // 6; base = vT + 4 + 2*(slot // 2 - 1) + (ct & 1); off = (slot % 2)*SLOT + (k % 6)*4096
        return trr(frag(j), base, off, off + 2048)
    def areg(ct, rb): return (acc + 8*ct if ct < 4 else A3 + 8*(ct - 4)) + 4*rb
    def unit(j):
        k, ct = j // nct, j % nct
        return [mf16(areg(ct, h ^ (ct & 1)), f"a[{frag(j)}:{frag(j)+3}]", f"a[{8*k+4*(h ^ (ct & 1))}:{8*k+4*(h ^ (ct & 1))+3}]", False) for h in range(2)]
    def pre(j):
        k, ct = j // nct, j % nct
        if ct in (1, 2) and nxt[0] < 36: o_load(S, oq, nxt[0]); nxt[0] += 1
        if ct == 0:
            x = oq.wait(lambda t: t <= k)
            if x: S.e(x)
    simple_gemm(S, 18*nct, rd, unit, pre)
    S.e(f"s_add_u32 s{sT2}, s{sT3}, {16*1152}")
    if nct == 6: S.e(f"s_lshl_b32 s{sT0}, s{sS}, 6\ns_add_u32 s{sT0}, s{sT0}, 1024\ns_add_u32 s{sT1}, s{sT0}, {16*1152}")
    for c in range(nct // 2):
        for rb in range(2):
            p = 8*c + 4*rb
            for z in range(2):
                a = areg(2*c + z, rb)
                S.e(f"v_cvt_pk_bf16_f32 v{p+2*z}, v{a}, v{a+1}\nv_cvt_pk_bf16_f32 v{p+2*z+1}, v{a+2}, v{a+3}")
        for rb in range(2):
            p = 8*c + 4*rb
            S.e(f"v_permlane16_swap_b32 v{p}, v{p+2}\nv_permlane16_swap_b32 v{p+1}, v{p+3}")
        for rb in range(2):
            p = 8*c + 4*rb
            so = (sT2 if rb else sT3) if c < 2 else (sT1 if rb else sT0)
            S.e(f"buffer_store_dwordx4 v[{p}:{p+3}], v{vOA}, {srd(sOut)}, s{so} offen offset:{64*c if c < 2 else 0}")
S = seg("ffn_o2")
oproj(S, 4, oq)
S.e("s_branch L_ffn_end")
S = seg("ffn_o3")
S.e("L_ffn_o3:")
oproj(S, 6, oq)
S = seg("ffn_end")
S.e("L_ffn_end:")
if STAMP: S.e("s_waitcnt vmcnt(0)")
stamp(S, 7)
stamp_out(S)
S.e("s_endpgm")
S = seg("ffn_stubs")
for qp in stubs:
    S.e(f"L_chk{qp}:")
    spin_head(S, f"chk{qp}")
    S.e(f"""buffer_load_dwordx2 v[{vFL}:{vFL+1}], v{vFR}, {srd(sWs)}, 0 offen sc1
    s_waitcnt vmcnt(0)
    v_readfirstlane_b32 s{sF}, v{vFL}
    v_readfirstlane_b32 s{sF+1}, v{vFL+1}
    s_lshr_b64 s[{sF}:{sF+1}], s[{sF}:{sF+1}], s{sT1}
    s_and_b32 s{sF}, s{sF}, 0xff
    s_cbranch_scc1 L_chk{qp}_ok""")
    spin_tail(S, f"chk{qp}")
    S.e(f"s_branch L_chk{qp}_ok")
for P in range(1, 9):
    S.e(f"L_hsl{P}:\nbuffer_load_ubyte a247, off, {srd(sDbg)}, s{sHSA} sc1\ns_branch L_hsl{P}_ok")
S.e("L_hs_sub:")
spin_head(S, "hs")
S.e(f"""v_accvgpr_read_b32 v{vFA}, a247
v_readfirstlane_b32 s{sT0}, v{vFA}
s_cmp_eq_u32 s{sT0}, 1
s_cbranch_scc1 L_hs_ret
buffer_load_ubyte a247, off, {srd(sDbg)}, s{sHSA} sc1
s_waitcnt vmcnt(0)""")
spin_tail(S, "hs")
S.e(f"L_hs_ret:")
for P in range(3, 10): S.e(f"s_cmp_eq_u32 s{sHSK}, {P-3}\ns_cbranch_scc1 L_hsc{P}_ok")
S.e("s_branch L_hsc10_ok")
for P in range(3, 11): S.e(f"L_hsc{P}:")
S.e("s_branch L_hs_sub")

QSH = 110592; QST = 152
SS, Q2V, CC, OO = 0, 64, 96, 184
K1B, VB, K2B = 16, 24, 40
vQA = 248
sPF = sKV
sW1 = sOut
S = seg("att_pro")
S.e("L_att:")
vm = Q("vmcnt", 63); vm.q = list(vm_entry)
S.e(f"s_lshl_b32 s{sHSA}, s{sR}, 7\ns_add_u32 s{sHSA}, s{sHSA}, {KC_OFF}\ns_cmp_lg_u32 s{sW}, 0\ns_cbranch_scc1 L_nsnap\nbuffer_load_dword a204, off, {srd(sWs)}, s{sHSA} sc1\nL_nsnap:")
S.e(f"s_mul_i32 s{sT0}, s{sS}, 144\ns_and_b32 s{sT2}, s{sT0}, 63\ns_and_b32 s{sT0}, s{sT0}, 0xffc0")
mk_srd(S, sWa, 6, 576*1152, add=sT0, shrink=True)
S.e(f"s_mul_i32 s{sT0}, s{sS}, 1152")
mk_srd(S, sPF, 16, 576*9216, add=sT0, shrink=True)
AT = TX + 8
t0, t1, t2 = AT+4, AT+5, AT+6
vDQ, vDQ2, vPFR, vPF = 168, 169, 170, 171
LPW = 144 // NW
t3 = AT + 7
S.e(f"""v_lshrrev_b32 v{t0}, 2, v{vLANE}
v_lshl_add_u32 v{t0}, s{sW}, 4, v{t0}
v_mul_u32_u24 v{t0}, 1152, v{t0}
v_lshrrev_b32 v{t1}, 5, v{vLANE}
v_lshlrev_b32 v{t2}, 1, v{t1}
v_xor_b32 v{t2}, v{t2}, v{vLANE}
v_and_b32 v{t2}, 3, v{t2}
v_lshl_add_u32 v{vDQ}, v{t2}, 4, v{t0}
v_mul_u32_u24 v{t0}, 3072, v{t1}
v_bfe_u32 v{t1}, v{vLANE}, 2, 2
v_lshl_add_u32 v{t0}, v{t1}, 6, v{t0}
v_bfe_u32 v{t1}, v{vLANE}, 4, 1
v_lshl_add_u32 v{t0}, v{t1}, 9, v{t0}
v_lshlrev_b32 v{t1}, 5, v{t1}
s_mul_i32 s{sT1}, s{sW}, 3072""")
for ct in range(5):
    S.e(f"""v_and_b32 v{t2}, {3 if ct < 4 else 1}, v{vLANE}
    v_lshl_add_u32 v{t2}, v{t2}, 3, s{sT2}
    v_add_u32 v{t2}, {32*ct}, v{t2}
    v_lshrrev_b32 v{t3}, 6, v{t2}
    v_lshl_add_u32 v{t3}, v{t3}, 10, v{t0}
    v_and_b32 v{t2}, 63, v{t2}
    v_xor_b32 v{t2}, v{t2}, v{t1}
    v_add_u32 v{vQA+ct}, v{t2}, v{t3}""")
S.e(f"""s_mov_b32 s{sPL}, s{sT1}
s_and_b32 s{sT0}, s{sR}, {NW-1}
s_lshl_b32 s{sT0}, s{sT0}, 2
s_add_u32 s{sT0}, s{sT0}, s{sW}
s_mul_i32 s{sT0}, s{sT0}, {LPW}
v_min_u32 v{254}, {min(LPW, 64) - 1}, v{vLANE}
v_add_u32 v254, s{sT0}, v254
""")
for i in range(64): S.e(f"v_mov_b32 v{OO+i}, 0")
fin = x_read_stats(S, vm, AT)
stamp(S, 1)
def wq_item(n):
    def f():
        m, t = n // 3, n % 3
        S.e(f"s_add_u32 m0, s{sPL}, {m*12288 + t*1024}\ns_mov_b32 s{sOFF}, {64*m*1152 + 64*t}\nbuffer_load_dwordx4 v{vDQ}, {srd(sWa)}, s{sOFF} offen lds"); vm.issue(("wq",))
    return f
items = [wq_item(n) for n in range(27)]
for f in items[:9]: f()
fin()
ln_finish(S, AT, LOG2E / math.sqrt(18.0), items[9:], centre_only=True)
stamp(S, 2)
S.e(vm.wait(lambda t: t == ("wq",))); S.e("s_barrier")
QA = 144
def rdq(j):
    k, ct = j // 5, j % 5
    r = trr(frag(j), vQA + ct, (k % 9)*6144, (k % 9)*6144 + 256)
    if k == 8: r[1] += f"\nv_add_u32 v{vQA+ct}, {9*6144}, v{vQA+ct}"
    return r
def unitq(j):
    k, ct = j // 5, j % 5
    return [mf16(QA + 8*ct + 4*(h ^ (j & 1)), f"a[{frag(j)}:{frag(j)+3}]", f"v[{8*k+4*(h ^ (j & 1))}:{8*k+4*(h ^ (j & 1))+3}]", k == 0) for h in range(2)]
def preq(j):
    if not NOPF and j in (10, 30, 50, 70): S.e(f"buffer_load_dword a200, v254, {srd(sPF)}, 0 offen offset:{128*((j + 10)//20)}")
S.e(f"v_accvgpr_write_b32 a203, v254\nv_mul_u32_u24 v254, 9216, v254")
simple_gemm(S, 90, rdq, unitq, preq)
stamp(S, 3)
cq = LOG2E / math.sqrt(18.0)
U = 96
vQW, vQR, vQR2, vKP = U, U+1, U+2, U+3
S.e(f"""s_mul_i32 s{sT0}, s{sW}, {32*QST}
s_add_u32 s{sT0}, s{sT0}, {QSH}
v_and_b32 v{U+4}, 15, v{vLANE}
v_and_b32 v{vKP}, 7, v{vLANE}
v_lshlrev_b32 v{vKP}, 2, v{vKP}
v_accvgpr_read_b32 v{U+17}, a204
v_add_u32 v{U+17}, 32, v{U+17}
v_mul_u32_u24 v{U+4}, {QST}, v{U+4}
v_lshrrev_b32 v{U+5}, 4, v{vLANE}
v_lshl_add_u32 v{U+4}, v{U+5}, 3, v{U+4}
v_add_u32 v{vQW}, s{sT0}, v{U+4}
v_and_b32 v{U+4}, 31, v{vLANE}
v_mul_u32_u24 v{U+4}, {QST}, v{U+4}
v_add_u32 v{vQR2}, s{sT0}, v{U+4}
v_lshrrev_b32 v{U+5}, 5, v{vLANE}
v_lshl_add_u32 v{vQR}, v{U+5}, 4, v{vQR2}
v_accvgpr_read_b32 v{U+6}, a201
v_accvgpr_read_b32 v{U+7}, a201
v_accvgpr_read_b32 v{U+8}, a202
v_accvgpr_read_b32 v{U+9}, a202
""")
for e in range(0, 40, 2):
    z = U + 6 + 2*((e >> 2) & 1)
    S.e(f"v_pk_mul_f32 v[{QA+e}:{QA+e+1}], v[{QA+e}:{QA+e+1}], v[{z}:{z+1}]")
for ct in range(5):
    for rb in range(2):
        a = QA + 8*ct + 4*rb; p = 4*ct + 2*rb
        S.e(f"v_cvt_pk_bf16_f32 v{p}, v{a}, v{a+1}\nv_cvt_pk_bf16_f32 v{p+1}, v{a+2}, v{a+3}")
    if ct == 4: S.e("s_mov_b32 exec_hi, 0")
    for rb in range(2):
        p = 4*ct + 2*rb
        S.e(f"ds_write_b64 v{vQW}, v[{p}:{p+1}] offset:{16*QST*rb + 32*ct}")
S.e("s_mov_b64 exec, -1\ns_waitcnt lgkmcnt(0)")
Q1 = 32
for j in range(4):
    S.e(f"ds_read2_b32 v[{Q1+4*j}:{Q1+4*j+1}], v{vQR} offset0:{9*j} offset1:{9*j+1}")
    S.e(f"ds_read2_b32 v[{Q1+4*j+2}:{Q1+4*j+3}], v{vQR} offset0:{9*j+2} offset1:{9*j+3}")
    S.e(f"ds_read_b32 v{Q1+16+j}, v{vQR2} offset:{36*j+32}")
vK1, vV, vK2, vIDX, vKN, vKD, vOF, vHA = 160, 161, 162, 163, 164, 165, 166, 167
S.e(f"""v_lshlrev_b32 v{vK1}, 4, v{vLANE}
v_lshlrev_b32 v{vK2}, 3, v{vLANE}
v_and_b32 v{U+4}, 31, v{vLANE}
v_subrev_u32 v{U+5}, 20, v{U+4}
v_cmp_gt_u32 vcc, 8, v{U+5}
v_min_u32 v{U+4}, 19, v{U+4}
v_addc_co_u32 v{U+4}, vcc, 0, v{U+4}, vcc
v_lshrrev_b32 v{U+5}, 5, v{vLANE}
v_mul_u32_u24 v{U+5}, 336, v{U+5}
v_lshl_add_u32 v{vV}, v{U+4}, 4, v{U+5}
v_mov_b32 v{vIDX}, 0xdddddddd
v_lshlrev_b32 v{vKN}, 2, v{vLANE}
s_lshl_b32 s{sM0}, s{sW}, 12
v_cmp_gt_u32 vcc, 32, v{vLANE}
""")
for j in range(4):
    b = Q2V + 8*j
    for z in (1, 2, 5, 6): S.e(f"v_mov_b32 v{b+z}, 0")
S.e("s_waitcnt lgkmcnt(0)")
for j in range(4):
    b = Q2V + 8*j
    S.e(f"""v_cndmask_b32 v{b}, 0, v{Q1+16+j}, vcc
    v_cndmask_b32 v{b+3}, 0, v{Q1+16+j}, vcc
    v_cndmask_b32 v{b+4}, v{Q1+16+j}, v{b+1}, vcc
    v_cndmask_b32 v{b+7}, v{Q1+16+j}, v{b+1}, vcc""")
for i in range(16): S.e(f"v_accvgpr_write_b32 a{i}, v{Q1+i}")
stamp(S, 4)
S.e(f"s_cmp_lg_u32 s{sW}, 0\ns_cbranch_scc1 L_pk_done")
spin_head(S, "pk")
S.e(f"""buffer_load_dword v{U+16}, off, {srd(sWs)}, s{sHSA} sc1
s_waitcnt vmcnt(0)
v_cmp_eq_u32 vcc, v{U+16}, v{U+17}
s_cbranch_vccnz L_pk_done
s_and_b32 s{sT0}, s{sSPIN}, 15
s_cmp_lg_u32 s{sT0}, 15
s_cbranch_scc1 L_pk_next
buffer_load_dword v{U+16}, v{vKP}, {srd(sDbg)}, 0 offen sc1
s_waitcnt vmcnt(0)
v_cmp_ne_u32 vcc, 0x1010101, v{U+16}
s_cbranch_vccz L_pk_done
L_pk_next:""")
spin_tail(S, "pk", 2)
S.e("L_pk_done:")
S.e("s_barrier")
stamp(S, 5)
vm = Q("vmcnt", 63)
S.e(f"s_mov_b32 s{sOFF}, {KN_OFF}\nbuffer_load_dword v{U+4}, v{vKN}, {srd(sWs)}, s{sOFF} offen sc1"); vm.issue("kn")
def kv_blk(m): return f"s_add_u32 m0, s{sM0}, {m*16384}\ns_add_u32 s{sOFF}, s{sM0}, {m*16384}"
def kv_dma(z): return f"buffer_load_dwordx4 v{vK1}, {srd(sWs)}, s{sOFF} offen offset:{1024*z} sc1 lds"
for m in range(2):
    S.e(kv_blk(m))
    for z in range(4): S.e(kv_dma(z)); vm.issue(m)
qn = U + 8
for j in range(4): S.e(f"v_dot2_f32_bf16 v{qn+j}, v{Q2V+8*j}, v{Q2V+8*j}, 0")
for d in range(4):
    for j in range(4): S.e(f"v_dot2_f32_bf16 v{qn+j}, v{Q1+4*j+d}, v{Q1+4*j+d}, v{qn+j}")
for j in range(4): S.e(f"v_mov_b32 v{qn+4+j}, v{qn+j}")
for j in range(4): S.e(f"v_permlane32_swap_b32 v{qn+j}, v{qn+4+j}")
for j in range(4): S.e(f"v_add_f32 v{qn+j}, v{qn+j}, v{qn+4+j}")
S.e(f"v_max_f32 v{qn}, v{qn}, v{qn+1}\nv_max3_f32 v{qn}, v{qn}, v{qn+2}, v{qn+3}")
S.e(f"s_mov_b32 s{sF}, 0x8765\ns_mov_b32 s{sF+1}, 0x80000000")
for q in range(9):
    it = 4 + q
    S.e(f"s_lshr_b32 s{sT0}, s{sCOL+q}, 7\ns_lshl_b32 s{sT0}, s{sT0}, {4*(it % 8)}\ns_or_b32 s{sF + it//8}, s{sF + it//8}, s{sT0}")
S.e(f"s_mul_i32 s{sT0}, s{sS}, 0x1100000\ns_or_b32 s{sF+1}, s{sF+1}, s{sT0}")
S.e(f"v_accvgpr_read_b32 v{vPFR}, a203\nv_mov_b32 v{vPF}, v254")
line_addr(S, vOF, 8, 2, U+5)
S.e(vm.wait(lambda t: t == "kn"))
wave_max(S, U+4)
S.e(f"""v_mov_b32 v{U+5}, {f2u(-1.0 if FORCE_FB else 4096.0)}
v_readlane_b32 s{sT0}, v{U+4}, 63
v_mul_f32 v{qn}, s{sT0}, v{qn}
v_cmp_nle_f32 vcc, v{qn}, v{U+5}
""")
S.e(vm.wait(lambda t: t == 0))
S.e(f"""s_barrier
s_cbranch_vccnz L_att_fb
ds_read_b64 a[{K2B}:{K2B+1}], v{vK2}
ds_read_b128 a[{K1B}:{K1B+3}], v{vK1} offset:512
s_mov_b32 s{sCNT}, 1
v_mov_b32 v{vKD}, v{vK1}
s_waitcnt lgkmcnt(0)
""")
stamp(S, 6)

def att_step(S, it, u, mode):
    j, t = u & 3, u >> 2
    s = SS + 16*j; e = SS + 16*((j-1) & 3); p = SS + 16*((j-2) & 3); o = OO + 16*((j-2) & 3)
    vb = VB + 8*(((u-2) >> 2) & 1)
    kb = K1B + 4*(t & 1); k2 = K2B + 2*(it & 1)
    base = it*KV_IT
    first = mode == 'peel' and it == 0
    def ex(a):
        if first and u == 0: return
        for i in range(4): S.e(f"v_exp_f32 v{e+a+i}, v{e+a+i}")
    pv = not (first and u < 2)
    pf = mode != 'fb' and not NOPF
    dmas = first
    c = f"v[{CC+16*j}:{CC+16*j+15}]" if mode == 'fb' else "0"
    S.e(f"v_mfma_f32_32x32x16_bf16 v[{s}:{s+15}], a[{kb}:{kb+3}], a[{4*j}:{4*j+3}], {c}")
    if j == 2: S.e("s_waitcnt lgkmcnt(0)")
    if mode != 'peel':
        if it == 1 and u == 1: S.e(f"s_add_u32 s{sCNT}, s{sCNT}, 1")
        if it == 1 and u == 15: S.e(f"s_cmp_lt_u32 s{sCNT}, 8")
    if pf and u == 4: S.e(f"s_and_b32 s{sT0}, s{sF}, 15")
    if pf and u == 5: S.e(f"s_lshl_b32 s{sT0}, s{sT0}, 7")
    if pf and u == 9: S.e(f"s_lshr_b64 s[{sF}:{sF+1}], s[{sF}:{sF+1}], 4")
    ex(0)
    q2 = Q2V + 8*j + 2*t
    S.e(f"v_mfma_f32_32x32x8_bf16 v[{s}:{s+15}], a[{k2}:{k2+1}], v[{q2}:{q2+1}], v[{s}:{s+15}]")
    ex(4)
    if pv: S.e(f"v_smfmac_f32_32x32x32_bf16 v[{o}:{o+15}], a[{vb}:{vb+3}], v[{p}:{p+7}], v{vIDX}")
    if dmas and u % 2 == 0: S.e(kv_blk(2 + u // 2))
    if mode == 'peel' and it == 1 and u == 0:
        S.e(vm.wait(lambda t: t == 1)); S.e("s_barrier")
    if pf and mode == 'loop' and it == 0:
        if u == 0: S.e(f"s_cmp_ge_u32 s{sCNT}, 2\ns_cselect_b32 s{sPF}, s{sWb}, s{sPF}")
        if u == 1: S.e(f"s_cselect_b32 s{sPF+1}, s{sWb+1}, s{sPF+1}\ns_cselect_b32 s{sPF+2}, s{sWb+2}, s{sPF+2}")
        if u == 2: S.e(f"s_cmp_ge_u32 s{sCNT}, 7")
        if u == 3: S.e(f"s_cselect_b32 s{sPF}, s{sWo}, s{sPF}\ns_cselect_b32 s{sPF+1}, s{sWo+1}, s{sPF+1}")
    vn = VB + 8*(t & 1)
    if j == 0: S.e(f"ds_read_b128 a[{vn}:{vn+3}], v{vV} offset:{base + 4608 + VT*t}")
    if j == 1: S.e(f"ds_read_b128 a[{vn+4}:{vn+7}], v{vV} offset:{base + 4608 + VT*t + 672}")
    if j == 2:
        kn = K1B + 4*((t+1) & 1)
        off = base + 512 + 1024*(t+1) if t < 3 else base + KV_IT + 512
        S.e(f"ds_read_b128 a[{kn}:{kn+3}], v{vK1} offset:{off}")
        if t == 2:
            k2n = K2B + 2*((it+1) & 1)
            S.e(f"ds_read_b64 a[{k2n}:{k2n+1}], v{vK2} offset:{base + KV_IT}")
    if j == 3 and it == 1 and t == 3:
        S.e(f"v_add_u32 v{vK1}, {2*KV_IT}, v{vK1}\nv_add_u32 v{vV}, {2*KV_IT}, v{vV}\nv_add_u32 v{vK2}, {2*KV_IT}, v{vK2}")
    if dmas: S.e(kv_dma((2*u) % 4).replace(f"v{vK1},", f"v{vKD},")); vm.issue(2 + u // 2)
    if pf and u == 7: S.e(f"buffer_load_dword a200, v{vPF}, {srd(sPF)}, s{sT0} offen"); vm.issue("pf")
    ex(8)
    if pv: S.e(f"v_smfmac_f32_32x32x32_bf16 v[{o}:{o+15}], a[{vb+4}:{vb+7}], v[{p+8}:{p+15}], v{vIDX}")
    if j == 3: S.e("s_waitcnt lgkmcnt(0)")
    if pf and mode == 'loop' and it == 0 and u == 1: S.e(f"s_cselect_b32 s{sT1}, 1152, s{sT2}")
    if pf and mode == 'loop' and it == 0 and u == 3: S.e(f"v_mul_u32_u24 v{vPF}, s{sT1}, v{vPFR}")
    if dmas: S.e(kv_dma((2*u + 1) % 4).replace(f"v{vK1},", f"v{vKD},")); vm.issue(2 + u // 2)
    ex(12)
S = seg("att_peel")
S.e(f"s_mov_b32 s{sT2}, 9216")
for it in range(2):
    for u in range(16): att_step(S, it, u, 'peel')
S.e(vm.wait(lambda t: t == 9)); S.e("s_barrier")
S = seg("att_loop")
S.e(".p2align 6\nL_att_loop:")
for it in range(2):
    for u in range(16): att_step(S, it, u, 'loop')
S.e("s_cbranch_scc1 L_att_loop")
S = seg("att_tail")
S.e("L_att_tail:")
stamp(S, 7)
vb = VB + 8
p = SS + 32; o = OO + 32; e = SS + 48
S.e(f"v_smfmac_f32_32x32x32_bf16 v[{o}:{o+15}], a[{vb}:{vb+3}], v[{p}:{p+7}], v{vIDX}")
for i in range(8): S.e(f"v_exp_f32 v{e+i}, v{e+i}")
S.e(f"v_smfmac_f32_32x32x32_bf16 v[{o}:{o+15}], a[{vb+4}:{vb+7}], v[{p+8}:{p+15}], v{vIDX}")
for i in range(8, 16): S.e(f"v_exp_f32 v{e+i}, v{e+i}")
S.e(f"""s_lshl_b32 s{sT0}, s{sR}, 2
s_add_u32 s{sT0}, s{sT0}, s{sW}
s_mul_i32 s{sT0}, s{sT0}, {36*1024}
s_add_u32 s{sT0}, s{sT0}, {O_OFF}""")
p = SS + 48; o = OO + 48
S.e(f"v_smfmac_f32_32x32x32_bf16 v[{o}:{o+15}], a[{vb}:{vb+3}], v[{p}:{p+7}], v{vIDX}")
S.e(f"""s_lshl_b32 s{sT1}, s{sS}, 12
s_add_u32 s{sT1}, s{sT1}, s{sT0}
v_bfe_u32 v{U+8}, v{vLANE}, 4, 1
v_lshlrev_b32 v{U+8}, 10, v{U+8}
v_lshrrev_b32 v{U+9}, 5, v{vLANE}
v_lshl_add_u32 v{U+8}, v{U+9}, 8, v{U+8}""")
S.e(f"v_smfmac_f32_32x32x32_bf16 v[{o}:{o+15}], a[{vb+4}:{vb+7}], v[{p+8}:{p+15}], v{vIDX}")
S.e(f"""s_lshr_b32 s{sT2}, s{sS}, 2
s_lshl_b32 s{sT2}, s{sT2}, 11
v_and_b32 v{U+9}, 15, v{vLANE}
v_lshl_add_u32 v{vK1}, v{U+9}, 4, v{U+8}
s_add_u32 s{sT0}, s{sT0}, s{sT2}
s_and_b32 s{sT2}, s{sS}, 3
s_lshl_b32 s{sT2}, s{sT2}, 8
s_add_u32 s{sT0}, s{sT0}, s{sT2}
s_add_u32 s{sT2}, s{sT0}, 32768
v_mov_b32 v{U+10}, 1
""")
for j in range(4):
    o = OO + 16*j; l = U + 2*j; P = 64 + 4*j
    S.e(f"v_mov_b32 v{l}, v{o+10}\nv_mov_b32 v{l+1}, v{o+10}\nv_permlane32_swap_b32 v{l}, v{l+1}\nv_rcp_f32 v{l}, v{l}\ns_nop 0\nv_mov_b32 v{l+1}, v{l}")
    for i in range(0, 10, 2): S.e(f"v_pk_mul_f32 v[{o+i}:{o+i+1}], v[{o+i}:{o+i+1}], v[{l}:{l+1}]")
    for d in range(4): S.e(f"v_cvt_pk_bf16_f32 v{P+d}, v{o+2*d}, v{o+2*d+1}")
    S.e(f"v_cvt_pk_bf16_f32 v{80+j}, v{o+8}, v{o+9}")
    S.e(f"buffer_store_dwordx4 v[{P}:{P+3}], v{vK1}, {srd(sWs)}, s{sT1} offen offset:{2048*(j >> 1) + 512*(j & 1)} sc1")
S.e(f"""s_mov_b32 exec_hi, 0
buffer_store_dwordx4 v[80:83], v{vK1}, {srd(sWs)}, s{sT2} offen sc1
s_mov_b64 exec, -1
s_waitcnt vmcnt(0)""")
S.e(line_store(U+10, vOF, sFLB))
stamp(S, 8)
stamp_out(S)
S.e("s_endpgm")

S = seg("att_fb")
S.e("L_att_fb:")
for m in range(2, 10):
    S.e(kv_blk(m))
    for z in range(4): S.e(kv_dma(z))
S.e(f"s_waitcnt vmcnt(0)\ns_barrier\ns_barrier\ns_mov_b32 s{sCNT}, 0")
mx = 172
for j in range(4): S.e(f"v_mov_b32 v{mx+j}, 0xff800000")
S.e(f"v_mov_b32 v{mx+4}, v{vK1}\nv_mov_b32 v{mx+5}, v{vK2}")
S = seg("att_fb_max")
S.e("L_att_fb_max:")
S.e(f"ds_read_b64 a[{K2B}:{K2B+1}], v{mx+5}")
for t in range(4): S.e(f"ds_read_b128 a[{44+4*t}:{47+4*t}], v{mx+4} offset:{512+1024*t}")
S.e(f"v_add_u32 v{mx+4}, {KV_IT}, v{mx+4}\nv_add_u32 v{mx+5}, {KV_IT}, v{mx+5}\ns_waitcnt lgkmcnt(0)")
for t in range(4):
    for j in range(4):
        s = SS + 16*j; q2 = Q2V + 8*j + 2*t
        S.e(f"v_mfma_f32_32x32x16_bf16 v[{s}:{s+15}], a[{44+4*t}:{47+4*t}], a[{4*j}:{4*j+3}], 0")
        S.e(f"v_mfma_f32_32x32x8_bf16 v[{s}:{s+15}], a[{K2B}:{K2B+1}], v[{q2}:{q2+1}], v[{s}:{s+15}]")
    for j in range(4):
        s = SS + 16*j
        for i in range(0, 16, 2): S.e(f"v_max3_f32 v{mx+j}, v{s+i}, v{s+i+1}, v{mx+j}")
S.e(f"s_add_u32 s{sCNT}, s{sCNT}, 1\ns_cmp_lt_u32 s{sCNT}, 16\ns_cbranch_scc1 L_att_fb_max")
S = seg("att_fb_init")
for j in range(4):
    S.e(f"v_mov_b32 v{mx+4}, v{mx+j}\nv_permlane32_swap_b32 v{mx+j}, v{mx+4}\nv_max_f32 v{mx+j}, v{mx+j}, v{mx+4}")
    for i in range(16): S.e(f"v_sub_f32 v{CC+16*j+i}, 0, v{mx+j}")
for i in range(32, 64): S.e(f"v_mov_b32 v{i}, 0")
for i in range(8): S.e(f"v_accvgpr_write_b32 a{VB+8+i}, 0")
S.e(f"""ds_read_b64 a[{K2B}:{K2B+1}], v{vK2}
ds_read_b128 a[{K1B}:{K1B+3}], v{vK1} offset:512
s_mov_b32 s{sCNT}, 0
s_waitcnt lgkmcnt(0)""")
S = seg("att_fb_loop")
S.e("L_att_fb_loop:")
for it in range(2):
    for u in range(16): att_step(S, it, u, 'fb')
S.e("s_cbranch_scc1 L_att_fb_loop\ns_branch L_att_tail")
S = seg("end")
S.e("L_exit:\ns_endpgm\n.p2align 6\nL_codeend:")

by = {s.name: s for s in segs}
prev = []
for s in segs:
    s.autopad(prev[-40:])
    prev = s.ins
    if s.padded: print(f"seg {s.name}: {s.padded} pads", file=sys.stderr)
paths = [["entry", "att_pro", "att_peel", "att_loop", "att_loop", "att_tail"],
         ["ffn_pro", "ffn_main"], ["ffn_kv", "ffn_kvdone"], ["ffn_tail", "ffn_o3"],
         ["att_fb_max", "att_fb_max"], ["att_fb_loop", "att_fb_loop", "att_tail"]]
for p in paths:
    seq = sum((by[n].ins for n in p), [])
    for i, miss, who in violations(seq):
        print("VIOLATION path", p, seq[i].text, "<-", who.text, miss, file=sys.stderr); sys.exit(1)

hdr = open("cdna_kernels/" + NAME + ".s.ref").read().split("; Override launch")[0]
out = hdr + "; Generated by a hand-written generator (dev/gen.py): one persistent launch, 128 FFN + 128 attention workgroups.\n"
out += "; @launch grid=(256,1,1) block=(256,1,1) lds=163840\n"
out += f""".amdgcn_target "amdgcn-amd-amdhsa--gfx950"
.text
.globl {NAME}_kernel
.p2align 8
.type {NAME}_kernel,@function
{NAME}_kernel:
"""
out += "".join(s.text() for s in segs)
out += f""".section .rodata,"a"
.p2align 6
.amdhsa_kernel {NAME}_kernel
  .amdhsa_next_free_vgpr 512
  .amdhsa_next_free_sgpr 102
  .amdhsa_accum_offset 256
  .amdhsa_group_segment_fixed_size 0
  .amdhsa_kernarg_size 88
  .amdhsa_user_sgpr_count 2
  .amdhsa_user_sgpr_kernarg_segment_ptr 1
  .amdhsa_system_sgpr_workgroup_id_x 1
.end_amdhsa_kernel
"""
dst = [a for a in sys.argv[1:] if not a.startswith("--")]
open(dst[0] if dst else "cdna_kernels/" + NAME + ".s", "w").write(out)
```

```python
import sys, math, struct
from asmlib import Seg, Q, I, violations

NAME = "parallel_sum__grouped_kv_mqa__dense_activation_silu__prompt"
STAMP = "--stamp" in sys.argv
FORCE_FB = "--force-fallback" in sys.argv
MAPPING = 2
for a in sys.argv:
    if a.startswith("--map="): MAPPING = int(a[6:])

def f2u(x): return struct.unpack("<I", struct.pack("<f", x))[0]
LOG2E = 1.4426950408889634
LN2 = 0.6931471805599453

NOPF = "--nopf" in sys.argv

VT = 1344
KV_IT = 512 + 4096 + 4*VT
KV_BYTES = 16 * KV_IT
KN_OFF = 0x28000
KC_OFF = 0x2e000
FL_OFF = 0x29000
O_OFF = 0x38000
P_OFF = 0x280000
ST_OFF = 0x2000000
WS_BYTES = 0x4000000
SK, SV = 2, 3
NW = {0: 16, 1: 8, 2: 4, 3: 2}[MAPPING]
NX = 32 // NW

sF = 26
sX, sWa, sWb, sWo, sKV, sOut, sDbg, sWs = 28, 32, 36, 40, 44, 48, 52, 56
sR, sS, sROLE, sW, sM0, sOFF, sXB = 60, 61, 62, 63, 64, 65, 66
sT0, sT1, sT2, sT3 = 67, 68, 69, 72
sEX = 70
sPL = 73
sCNT = 74
sK = 75
sSEL0, sSEL1, sONES = 76, 77, 78
sSPIN = 79
sCOL = 80
sST = 89
sFLB = 3
sHSA, sHSK = 14, 15
sHI = 97
def srd(b): return f"s[{b}:{b+3}]"
vLANE = 255

segs = []
def seg(name):
    s = Seg(name); segs.append(s); return s

def stamp(S, k):
    if STAMP:
        S.e(f"s_memtime s[98:99]\ns_memrealtime s[100:101]\ns_waitcnt lgkmcnt(0)\nv_writelane_b32 v253, s98, {k}\nv_writelane_b32 v253, s100, {16+k}")
def stamp_out(S):
    if STAMP:
        S.e(f"""s_lshl_b32 s{sT0}, s2, 2
        s_add_u32 s{sT0}, s{sT0}, s{sW}
        s_lshl_b32 s{sT0}, s{sT0}, 8
        s_add_u32 s{sT0}, s{sT0}, {ST_OFF}
        v_lshlrev_b32 v0, 2, v{vLANE}
        buffer_store_dword v253, v0, {srd(sWs)}, s{sT0} offen
        s_waitcnt vmcnt(0)""")
        if "--dbgout" in sys.argv:
            wg = 0 if "ffn" in S.name else 8
            sel = (1, 2, 8, 10, 4, 6, 7) if wg == 0 else (1, 3, 5, 6, 7, 8)
            S.e(f"s_lshl_b32 s{sT0}, s2, 2\ns_add_u32 s{sT0}, s{sT0}, s{sW}\ns_cmp_lg_u32 s{sT0}, {4*wg}\ns_cbranch_scc1 L_nd{wg}\nv_readlane_b32 s{sT0}, v253, 16\nv_mov_b32 v0, 0")
            for i, k in enumerate(sel):
                S.e(f"v_readlane_b32 s{sT1}, v253, {16+k}\ns_sub_u32 s{sT1}, s{sT1}, s{sT0}\nv_mov_b32 v1, s{sT1}\nbuffer_store_short v1, v0, {srd(sDbg)}, 0 offen offset:{32 + (0 if wg == 0 else 16) + 2*i}\ns_waitcnt vmcnt(0)")
            S.e(f"L_nd{wg}:")

def mk_srd(S, b, lo, nbytes, add=None, shrink=False):
    if add is None:
        S.e(f"s_mov_b32 s{b}, s{lo}\ns_mov_b32 s{b+1}, s{lo+1}")
    else:
        S.e(f"s_add_u32 s{b}, s{lo}, s{add}\ns_addc_u32 s{b+1}, s{lo+1}, 0")
    S.e(f"s_mov_b32 s{b+2}, {nbytes}\ns_mov_b32 s{b+3}, 0x20000")
    if shrink: S.e(f"s_sub_u32 s{b+2}, s{b+2}, s{add}")

TX = 144
vXD0, vXD1, vXR0, vXR1 = TX, TX+1, TX+2, TX+3
vTID = TX + 4
vSTA = TX + 6
S = seg("entry")
S.e(f"""
s_cmp_ge_u32 s2, 256
s_cbranch_scc1 L_exit
s_load_dwordx16 s[4:19], s[0:1], 0
s_load_dwordx4 s[20:23], s[0:1], 64
s_load_dwordx2 s[24:25], s[0:1], 80
""")
if STAMP: S.e("s_memrealtime s[100:101]\ns_memtime s[98:99]")
S.e(f"""
v_lshrrev_b32 v1, 6, v0
v_and_b32 v{vLANE}, 63, v0
v_readfirstlane_b32 s{sW}, v1
s_and_b32 s{sT0}, s2, 7
s_lshr_b32 s{sT1}, s2, 3
s_and_b32 s{sROLE}, s{sT1}, 1
s_lshr_b32 s{sT1}, s{sT1}, 1
""")
lg = int(math.log2(NW))
S.e(f"""s_and_b32 s{sR}, s{sT0}, {16//NW - 1}
s_lshl_b32 s{sR}, s{sR}, {lg}
s_and_b32 s{sT2}, s{sT1}, {NW - 1}
s_add_u32 s{sR}, s{sR}, s{sT2}
s_and_b32 s{sS}, s{sT0}, {7 & ~(16//NW - 1)}
s_lshr_b32 s{sT2}, s{sT1}, {lg}
s_add_u32 s{sS}, s{sS}, s{sT2}
s_lshr_b32 s{sCNT}, s2, 3
s_lshl_b32 s{sM0}, s{sW}, 10
s_lshl_b32 s{sT0}, s{sR}, 7
s_lshl_b32 s{sT1}, s{sW}, 5
s_add_u32 s{sT0}, s{sT0}, s{sT1}
s_mul_i32 s{sXB}, s{sT0}, 1152
s_mul_i32 s{sT3}, s{sW}, 36864
v_mov_b32 v{vTID}, v0
v_lshrrev_b32 v1, 3, v{vLANE}
v_mul_u32_u24 v1, 1152, v1
v_lshrrev_b32 v2, 4, v{vLANE}
v_and_b32 v3, 7, v{vLANE}
v_xor_b32 v3, v3, v2
v_lshl_add_u32 v{vXD0}, v3, 4, v1
v_xor_b32 v{vXD1}, 64, v{vXD0}
s_lshl_b32 s{sT2}, s{sT2}, 1
s_add_u32 s{sT2}, s{sT2}, s{sROLE}
s_mul_i32 s{sT2}, s{sT2}, {147456 // NX}
s_mul_i32 s{sT0}, s{sR}, 147456
s_add_u32 s{sT2}, s{sT2}, s{sT0}
v_lshlrev_b32 v4, 7, v0
v_min_u32 v4, {147456 // NX - 128}, v4
s_waitcnt lgkmcnt(0)
""")
if STAMP: S.e(f"v_mov_b32 v253, 0\nv_writelane_b32 v253, s98, 0\nv_writelane_b32 v253, s100, 16")
mk_srd(S, sX, 4, 2048*1152)
for a_ in sys.argv:
    if a_.startswith("--diag-lat="):
        st = int(a_.split("=")[1])
        mk_srd(S, sWs, 24, 0x10000000)
        S.e(f"s_lshl_b32 s{sT0}, s2, 9\ns_add_u32 s{sT0}, s{sT0}, 0x4000000\ns_lshl_b32 s{sT1}, s{sW}, 7\ns_add_u32 s{sT0}, s{sT0}, s{sT1}")
        for i in range(8):
            S.e(f"buffer_load_dword v6, off, {srd(sWs)}, s{sT0}\ns_waitcnt vmcnt(0)\ns_add_u32 s{sT0}, s{sT0}, {st}")
vm = Q("vmcnt", 63)
if not NOPF:
    nl = 1152 // NX
    for i in range(-(-nl // 256)):
        if i: S.e(f"s_add_u32 s{sT2}, s{sT2}, 32768")
        if nl - 256*i < 256:
            S.e(f"s_cmp_ge_u32 s{sM0}, {((nl - 256*i + 63)//64)*1024}\ns_cbranch_scc1 L_nxpf")
            if i: S.e(f"v_min_u32 v4, {(nl - 256*i)*128 - 128}, v4")
        S.e(f"buffer_load_dword v5, v4, {srd(sX)}, s{sT2} offen")
    S.e("L_nxpf:")
sXM = sSPIN
def x_dma(S, vm, c):
    for o in range(4):
        S.e(f"""s_add_u32 m0, s{sXM}, {c*4096 + o*1024}
        s_add_u32 s{sOFF}, s{sXB}, {8*o*1152 + 128*c}
        buffer_load_dwordx4 v{vXD0 + (o & 1)}, {srd(sX)}, s{sOFF} offen lds""")
        vm.issue(("x", c))
S.e(f"s_mov_b32 s{sXM}, s{sT3}")
XPRE = 3
for c in range(XPRE): x_dma(S, vm, c)
mk_srd(S, sWs, 24, WS_BYTES)
S.e(f"""s_lshl_b32 s{sFLB}, s{sR}, 10
s_add_u32 s{sFLB}, s{sFLB}, {FL_OFF}
s_xor_b32 s{sT0}, s{sS}, {SK}
s_or_b32 s{sT0}, s{sT0}, s{sROLE}
s_or_b32 s{sT0}, s{sT0}, s{sW}
s_cbranch_scc1 L_nzero
v_lshlrev_b32 v1, 4, v{vLANE}
v_mov_b32 v8, 0
v_mov_b32 v9, 0
v_mov_b32 v10, 0
v_mov_b32 v11, 0
buffer_store_dwordx4 v[8:11], v1, {srd(sWs)}, s{sFLB} offen sc1
L_nzero:
""")
S.e(f"""
s_getpc_b64 s[{sEX}:{sEX+1}]
L_pc:
s_mul_i32 s{sT0}, s{sCNT}, (L_codeend-L_pc+4095)/4096*128
v_lshl_add_u32 v1, v{vLANE}, 7, s{sT0}
v_min_u32 v1, L_codeend-L_pc-16, v1
v_mov_b32 v3, s{sEX+1}
v_add_co_u32 v2, vcc, s{sEX}, v1
v_addc_co_u32 v3, vcc, 0, v3, vcc
s_cmp_lg_u32 s{sW}, 3
s_cbranch_scc1 L_ncpf
global_load_dword v{TX+5}, v[2:3], off
L_ncpf:
""")
mk_srd(S, sOut, 20, 2048*1152)
mk_srd(S, sDbg, 22, 256)
mk_srd(S, sWo, 12, 576*1152)
S.e(f"s_mul_i32 s{sT0}, s{sS}, {576*1152}")
mk_srd(S, sWb, 18, 576*1152, add=sT0)
S.e(f"""
s_mov_b32 s{sSEL0}, 0x3f80
s_mov_b32 s{sSEL1}, 0x3f800000
s_mov_b32 s{sONES}, 0x3f803f80
s_mov_b32 s{sHI}, 0xffff0000
s_mov_b32 s{sK}, {f2u(-LOG2E)}
v_and_b32 v1, 15, v{vLANE}
v_lshrrev_b32 v2, 3, v1
v_lshlrev_b32 v2, 10, v2
v_and_b32 v3, 7, v1
v_lshl_add_u32 v2, v3, 7, v2
v_lshrrev_b32 v1, 1, v1
v_lshrrev_b32 v3, 4, v{vLANE}
v_xor_b32 v1, v1, v3
v_lshl_add_u32 v2, v1, 4, v2
v_add_u32 v{vXR0}, s{sT3}, v2
v_xor_b32 v{vXR1}, 64, v{vXR0}
s_lshl_b32 s{sT3}, s{sS}, 7
""")
for q in range(7):
    S.e(f"s_add_u32 s{sT0}, s{sS}, {q+1}\ns_and_b32 s{sT0}, s{sT0}, 7\ns_lshl_b32 s{sCOL+q}, s{sT0}, 7")
S.e(f"s_mov_b32 s{sCOL+7}, 1024\ns_mov_b32 s{sCOL+8}, s{sT3}")
S.e(f"s_cmp_eq_u32 s{sROLE}, 1\ns_cbranch_scc1 L_att")
vm_entry = list(vm.q)

def x_read_stats(S, vm, T, hook=None):
    lq = Q("lgkmcnt", 15)
    def stats(c):
        S.e(lq.wait(lambda t: t <= c))
        for kk in range(2):
            for d in range(4):
                for rb in range(2):
                    r = 8*(2*c + kk) + 4*rb + d
                    first = (c == 0 and kk == 0 and d == 0)
                    S.e(f"v_dot2_f32_bf16 v{T+rb}, v{r}, s{sONES}, {'0' if first else 'v%d' % (T+rb)}")
                    S.e(f"v_dot2_f32_bf16 v{T+2+rb}, v{r}, v{r}, {'0' if first else 'v%d' % (T+2+rb)}")
    for c in range(9):
        S.e(vm.wait(lambda t: t[0] == "x" and t[1] <= c))
        if c + XPRE < 9: x_dma(S, vm, c + XPRE)
        for kk in range(2):
            for rb in range(2):
                r = 8*(2*c + kk) + 4*rb
                S.e(f"ds_read_b128 v[{r}:{r+3}], v{vXR0+kk} offset:{c*4096 + rb*2048}"); lq.issue(c)
        if c: stats(c - 1)
    if hook: hook()
    S.e("s_waitcnt lgkmcnt(0)\ns_barrier")
    lq.q = [8]
    return lambda: stats(8)

def ln_finish(S, T, alpha, items=(), centre_only=False):
    U = T + 12
    for op in ("v_permlane16_swap_b32", "v_permlane32_swap_b32"):
        for i in range(4): S.e(f"v_mov_b32 v{U+i}, v{T+i}")
        for i in range(4): S.e(f"{op} v{T+i}, v{U+i}")
        for i in range(4): S.e(f"v_add_f32 v{T+i}, v{T+i}, v{U+i}")
    for i in range(4): S.e(f"v_mul_f32 v{T+i}, {f2u(1.0/576)}, v{T+i}")
    for rb in range(2): S.e(f"v_fma_f32 v{T+2+rb}, -v{T+rb}, v{T+rb}, v{T+2+rb}")
    for rb in range(2): S.e(f"v_max_f32 v{T+2+rb}, 0, v{T+2+rb}")
    for rb in range(2): S.e(f"v_add_f32 v{T+2+rb}, {f2u(1e-5)}, v{T+2+rb}")
    for rb in range(2): S.e(f"v_rsq_f32 v{T+2+rb}, v{T+2+rb}")
    for rb in range(2): S.e(f"v_mul_f32 v{T+4+4*rb}, {f2u(alpha)}, v{T+2+rb}")
    for rb in range(2 * (not centre_only)): S.e(f"v_mul_f32_e64 v{T+6+4*rb}, -v{T+rb}, v{T+4+4*rb}")
    for rb in range(2 * (not centre_only)): S.e(f"v_mov_b32 v{T+5+4*rb}, v{T+4+4*rb}\nv_mov_b32 v{T+7+4*rb}, v{T+6+4*rb}")
    if centre_only:
        for rb in range(2): S.e(f"v_sub_f32 v{T+rb}, 0, v{T+rb}\nv_accvgpr_write_b32 a{201+rb}, v{T+4+4*rb}")
        assert U % 8 == 4
    t0, t1 = U, U + 2
    items = list(items); ni = len(items); done = 0
    for r in range(0, 144, 2):
        while done < ni and done*72 <= (r // 2)*ni*1.15: items[done](); done += 1
        a = T + 4 + 4*((r >> 2) & 1); b = a + 2
        if centre_only:
            m = T + ((r >> 2) & 1)
            S.e(f"""v_dot2_f32_bf16 v{t0}, v{r}, s{sSEL0}, v{m}
            v_dot2_f32_bf16 v{t0+1}, v{r}, s{sSEL1}, v{m}
            v_dot2_f32_bf16 v{t1}, v{r+1}, s{sSEL0}, v{m}
            v_dot2_f32_bf16 v{t1+1}, v{r+1}, s{sSEL1}, v{m}""")
            if r: S.e(f"v_cvt_pk_bf16_f32 v{r-2}, v{t0^4}, v{(t0^4)+1}\nv_cvt_pk_bf16_f32 v{r-1}, v{t1^4}, v{(t1^4)+1}")
            t0 ^= 4; t1 ^= 4
            if r == 142: S.e(f"v_cvt_pk_bf16_f32 v{r}, v{t0^4}, v{(t0^4)+1}\nv_cvt_pk_bf16_f32 v{r+1}, v{t1^4}, v{(t1^4)+1}")
            continue
        S.e(f"""v_lshlrev_b32 v{t0}, 16, v{r}
        v_and_b32 v{t0+1}, s{sHI}, v{r}
        v_lshlrev_b32 v{t1}, 16, v{r+1}
        v_and_b32 v{t1+1}, s{sHI}, v{r+1}
        v_pk_fma_f32 v[{t0}:{t0+1}], v[{t0}:{t0+1}], v[{a}:{a+1}], v[{b}:{b+1}]
        v_pk_fma_f32 v[{t1}:{t1+1}], v[{t1}:{t1+1}], v[{a}:{a+1}], v[{b}:{b+1}]
        v_cvt_pk_bf16_f32 v{r}, v{t0}, v{t0+1}
        v_cvt_pk_bf16_f32 v{r+1}, v{t1}, v{t1+1}""")

def tr_lane(S, dst, mode, t1):
    S.e(f"""
    v_bfe_u32 v{t1}, v{vLANE}, 2, 2
    v_lshlrev_b32 v{dst}, 6, v{t1}
    v_and_b32 v{t1}, 3, v{vLANE}
    v_lshl_add_u32 v{dst}, v{t1}, 3, v{dst}
    v_bfe_u32 v{t1}, v{vLANE}, 4, 1
    """)
    if mode == 'A':
        S.e(f"v_lshl_add_u32 v{dst}, v{t1}, 5, v{dst}\nv_lshrrev_b32 v{t1}, 4, v{vLANE}\nv_lshl_add_u32 v{dst}, v{t1}, 10, v{dst}")
    else:
        S.e(f"v_mul_u32_u24 v{t1}, 288, v{t1}\nv_add_u32 v{dst}, v{dst}, v{t1}\nv_lshrrev_b32 v{t1}, 5, v{vLANE}\nv_lshl_add_u32 v{dst}, v{t1}, 10, v{dst}")

def dma_lane(S, dst, stride, row, mode, t1):
    S.e(f"v_mul_u32_u24 v{dst}, {stride}, v{row}\nv_lshrrev_b32 v{t1}, 5, v{vLANE}\nv_lshl_add_u32 v{dst}, v{t1}, 6, v{dst}\nv_and_b32 v{t1}, 3, v{vLANE}\nv_lshl_add_u32 v{dst}, v{t1}, 4, v{dst}")
    if mode == 'A':
        S.e(f"s_and_b32 s{sT0}, s{sW}, 1\ns_lshl_b32 s{sT0}, s{sT0}, 5\nv_xor_b32 v{dst}, s{sT0}, v{dst}")
    else:
        S.e(f"v_and_b32 v{t1}, 16, v{vLANE}\nv_lshlrev_b32 v{t1}, 1, v{t1}\nv_xor_b32 v{dst}, v{dst}, v{t1}")

def spin_head(S, name):
    S.e(f"s_mov_b32 s{sSPIN}, 0\nL_{name}_spin:")
def spin_tail(S, name, sl=1):
    S.e(f"s_sleep {sl}\ns_add_u32 s{sSPIN}, s{sSPIN}, 1\ns_cmp_lt_u32 s{sSPIN}, 0x80000\ns_cbranch_scc1 L_{name}_spin")
def poll_all(S, name, srdb, vaddr, soff, v0, first_load=True):
    ld = f"buffer_load_dword v{v0}, v{vaddr}, {srd(srdb)}, {soff} offen sc1"
    if not first_load: S.e(f"v_cmp_eq_u32 vcc, 0x1010101, v{v0}\ns_cmp_eq_u64 vcc, -1\ns_cbranch_scc1 L_{name}_done")
    spin_head(S, name)
    S.e(f"{ld}\ns_waitcnt vmcnt(0)\nv_cmp_eq_u32 vcc, 0x1010101, v{v0}\ns_cmp_eq_u64 vcc, -1\ns_cbranch_scc1 L_{name}_done")
    spin_tail(S, name, 4)
    S.e(f"L_{name}_done:")
def poll_line(S, name, vaddr, off, v0):
    spin_head(S, name)
    S.e(f"""buffer_load_dwordx2 v[{v0}:{v0+1}], v{vaddr}, {srd(sWs)}, 0 offen offset:{off} sc1
    s_waitcnt vmcnt(0)
    v_readfirstlane_b32 s{sT0}, v{v0}
    v_readfirstlane_b32 s{sT1}, v{v0+1}
    s_and_b32 s{sT0}, s{sT0}, s{sT1}
    s_cmp_eq_u32 s{sT0}, 0x1010101
    s_cbranch_scc1 L_{name}_done""")
    spin_tail(S, name)
    S.e(f"L_{name}_done:")
def line_addr(S, dst, nl, kind, t1):
    S.e(f"""s_lshl_b32 s{sT0}, s{sW}, 3
    s_add_u32 s{sT0}, s{sT0}, s{sS}
    s_add_u32 s{sT0}, s{sT0}, {32*kind}
    v_lshl_add_u32 v{dst}, v{vLANE}, 7, s{sT0}
    v_mov_b32 v{t1}, {WS_BYTES}
    v_cmp_gt_u32 vcc, {nl}, v{vLANE}
    v_cndmask_b32 v{dst}, v{t1}, v{dst}, vcc""")
def line_store(vval, vaddr, soff): return f"buffer_store_byte v{vval}, v{vaddr}, {srd(sWs)}, s{soff} offen sc1"

def wave_max(S, v):
    for sh in (1, 2, 4, 8):
        S.e(f"v_max_f32_dpp v{v}, v{v}, v{v} row_shr:{sh} row_mask:0xf bank_mask:0xf")
    S.e(f"v_max_f32_dpp v{v}, v{v}, v{v} row_bcast:15 row_mask:0xa bank_mask:0xf")
    S.e(f"v_max_f32_dpp v{v}, v{v}, v{v} row_bcast:31 row_mask:0xc bank_mask:0xf")

def mf16(a, A, B, first):
    return f"v_mfma_f32_16x16x32_bf16 v[{a}:{a+3}], {A}, {B}, {'0' if first else 'v[%d:%d]' % (a, a+3)}"

FR = 144
DR = 4
def simple_gemm(S, nunits, rd, unit, pre_wait=None, post=None):
    lq = Q("lgkmcnt", 15)
    for j in range(DR):
        for x in rd(j): S.e(x); lq.issue(j)
    S.e(lq.wait(lambda t: t <= 0))
    if pre_wait: pre_wait(0)
    for i in range(nunits):
        m = unit(i); r = rd(i + DR) if i + DR < nunits else []
        S.e(m[0])
        if pre_wait and i + 1 < nunits: pre_wait(i + 1)
        if r: S.e(r[0]); lq.issue(i + DR)
        S.e(m[1])
        x = lq.wait(lambda t: t <= i + 1)
        if x: S.e(x)
        if r: S.e(r[1]); lq.issue(i + DR)
def frag(j): return FR + 4*(j % 8)
def trr(f, base, o1, o2, base2=None):
    return [f"ds_read_b64_tr_b16 a[{f}:{f+1}], v{base} offset:{o1}", f"ds_read_b64_tr_b16 a[{f+2}:{f+3}], v{base if base2 is None else base2} offset:{o2}"]

ACC = 144
HV = 208
vT = 224
vRA, vRB = 236, 242
vD1, vD2, vPS, vFA, vFV, vKA = 248, 249, 250, 251, 252, 254
SLOT = 24576
KVIMG = 5 * SLOT
aST = 240
RR, PT0, PT1, XR = 16, 48, 64, 80
vD3, vD4, vFR, vXRA, vOA, vLA, vLA8, vFL = 96, 97, 98, 99, 100, 101, 104, 102
vHS = 190

def hreg(k, rb):
    i = 8*k + 4*rb
    kind, reg = hdst(i)
    return f"{kind}[{reg}:{reg+3}]"
def hdst(i):
    if i < 112: return ('a', i)
    if i < 128: return ('v', HV + i - 112)
    return ('v', i - 128)

S = seg("ffn_pro")
vm = Q("vmcnt", 63); vm.q = list(vm_entry)
S.e(f"s_mul_i32 s{sT0}, s{sS}, 1152")
mk_srd(S, sWa, 16, 576*9216, add=sT0, shrink=True)
S.e(f"""s_cmp_eq_u32 s{sS}, {SK}
s_cselect_b32 s{sKV}, s8, s10
s_cselect_b32 s{sKV+1}, s9, s11
s_mov_b32 s{sKV+2}, {576*36}
s_mov_b32 s{sKV+3}, 0x20000
""")
t0, t1, t2 = vT, vT+1, vT+2
S.e(f"v_bfe_u32 v{t0}, v{vLANE}, 2, 3\nv_lshl_add_u32 v{t1}, s{sW}, 3, v{t0}")
dma_lane(S, vD1, 9216, t1, 'A', t2)
dma_lane(S, vD2, 1152, t1, 'B', t2)
tr_lane(S, vRA, 'A', t2); tr_lane(S, vRB, 'B', t2)
for b in (vRA, vRB):
    S.e(f"v_xor_b32 v{b+1}, 32, v{b}")
    for sg in (1, 2): S.e(f"v_add_u32 v{b+2*sg}, {2*sg*SLOT}, v{b}\nv_add_u32 v{b+2*sg+1}, {2*sg*SLOT}, v{b+1}")
S.e(f"""s_and_b32 s{sT0}, s{sW}, 1
s_lshr_b32 s{sT1}, s{sW}, 1
s_mul_i32 s{sT2}, s{sT0}, 18
s_lshl_b32 s{sEX}, s{sT1}, 3
s_add_u32 s{sT2}, s{sT2}, s{sEX}
v_add_u32 v{t1}, s{sT2}, v{t0}
""")
dma_lane(S, vT+3, 1152, t1, 'B', t2)
S.e(f"""v_accvgpr_write_b32 a{aST}, v{vT+3}
s_and_b32 s{sT0}, s{sW}, 1
s_mul_i32 s{sT0}, s{sT0}, 144
s_mul_i32 s{sT1}, s{sT1}, 36
s_add_u32 s{sT0}, s{sT0}, s{sT1}
s_add_u32 s{sT0}, s{sT0}, 16
v_lshrrev_b32 v{t1}, 2, v{t0}
v_mul_u32_u24 v{t1}, 72, v{t1}
v_bfe_u32 v{t2}, v{t0}, 1, 1
v_mul_u32_u24 v{t2}, 18, v{t2}
v_add_u32 v{t1}, v{t1}, v{t2}
v_and_b32 v{t2}, 1, v{t0}
v_add3_u32 v{t1}, v{t1}, v{t2}, s{sT0}
""")
dma_lane(S, vT+3, 1152, t1, 'B', t2)
S.e(f"""v_accvgpr_write_b32 a{aST+1}, v{vT+3}
s_lshl_b32 s{sT0}, s{sW}, 3
s_add_u32 s{sT0}, s{sT0}, s{sT3}
s_add_u32 s{sT0}, s{sT0}, s{sFLB}
v_mov_b32 v{t1}, s{sT0}
v_accvgpr_write_b32 a{aST+2}, v{t1}
s_lshl_b32 s{sT0}, s{sR}, 3
v_and_b32 v{t1}, 15, v{vLANE}
v_mul_u32_u24 v{t1}, 1152, v{t1}
v_add_u32 v{t1}, s{sXB}, v{t1}
v_bfe_u32 v{t2}, v{vLANE}, 4, 1
v_lshl_add_u32 v{t1}, v{t2}, 5, v{t1}
v_lshrrev_b32 v{t2}, 5, v{vLANE}
v_lshl_add_u32 v{t1}, v{t2}, 4, v{t1}
v_accvgpr_write_b32 a{aST+4}, v{t1}
s_lshl_b32 s{sT1}, s{sW}, 12
v_lshl_add_u32 v{vPS}, v{vLANE}, 4, s{sT1}
s_add_u32 s{sT0}, s{sT0}, s{sS}
s_mul_i32 s{sT0}, s{sT0}, 147456
s_add_u32 s{sT0}, s{sT0}, {P_OFF}
s_mul_i32 s{sPL}, s{sR}, {8*147456}
s_lshl_b32 s{sT1}, s{sS}, 14
s_add_u32 s{sPL}, s{sPL}, s{sT1}
s_add_u32 s{sPL}, s{sPL}, {P_OFF}
""")
for q in range(8): S.e(f"s_lshl_b32 s{sT1}, s{sCOL+q}, 7\ns_add_u32 s{sST+q}, s{sT1}, s{sT0}")
line_addr(S, vT+3, 1, 0, t1)
S.e(f"v_accvgpr_write_b32 a{aST+5}, v{vT+3}")
line_addr(S, vT+3, 2, 1, t1)
S.e(f"""v_accvgpr_write_b32 a{aST+6}, v{vT+3}
s_lshl_b32 s{sT0}, s{sR}, 1
s_add_u32 s{sT2}, s{sT0}, s{sS}
s_sub_u32 s{sT2}, s{sT2}, {SK}
s_and_b32 s{sT1}, s{sS}, 6
s_xor_b32 s{sT1}, s{sT1}, {SK}
s_or_b32 s{sT1}, s{sT1}, s{sW}
s_cselect_b32 s{sT2}, 1024, s{sT2}
s_cselect_b32 s{sT1}, 0, 16
v_lshl_add_u32 v{vFA}, v{vLANE}, 8, s{sT2}
v_lshlrev_b32 v{vHS}, 7, v{vLANE}
v_add_u32 v{vHS}, {KC_OFF}, v{vHS}
v_mov_b32 v{vHS+1}, {WS_BYTES}
v_cmp_gt_u32 vcc, s{sT1}, v{vLANE}
v_cndmask_b32 v{vHS}, v{vHS+1}, v{vHS}, vcc
s_mov_b32 s{sHSA}, s{sT0}
s_lshl_b32 s{sHSK}, s{sW}, 4
s_add_u32 s{sHSK}, s{sHSK}, s{sS}
v_mov_b32 v{vFV}, 1""")
aXR, aX8 = 224, 216
vXC = vT + 4
S.e(f"""v_lshrrev_b32 v{t1}, 4, v{vLANE}
v_lshrrev_b32 v{t2}, 5, v{vLANE}
v_xor_b32 v{t2}, v{t1}, v{t2}
v_lshlrev_b32 v{t2}, 4, v{t2}
v_xor_b32 v{t2}, v{vXR0}, v{t2}
v_and_b32 v{t1}, 1, v{t1}
v_lshl_add_u32 v{t2}, v{t1}, 3, v{t2}
s_lshl_b32 s{sT0}, s{sS}, 12
s_and_b32 s{sT1}, s{sS}, 1
s_lshl_b32 s{sT1}, s{sT1}, 6
v_xor_b32 v{vXC+4}, s{sT1}, v{t2}
v_xor_b32 v{vXC+5}, 32, v{vXC+4}
v_add_u32 v{vXC}, s{sT0}, v{t2}""")
for ct in range(1, 4): S.e(f"v_xor_b32 v{vXC+ct}, {32*ct}, v{vXC}")
def xres():
    for ct in range(4):
        for rb in range(2): S.e(f"ds_read_b64 a[{aXR+4*ct+2*rb}:{aXR+4*ct+2*rb+1}], v{vXC+ct} offset:{2048*rb}")
    for z in range(2):
        for rb in range(2): S.e(f"ds_read_b64 a[{aX8+4*z+2*rb}:{aX8+4*z+2*rb+1}], v{vXC+4+z} offset:{32768 + 2048*rb}")
fin = x_read_stats(S, vm, vT, xres)
stamp(S, 1)

def dma_src(T, n):
    P, sg = T // 3, T % 3
    if P < 9:  return sWa, vD1, (192*sg + 32*n) * 9216 + P*128, None
    if P < 18: return sWb, vD2, (192*sg + 32*n) * 1152, sCOL + P - 9
    extra = sT3 if P == 18 else None
    col = 0 if P == 18 else 8*128
    if sg == 2 and n >= 4: return sWo, vD4, 288*(n-4)*1152 + col, extra
    return sWo, vD3, 36*(6*sg + n)*1152 + col, extra
def dma_soff(T, n):
    _, _, c, extra = dma_src(T, n)
    return f"s_mov_b32 s{sOFF}, {c}" if extra is None else f"s_add_u32 s{sOFF}, s{extra}, {c}"
def dma_m0(T, n): return f"s_add_u32 m0, s{sM0}, {(T%6)*SLOT + n*4096}"
def dma_go(T, n):
    b, v, _, _ = dma_src(T, n)
    return f"buffer_load_dwordx4 v{v}, {srd(b)}, s{sOFF} offen lds"
KT = ACC + 8
S.e(f"""s_and_b32 s{sT0}, s{sS}, 6
s_cmp_lg_u32 s{sT0}, {SK}
s_cbranch_scc1 L_ffn_nokv1
v_mul_u32_u24 v{vKA}, 12, v{vLANE}
s_mul_i32 s{sT0}, s{sW}, 756""")
for j in range(7):
    S.e(f"buffer_load_dwordx3 v[{KT+4*j}:{KT+4*j+2}], v{vKA}, {srd(sKV)}, s{sT0} offen")
    if j < 6: S.e(f"s_add_u32 s{sT0}, s{sT0}, 3024")
S.e(f"""v_mul_u32_u24 v{KT+3}, 86, v{vLANE}
v_lshrrev_b32 v{KT+3}, 8, v{KT+3}
v_lshl_add_u32 v{vKA}, v{KT+3}, 2, v{vKA}
s_mul_i32 s{sT0}, s{sW}, 840
s_add_u32 s{sT0}, s{sT0}, {KVIMG}
v_add_u32 v{vKA}, s{sT0}, v{vKA}
L_ffn_nokv1:""")
def dma_item(T, n):
    def f(): S.e(dma_m0(T, n)); S.e(dma_soff(T, n)); S.e(dma_go(T, n)); vm.issue(("dma", T))
    return f
def kv_image():
    S.e(f"s_and_b32 s{sT0}, s{sS}, 6\ns_cmp_lg_u32 s{sT0}, {SK}\ns_cbranch_scc1 L_ffn_kvw\ns_waitcnt vmcnt({len(vm.q)})")
    for j in range(7):
        b = KT + 4*j
        if j: S.e(f"v_add_u32 v{vKA}, 3360, v{vKA}")
        S.e(f"ds_write2_b32 v{vKA}, v{b}, v{b+1} offset0:0 offset1:1\nds_write_b32 v{vKA}, v{b+2} offset:8")
    S.e("L_ffn_kvw:")
items = [dma_item(T, n) for T in range(2) for n in range(6)]
items.insert(9, kv_image)
for f in items[:6]: f()
fin()
for i in range(4): S.e(f"v_mov_b32 v{HV+i}, v{vT+i}")
ln_finish(S, HV, -LOG2E, items[6:])
stamp(S, 2)
S.e(f"s_and_b32 s{sT0}, s{sS}, 6\ns_cmp_lg_u32 s{sT0}, {SK}\ns_cbranch_scc1 L_ffn_main")

S = seg("ffn_kv")
S.e(f"""
v_bfe_u32 v{t0}, v{vLANE}, 2, 2
v_lshrrev_b32 v{t1}, 4, v{vLANE}
v_lshl_add_u32 v{t0}, v{t1}, 3, v{t0}
v_mul_u32_u24 v{t0}, 40, v{t0}
v_add_u32 v{vT+3}, {KVIMG+32}, v{t0}
v_and_b32 v{t1}, 3, v{vLANE}
v_lshl_add_u32 v{t0}, v{t1}, 3, v{t0}
v_add_u32 v{vKA}, {KVIMG}, v{t0}
s_waitcnt lgkmcnt(0)
s_barrier
s_cmp_eq_u32 s{sS}, {SV}
s_cbranch_scc1 L_ffn_v
""")
def kv_chain(S, swapped):
    def rd(j):
        k, ct = j // 2, j % 2
        return trr(frag(j), vKA if ct == 0 else vT+3, 1280*k, 1280*k + 160)
    def unit(j):
        k, ct = j // 2, j % 2
        out = []
        for q in range(2):
            rb = q ^ ct; w = f"a[{frag(j)}:{frag(j)+3}]"; x = f"v[{8*k+4*rb}:{8*k+4*rb+3}]"
            out.append(mf16(ACC + 8*ct + 4*rb, *((x, w) if swapped else (w, x)), k == 0))
        return out
    simple_gemm(S, 36, rd, unit)
kv_chain(S, False)
nrm = vT + 4
S.e(f"""
s_mul_i32 s{sT0}, s{sR}, {KV_IT}
v_and_b32 v{t0}, 15, v{vLANE}
v_lshrrev_b32 v{t1}, 5, v{vLANE}
v_lshlrev_b32 v{t1}, 9, v{t1}
v_lshl_add_u32 v{t1}, v{t0}, 4, v{t1}
v_bfe_u32 v{t2}, v{vLANE}, 4, 1
v_lshl_add_u32 v{t1}, v{t2}, 3, v{t1}
v_add_u32 v{t1}, s{sM0}, v{t1}
s_lshr_b32 s{sT1}, s{sW}, 1
s_lshl_b32 s{sT1}, s{sT1}, 8
s_and_b32 s{sT2}, s{sW}, 1
s_lshl_b32 s{sT2}, s{sT2}, 2
s_add_u32 s{sT1}, s{sT1}, s{sT2}
v_lshl_add_u32 v{t0}, v{t0}, 3, s{sT1}
v_cmp_gt_u32 vcc, 16, v{vLANE}
""")
for rb in range(2):
    for i in (0, 1, 2, 3, 8, 9): S.e(f"v_mul_f32 v{ACC+4*rb+i}, {f2u(-LN2)}, v{ACC+4*rb+i}")
for rb in range(2):
    a = ACC + 4*rb; p = ACC + 16 + 4*rb
    S.e(f"v_cvt_pk_bf16_f32 v{p}, v{a}, v{a+1}\nv_cvt_pk_bf16_f32 v{p+1}, v{a+2}, v{a+3}\nv_cvt_pk_bf16_f32 v{p+2}, v{a+8}, v{a+9}")
    S.e(f"buffer_store_dwordx2 v[{p}:{p+1}], v{t1}, {srd(sWs)}, s{sT0} offen offset:{512+256*rb} sc1")
S.e("s_mov_b64 exec, 0xffff")
for rb in range(2): S.e(f"buffer_store_dword v{ACC+18+4*rb}, v{t0}, {srd(sWs)}, s{sT0} offen offset:{128*rb} sc1")
S.e("s_mov_b64 exec, -1")
for rb in range(2):
    a = ACC + 4*rb; n = nrm + rb
    S.e(f"v_mul_f32 v{n}, v{a+8}, v{a+8}\nv_fmac_f32 v{n}, v{a+9}, v{a+9}\nv_cndmask_b32 v{n}, 0, v{n}, vcc")
    for i in range(4): S.e(f"v_fmac_f32 v{n}, v{a+i}, v{a+i}")
for op in ("v_permlane16_swap_b32", "v_permlane32_swap_b32"):
    for rb in range(2): S.e(f"v_mov_b32 v{nrm+2+rb}, v{nrm+rb}")
    for rb in range(2): S.e(f"{op} v{nrm+rb}, v{nrm+2+rb}")
    for rb in range(2): S.e(f"v_add_f32 v{nrm+rb}, v{nrm+rb}, v{nrm+2+rb}")
S.e(f"v_max_f32 v{nrm}, v{nrm}, v{nrm+1}")
wave_max(S, nrm)
S.e(f"""v_readlane_b32 s{sT1}, v{nrm}, 63
s_lshl_b32 s{sT0}, s{sR}, 2
s_add_u32 s{sT0}, s{sT0}, s{sW}
s_lshl_b32 s{sT0}, s{sT0}, 2
s_add_u32 s{sT0}, s{sT0}, {KN_OFF}
v_mov_b32 v{nrm}, s{sT1}
v_mov_b32 v{nrm+1}, 0
s_mov_b64 exec, 1
buffer_store_dword v{nrm}, v{nrm+1}, {srd(sWs)}, s{sT0} offen sc1
s_mov_b64 exec, -1
s_branch L_ffn_kvdone
""")
S = seg("ffn_v")
S.e("L_ffn_v:")
kv_chain(S, True)
S.e(f"""
s_mul_i32 s{sT0}, s{sR}, {KV_IT}
s_mul_i32 s{sT1}, s{sW}, {VT}
s_add_u32 s{sT0}, s{sT0}, s{sT1}
s_add_u32 s{sT0}, s{sT0}, {512+4096}
v_and_b32 v{t0}, 15, v{vLANE}
v_lshrrev_b32 v{t1}, 5, v{vLANE}
v_mul_u32_u24 v{t1}, 336, v{t1}
v_lshl_add_u32 v{t1}, v{t0}, 4, v{t1}
v_bfe_u32 v{t2}, v{vLANE}, 4, 1
v_lshl_add_u32 v{t1}, v{t2}, 3, v{t1}
v_cmp_eq_u32 vcc, 2, v{t0}
v_mov_b32 v{t2}, s{sONES}
v_cndmask_b32 v{t2}, 0, v{t2}, vcc
v_cmp_gt_u32 vcc, 2, v{t0}
""")
for i in range(16): S.e(f"v_mul_f32 v{ACC+i}, {f2u(-LN2)}, v{ACC+i}")
for i in range(8): S.e(f"v_cvt_pk_bf16_f32 v{ACC+16+i}, v{ACC+2*i}, v{ACC+2*i+1}")
for i in range(4, 8): S.e(f"v_cndmask_b32 v{ACC+16+i}, v{t2}, v{ACC+16+i}, vcc")
for rb in range(2): S.e(f"buffer_store_dwordx2 v[{ACC+16+2*rb}:{ACC+17+2*rb}], v{t1}, {srd(sWs)}, s{sT0} offen offset:{672*rb} sc1")
S.e("s_mov_b32 exec_lo, 0x1f001f\ns_mov_b32 exec_hi, 0x1f001f")
for rb in range(2): S.e(f"buffer_store_dwordx2 v[{ACC+20+2*rb}:{ACC+21+2*rb}], v{t1}, {srd(sWs)}, s{sT0} offen offset:{672*rb+256} sc1")
S.e("s_mov_b64 exec, -1")
S = seg("ffn_kvdone")
S.e("L_ffn_kvdone:")

S = seg("ffn_main")
S.e("L_ffn_main:")
stamp(S, 3)
NU = 18*72
lg = Q("lgkmcnt", 15)
def rd_ins(j):
    P = j // 72; T = j // 24; ks = (j % 24) >> 2; ct = j & 3
    slot = T % 6
    base = (vRA if P < 9 else vRB) + 2*(slot // 2) + (ct & 1)
    off = (slot % 2)*SLOT + ks*4096 + (ct >> 1)*512
    return trr(frag(j), base, off, off + (256 if P < 9 else 2048))
class Op:
    def __init__(self, cost, text, kind="v", tag=None, early=0, hd=None, label=None):
        self.cost, self.text, self.kind, self.tag, self.early, self.hd = cost, text, kind, tag, early, hd
def silu_ops(P):
    acc = ACC + 32*(P % 2); ops = []
    for g in range(16):
        ct, rb, d = g >> 2, (g >> 1) & 1, g & 1
        e = 8*ct + 4*rb + 2*d; ta = vT + 2*(g % 3); tb = ta + 1
        hi = 8*(2*P + (ct >> 1)) + 4*rb + 2*(ct & 1) + d
        kind, reg = hdst(hi)
        dst = reg if kind == 'v' else vT + 6 + (g % 3)
        ops += [Op(8, f"v_exp_f32 v{ta}, v{acc+e}"), Op(8, f"v_exp_f32 v{tb}, v{acc+e+1}"),
                Op(4, f"v_fma_f32 v{ta}, v{ta}, s{sK}, s{sK}"), Op(4, f"v_fma_f32 v{tb}, v{tb}, s{sK}, s{sK}"),
                Op(8, f"v_rcp_f32 v{ta}, v{ta}"), Op(8, f"v_rcp_f32 v{tb}, v{tb}"),
                Op(4, f"v_mul_f32 v{ta}, v{acc+e}, v{ta}"), Op(4, f"v_mul_f32 v{tb}, v{acc+e+1}, v{tb}"),
                Op(4, f"v_cvt_pk_bf16_f32 v{dst}, v{ta}, v{tb}", hd=hi if kind == 'v' else None)]
        if kind == 'a': ops.append(Op(4, f"v_accvgpr_write_b32 a{reg}, v{dst}", hd=hi))
    return ops
def store_ops(q):
    P = 9 + q; acc = ACC + 32*(P % 2); ops = []
    for ct in range(4):
        t = vT + 4*(ct % 3)
        for d in range(4): ops.append(Op(4, f"v_cvt_pk_bf16_f32 v{t+d}, v{acc+8*ct+2*d}, v{acc+8*ct+2*d+1}"))
        ops.append(Op(24, f"buffer_store_dwordx4 v[{t}:{t+3}], v{vPS}, {srd(sWs)}, s{sST+q} offen offset:{1024*ct} sc1", "big", ("st", q)))
    return ops
stubs = []
def poll_op(early): return [Op(8, f"buffer_load_dwordx2 v[{vFL}:{vFL+1}], v{vFR}, {srd(sWs)}, 0 offen sc1", "big", ("fl",), early)]
def check_ops(qp, PT, early, mid=()):
    ops = [Op(0, f"s_sub_u32 s{sT0}, s{sS}, {qp+1}", "s", early=early), Op(0, f"s_and_b32 s{sT0}, s{sT0}, 7", "s"),
           Op(0, f"s_lshl_b32 s{sT1}, s{sT0}, 3", "s"), Op(0, f"s_mul_i32 s{sT0}, s{sT0}, 147456", "s"), Op(0, f"s_add_u32 s{sT0}, s{sT0}, s{sPL}", "s"),
           Op(0, None, "vmwait", lambda t: t == ("fl",), early + 10), *mid,
           Op(4, f"v_readfirstlane_b32 s{sF}, v{vFL}"), Op(4, f"v_readfirstlane_b32 s{sF+1}, v{vFL+1}"),
           Op(16, f"s_lshr_b64 s[{sF}:{sF+1}], s[{sF}:{sF+1}], s{sT1}\ns_and_b32 s{sF}, s{sF}, 0xff\ns_cbranch_scc0 L_chk{qp}\nL_chk{qp}_ok:", "blk")]
    stubs.append(qp)
    for ct in range(4):
        ops.append(Op(8, f"buffer_load_dwordx4 v[{PT+4*ct}:{PT+4*ct+3}], v{vPS}, {srd(sWs)}, s{sT0} offen offset:{1024*ct} sc1", "big", ("pl", qp)))
    return ops
def add_ops(qp, PT, early):
    ops = [Op(0, None, "vmwait", lambda t: t == ("pl", qp), early)]
    for d in range(16):
        ta = vT + 2*(d % 2); e = RR + 2*d
        ops += [Op(4, f"v_lshlrev_b32 v{ta}, 16, v{PT+d}"), Op(4, f"v_and_b32 v{ta+1}, s{sHI}, v{PT+d}"),
                Op(4, f"v_add_f32 v{e}, v{e}, v{ta}"), Op(4, f"v_add_f32 v{e+1}, v{e+1}, v{ta+1}")]
    return ops
def pos_ops(q):
    ops = []
    PT = lambda qp: PT1 if qp & 1 else PT0
    if q == 1:
        for i, r in enumerate((vD3, vD4, vFR, None, vOA, vLA, vLA8)):
            if r: ops.append(Op(4, f"v_accvgpr_read_b32 v{r}, a{aST+i}"))
    ops += store_ops(q - 1)
    if q >= 3: ops += poll_op(0)
    fill = []
    if q == 2:
        for d in range(16):
            ta = vT + (d % 2)
            fill += [Op(4, f"v_accvgpr_read_b32 v{ta}, a{aXR+d}"), Op(4, f"v_lshlrev_b32 v{RR+2*d}, 16, v{ta}"), Op(4, f"v_and_b32 v{RR+2*d+1}, s{sHI}, v{ta}")]
    if q >= 4: fill = add_ops(q - 4, PT(q - 4), 0)
    if q <= 7: flag = [Op(0, f"s_add_u32 s{sT2}, s{sFLB}, s{sCOL+q-1}", "s"), Op(8, line_store(vFV, vLA, sT2), "big", ("flag",))]
    else: flag = [Op(8, line_store(vFV, vLA8, sFLB), "big", ("flag",))]
    ops += fill[:37]
    if q >= 3: ops += check_ops(q - 3, PT(q - 3), 84, flag)
    else: ops += [Op(0, None, "vmwait", lambda t: t == ("st", q - 1), 100)] + flag
    if q == 8: ops += fill[37:53] + poll_op(0) + fill[53:]
    else: ops += fill[37:]
    return ops
def hs_sites(P):
    if 1 <= P <= 8: S.e(f"s_cmp_eq_u32 s{sHSK}, {P-1}\ns_cbranch_scc1 L_hsl{P}\nL_hsl{P}_ok:")
    if 3 <= P <= 10: S.e(f"s_cmp_eq_u32 s{sHSK}, {P-3}\ns_cbranch_scc1 L_hsc{P}\nL_hsc{P}_ok:")
hdone = set()
def put(o):
    if o.kind == "vmwait":
        x = vm.wait(o.tag)
        if x: S.e(x)
        return
    S.e(o.text)
    if o.kind == "big": vm.issue(o.tag)
    if o.hd is not None: hdone.add(o.hd)
S.e(vm.wait(lambda t: t == ("dma", 0))); S.e("s_barrier")
rq = [(j, h) for j in range(NU) for h in range(2)]
rp = 0
for _ in range(2*DR):
    j, h = rq[rp]; S.e(rd_ins(j)[h]); lg.issue(j); rp += 1
S.e(lg.wait(lambda t: t <= 0))
dq = [(T, n) for T in (2, 3, 4) for n in range(6)]
owed = 0
est = 0; est_p = []
m0_set = None
for P in range(18):
    phaseA = 1 <= P <= 9
    ops = [] if P == 0 else (silu_ops(P-1) if phaseA else pos_ops(P - 9))
    ntot = len(ops); oi = 0
    G0, G1 = 3, (143 if P < 9 else 132)
    acc = ACC + 32*(P % 2)
    e0 = est
    if P in (1, 5, 9, 11, 12, 15): stamp(S, 8 + (1, 5, 9, 11, 12, 15).index(P))
    for u in range(72):
        i = 72*P + u; k, ct = u >> 2, u & 3
        for h in range(2):
            G = 2*u + h
            rb = h ^ (ct & 1); a = acc + 8*ct + 4*rb
            if P < 9: b = f"v[{8*k+4*rb}:{8*k+4*rb+3}]"
            else:
                b = hreg(k, rb)
                assert all(8*k + 4*rb + d in hdone for d in range(4)), (P, u)
            S.e(mf16(a, f"a[{frag(i)}:{frag(i)+3}]", b, k == 0))
            cost = 8
            if G == 1: hs_sites(P)
            dma_now = None
            slot_free = True
            if h == 1:
                if i + 1 < NU:
                    assert rp >= 2*(i + 2), (P, u, rp)
                    x = lg.wait(lambda t: t <= i + 1)
                    if x: S.e(x); slot_free = False
            elif dq and m0_set == dq[0] and (u % 4 == 2 or (P == 0 and u % 2 == 0)):
                dma_now = dq.pop(0); S.e(dma_soff(*dma_now)); slot_free = False
            elif dq and (u % 4 == 1 or (P == 0 and u % 2 == 1)):
                S.e(dma_m0(*dq[0])); m0_set = dq[0]; slot_free = False
            if slot_free and oi < ntot and ops[oi].kind in ("s", "vmwait") and G >= ops[oi].early:
                put(ops[oi]); oi += 1
            if rp < len(rq) and rq[rp][0] <= i + DR: owed = sum(1 for z in rq[rp:rp+6] if 2*z[0] + z[1] <= 2*(i + DR) + h)
            else: owed = 0
            big = dma_now is not None
            if not big and not phaseA and oi < ntot and ops[oi].kind in ("big", "blk") and G >= max(G0, ops[oi].early) and owed <= 1:
                big = True
            if big and owed <= 1:
                nr = 0
            else:
                nr = min(owed, 2)
            for _ in range(nr):
                j, hh = rq[rp]
                if hh == 0 and j % 24 == 0:
                    T = j // 24
                    S.e(vm.wait(lambda t: t == ("dma", T))); S.e("s_barrier"); cost += 8
                    if T == 1:
                        S.e(f"buffer_atomic_add v{vFV}, v{vHS}, {srd(sWs)}, 0 offen sc1\nbuffer_store_byte v{vFV}, v{vFA}, {srd(sDbg)}, 0 offen sc1")
                        vm.issue(("flag",)); vm.issue(("flag",)); cost += 24
                        stamp(S, 14)
                    if T == 2: stamp(S, 15)
                    if T + 4 <= 57: dq += [(T + 4, n) for n in range(6)]
                S.e(rd_ins(j)[hh]); lg.issue(j); rp += 1; cost += 4
            if dma_now is not None:
                S.e(dma_go(*dma_now)); vm.issue(("dma", dma_now[0])); cost += 8
            elif big:
                cost += ops[oi].cost; put(ops[oi]); oi += 1
            if G >= G0:
                if phaseA:
                    tgt = -(-ntot*(G - G0 + 1) // (G1 - G0 + 1))
                    while oi < ntot and oi < tgt and (cost < 16 or (dma_now is None and cost + ops[oi].cost <= 24) or oi < tgt - 1):
                        cost += ops[oi].cost; put(ops[oi]); oi += 1
                else:
                    while oi < ntot and G >= ops[oi].early and ((ops[oi].kind in ("v", "s", "vmwait") and cost + 4 <= 16) or G == 143):
                        cost += max(4, ops[oi].cost); put(ops[oi]); oi += 1
            est += max(16, cost)
    assert oi == ntot, (P, oi, ntot)
    est_p.append(est - e0)
assert not dq
print("ffn stream estimate:", est, est_p, file=sys.stderr)

S = seg("ffn_tail")
stamp(S, 4)
acc = ACC + 32
for o in check_ops(6, PT0, 0): put(o)
def dot_add(R, P, n):
    for d in range(n):
        S.e(f"v_dot2_f32_bf16 v{R+2*d}, v{P+d}, s{sSEL0}, v{R+2*d}\nv_dot2_f32_bf16 v{R+2*d+1}, v{P+d}, s{sSEL1}, v{R+2*d+1}")
S.e(vm.wait(lambda t: t == ("pl", 5)))
dot_add(RR, PT1, 16)
for e in range(0, 32, 2): S.e(f"v_pk_add_f32 v[{acc+e}:{acc+e+1}], v[{acc+e}:{acc+e+1}], v[{RR+e}:{RR+e+1}]")
S.e(vm.wait(lambda t: t == ("pl", 6)))
dot_add(acc, PT0, 16)
S.e(f"s_cmp_ge_u32 s{sS}, 2\ns_cbranch_scc1 L_ffn_nox2")
S.e("s_barrier")
for T in (58, 59):
    for n in range(6):
        S.e(dma_m0(T, n)); S.e(dma_soff(T, n)); S.e(dma_go(T, n))
poll_line(S, "pp", vFR, 32, vT)
S.e(f"""s_mul_i32 s{sT0}, s{sR}, {8*147456}
s_lshl_b32 s{sT1}, s{sS}, 11
s_add_u32 s{sT0}, s{sT0}, s{sT1}
s_add_u32 s{sT0}, s{sT0}, {P_OFF + 8*16384}""")
q = Q("vmcnt", 63)
A3 = ACC
for sp in range(8):
    for k in range(2):
        r = 4*(2*sp + k)
        S.e(f"buffer_load_dwordx4 v[{r}:{r+3}], v{vPS}, {srd(sWs)}, s{sT0} offen offset:{1024*k} sc1"); q.issue(sp)
    if sp < 7: S.e(f"s_add_u32 s{sT0}, s{sT0}, 147456")
S.e(f"""s_lshl_b32 s{sT1}, s{sS}, 9""")
for i in range(4): S.e(f"v_add_u32 v{vT+4+i}, s{sT1}, v{vRB+2+i}")
for d in range(8):
    S.e(f"v_accvgpr_read_b32 v{XR+d}, a{aX8+d}")
for d in range(8):
    S.e(f"v_lshlrev_b32 v{A3+2*d}, 16, v{XR+d}\nv_and_b32 v{A3+2*d+1}, s{sHI}, v{XR+d}")
for sp in range(8):
    x = q.wait(lambda t: t <= sp)
    if x: S.e(x)
    for d in range(8):
        S.e(f"v_dot2_f32_bf16 v{A3+2*d}, v{8*sp+d}, s{sSEL0}, v{A3+2*d}\nv_dot2_f32_bf16 v{A3+2*d+1}, v{8*sp+d}, s{sSEL1}, v{A3+2*d+1}")
S.e("L_ffn_nox2:")
stamp(S, 5)
S.e("s_waitcnt vmcnt(0)\ns_barrier")
poll_line(S, "po", vFR, 64, vT)
stamp(S, 6)
S.e(f"""s_lshl_b32 s{sT0}, s{sR}, 2
s_add_u32 s{sT0}, s{sT0}, s{sW}
s_mul_i32 s{sT0}, s{sT0}, {36*1024}
s_add_u32 s{sT0}, s{sT0}, {O_OFF}
v_lshlrev_b32 v{vT+2}, 4, v{vLANE}
""")
oq = Q("vmcnt", 63)
def o_load(S, oq, k):
    S.e(f"buffer_load_dwordx4 a[{4*k}:{4*k+3}], v{vT+2}, {srd(sWs)}, s{sT0} offen offset:{1024*(k%4)} sc1"); oq.issue(k // 2)
    if k % 4 == 3 and k < 35: S.e(f"s_add_u32 s{sT0}, s{sT0}, 4096")
NPRE = 12
for k in range(NPRE): o_load(S, oq, k)
S.e(f"s_cmp_lt_u32 s{sS}, 2\ns_cbranch_scc1 L_ffn_o3")

def oproj(S, nct, oq0):
    oq = Q("vmcnt", 63); oq.q = list(oq0.q)
    nxt = [NPRE]
    def rd(j):
        k, ct = j // nct, j % nct
        if ct < 4:
            slot = k // 6; base = vRB + 2*(slot // 2) + (ct & 1); off = (slot % 2)*SLOT + (k % 6)*4096 + (ct >> 1)*512
        else:
            slot = 3 + k // 6; base = vT + 4 + 2*(slot // 2 - 1) + (ct & 1); off = (slot % 2)*SLOT + (k % 6)*4096
        return trr(frag(j), base, off, off + 2048)
    def areg(ct, rb): return (acc + 8*ct if ct < 4 else A3 + 8*(ct - 4)) + 4*rb
    def unit(j):
        k, ct = j // nct, j % nct
        return [mf16(areg(ct, h ^ (ct & 1)), f"a[{frag(j)}:{frag(j)+3}]", f"a[{8*k+4*(h ^ (ct & 1))}:{8*k+4*(h ^ (ct & 1))+3}]", False) for h in range(2)]
    def pre(j):
        k, ct = j // nct, j % nct
        if ct in (1, 2) and nxt[0] < 36: o_load(S, oq, nxt[0]); nxt[0] += 1
        if ct == 0:
            x = oq.wait(lambda t: t <= k)
            if x: S.e(x)
    simple_gemm(S, 18*nct, rd, unit, pre)
    S.e(f"s_add_u32 s{sT2}, s{sT3}, {16*1152}")
    if nct == 6: S.e(f"s_lshl_b32 s{sT0}, s{sS}, 6\ns_add_u32 s{sT0}, s{sT0}, 1024\ns_add_u32 s{sT1}, s{sT0}, {16*1152}")
    for c in range(nct // 2):
        for rb in range(2):
            p = 8*c + 4*rb
            for z in range(2):
                a = areg(2*c + z, rb)
                S.e(f"v_cvt_pk_bf16_f32 v{p+2*z}, v{a}, v{a+1}\nv_cvt_pk_bf16_f32 v{p+2*z+1}, v{a+2}, v{a+3}")
        for rb in range(2):
            p = 8*c + 4*rb
            S.e(f"v_permlane16_swap_b32 v{p}, v{p+2}\nv_permlane16_swap_b32 v{p+1}, v{p+3}")
        for rb in range(2):
            p = 8*c + 4*rb
            so = (sT2 if rb else sT3) if c < 2 else (sT1 if rb else sT0)
            S.e(f"buffer_store_dwordx4 v[{p}:{p+3}], v{vOA}, {srd(sOut)}, s{so} offen offset:{64*c if c < 2 else 0}")
S = seg("ffn_o2")
oproj(S, 4, oq)
S.e("s_branch L_ffn_end")
S = seg("ffn_o3")
S.e("L_ffn_o3:")
oproj(S, 6, oq)
S = seg("ffn_end")
S.e("L_ffn_end:")
if "--diag-delay" in sys.argv:
    S.e(f"s_mov_b32 s{sT0}, 1000\nL_dly:\ns_nop 15\ns_nop 7\ns_sub_u32 s{sT0}, s{sT0}, 1\ns_cmp_lg_u32 s{sT0}, 0\ns_cbranch_scc1 L_dly")
if STAMP: S.e("s_waitcnt vmcnt(0)")
stamp(S, 7)
stamp_out(S)
S.e("s_endpgm")
S = seg("ffn_stubs")
for qp in stubs:
    S.e(f"L_chk{qp}:")
    spin_head(S, f"chk{qp}")
    S.e(f"""buffer_load_dwordx2 v[{vFL}:{vFL+1}], v{vFR}, {srd(sWs)}, 0 offen sc1
    s_waitcnt vmcnt(0)
    v_readfirstlane_b32 s{sF}, v{vFL}
    v_readfirstlane_b32 s{sF+1}, v{vFL+1}
    s_lshr_b64 s[{sF}:{sF+1}], s[{sF}:{sF+1}], s{sT1}
    s_and_b32 s{sF}, s{sF}, 0xff
    s_cbranch_scc1 L_chk{qp}_ok""")
    spin_tail(S, f"chk{qp}")
    S.e(f"s_branch L_chk{qp}_ok")
for P in range(1, 9):
    S.e(f"L_hsl{P}:\nbuffer_load_ubyte a247, off, {srd(sDbg)}, s{sHSA} sc1\ns_branch L_hsl{P}_ok")
S.e("L_hs_sub:")
spin_head(S, "hs")
S.e(f"""v_accvgpr_read_b32 v{vFA}, a247
v_readfirstlane_b32 s{sT0}, v{vFA}
s_cmp_eq_u32 s{sT0}, 1
s_cbranch_scc1 L_hs_ret
buffer_load_ubyte a247, off, {srd(sDbg)}, s{sHSA} sc1
s_waitcnt vmcnt(0)""")
spin_tail(S, "hs")
S.e(f"L_hs_ret:")
for P in range(3, 10): S.e(f"s_cmp_eq_u32 s{sHSK}, {P-3}\ns_cbranch_scc1 L_hsc{P}_ok")
S.e("s_branch L_hsc10_ok")
for P in range(3, 11): S.e(f"L_hsc{P}:")
S.e("s_branch L_hs_sub")

QSH = 110592; QST = 152
SS, Q2V, CC, OO = 0, 64, 96, 184
K1B, VB, K2B = 16, 24, 40
vQA = 248
sPF = sKV
sW1 = sOut
S = seg("att_pro")
S.e("L_att:")
vm = Q("vmcnt", 63); vm.q = list(vm_entry)
S.e(f"s_lshl_b32 s{sHSA}, s{sR}, 7\ns_add_u32 s{sHSA}, s{sHSA}, {KC_OFF}\ns_cmp_lg_u32 s{sW}, 0\ns_cbranch_scc1 L_nsnap\nbuffer_load_dword a204, off, {srd(sWs)}, s{sHSA} sc1\nL_nsnap:")
S.e(f"s_mul_i32 s{sT0}, s{sS}, 144\ns_and_b32 s{sT2}, s{sT0}, 63\ns_and_b32 s{sT0}, s{sT0}, 0xffc0")
mk_srd(S, sWa, 6, 576*1152, add=sT0, shrink=True)
S.e(f"s_mul_i32 s{sT0}, s{sS}, 1152")
mk_srd(S, sPF, 16, 576*9216, add=sT0, shrink=True)
AT = TX + 8
t0, t1, t2 = AT+4, AT+5, AT+6
vDQ, vDQ2, vPFR, vPF = 168, 169, 170, 171
LPW = 144 // NW
t3 = AT + 7
S.e(f"""v_lshrrev_b32 v{t0}, 2, v{vLANE}
v_lshl_add_u32 v{t0}, s{sW}, 4, v{t0}
v_mul_u32_u24 v{t0}, 1152, v{t0}
v_lshrrev_b32 v{t1}, 5, v{vLANE}
v_lshlrev_b32 v{t2}, 1, v{t1}
v_xor_b32 v{t2}, v{t2}, v{vLANE}
v_and_b32 v{t2}, 3, v{t2}
v_lshl_add_u32 v{vDQ}, v{t2}, 4, v{t0}
v_mul_u32_u24 v{t0}, 3072, v{t1}
v_bfe_u32 v{t1}, v{vLANE}, 2, 2
v_lshl_add_u32 v{t0}, v{t1}, 6, v{t0}
v_bfe_u32 v{t1}, v{vLANE}, 4, 1
v_lshl_add_u32 v{t0}, v{t1}, 9, v{t0}
v_lshlrev_b32 v{t1}, 5, v{t1}
s_mul_i32 s{sT1}, s{sW}, 3072""")
for ct in range(5):
    S.e(f"""v_and_b32 v{t2}, {3 if ct < 4 else 1}, v{vLANE}
    v_lshl_add_u32 v{t2}, v{t2}, 3, s{sT2}
    v_add_u32 v{t2}, {32*ct}, v{t2}
    v_lshrrev_b32 v{t3}, 6, v{t2}
    v_lshl_add_u32 v{t3}, v{t3}, 10, v{t0}
    v_and_b32 v{t2}, 63, v{t2}
    v_xor_b32 v{t2}, v{t2}, v{t1}
    v_add_u32 v{vQA+ct}, v{t2}, v{t3}""")
S.e(f"""s_mov_b32 s{sPL}, s{sT1}
s_and_b32 s{sT0}, s{sR}, {NW-1}
s_lshl_b32 s{sT0}, s{sT0}, 2
s_add_u32 s{sT0}, s{sT0}, s{sW}
s_mul_i32 s{sT0}, s{sT0}, {LPW}
v_min_u32 v{254}, {min(LPW, 64) - 1}, v{vLANE}
v_add_u32 v254, s{sT0}, v254
""")
for i in range(64): S.e(f"v_mov_b32 v{OO+i}, 0")
fin = x_read_stats(S, vm, AT)
stamp(S, 1)
def wq_item(n):
    def f():
        m, t = n // 3, n % 3
        S.e(f"s_add_u32 m0, s{sPL}, {m*12288 + t*1024}\ns_mov_b32 s{sOFF}, {64*m*1152 + 64*t}\nbuffer_load_dwordx4 v{vDQ}, {srd(sWa)}, s{sOFF} offen lds"); vm.issue(("wq",))
    return f
items = [wq_item(n) for n in range(27)]
for f in items[:9]: f()
fin()
ln_finish(S, AT, LOG2E / math.sqrt(18.0), items[9:], centre_only=True)
stamp(S, 2)
S.e(vm.wait(lambda t: t == ("wq",))); S.e("s_barrier")
QA = 144
def rdq(j):
    k, ct = j // 5, j % 5
    r = trr(frag(j), vQA + ct, (k % 9)*6144, (k % 9)*6144 + 256)
    if k == 8: r[1] += f"\nv_add_u32 v{vQA+ct}, {9*6144}, v{vQA+ct}"
    return r
def unitq(j):
    k, ct = j // 5, j % 5
    return [mf16(QA + 8*ct + 4*(h ^ (j & 1)), f"a[{frag(j)}:{frag(j)+3}]", f"v[{8*k+4*(h ^ (j & 1))}:{8*k+4*(h ^ (j & 1))+3}]", k == 0) for h in range(2)]
def preq(j):
    if not NOPF and j in (10, 30, 50, 70): S.e(f"buffer_load_dword a200, v254, {srd(sPF)}, 0 offen offset:{128*((j + 10)//20)}")
S.e(f"v_accvgpr_write_b32 a203, v254\nv_mul_u32_u24 v254, 9216, v254")
simple_gemm(S, 90, rdq, unitq, preq)
stamp(S, 3)
cq = LOG2E / math.sqrt(18.0)
U = 96
vQW, vQR, vQR2, vKP = U, U+1, U+2, U+3
S.e(f"""s_mul_i32 s{sT0}, s{sW}, {32*QST}
s_add_u32 s{sT0}, s{sT0}, {QSH}
v_and_b32 v{U+4}, 15, v{vLANE}
v_and_b32 v{vKP}, 7, v{vLANE}
v_lshlrev_b32 v{vKP}, 2, v{vKP}
v_accvgpr_read_b32 v{U+17}, a204
v_add_u32 v{U+17}, 32, v{U+17}
v_mul_u32_u24 v{U+4}, {QST}, v{U+4}
v_lshrrev_b32 v{U+5}, 4, v{vLANE}
v_lshl_add_u32 v{U+4}, v{U+5}, 3, v{U+4}
v_add_u32 v{vQW}, s{sT0}, v{U+4}
v_and_b32 v{U+4}, 31, v{vLANE}
v_mul_u32_u24 v{U+4}, {QST}, v{U+4}
v_add_u32 v{vQR2}, s{sT0}, v{U+4}
v_lshrrev_b32 v{U+5}, 5, v{vLANE}
v_lshl_add_u32 v{vQR}, v{U+5}, 4, v{vQR2}
v_accvgpr_read_b32 v{U+6}, a201
v_accvgpr_read_b32 v{U+7}, a201
v_accvgpr_read_b32 v{U+8}, a202
v_accvgpr_read_b32 v{U+9}, a202
""")
for e in range(0, 40, 2):
    z = U + 6 + 2*((e >> 2) & 1)
    S.e(f"v_pk_mul_f32 v[{QA+e}:{QA+e+1}], v[{QA+e}:{QA+e+1}], v[{z}:{z+1}]")
for ct in range(5):
    for rb in range(2):
        a = QA + 8*ct + 4*rb; p = 4*ct + 2*rb
        S.e(f"v_cvt_pk_bf16_f32 v{p}, v{a}, v{a+1}\nv_cvt_pk_bf16_f32 v{p+1}, v{a+2}, v{a+3}")
    if ct == 4: S.e("s_mov_b32 exec_hi, 0")
    for rb in range(2):
        p = 4*ct + 2*rb
        S.e(f"ds_write_b64 v{vQW}, v[{p}:{p+1}] offset:{16*QST*rb + 32*ct}")
S.e("s_mov_b64 exec, -1\ns_waitcnt lgkmcnt(0)")
Q1 = 32
for j in range(4):
    S.e(f"ds_read2_b32 v[{Q1+4*j}:{Q1+4*j+1}], v{vQR} offset0:{9*j} offset1:{9*j+1}")
    S.e(f"ds_read2_b32 v[{Q1+4*j+2}:{Q1+4*j+3}], v{vQR} offset0:{9*j+2} offset1:{9*j+3}")
    S.e(f"ds_read_b32 v{Q1+16+j}, v{vQR2} offset:{36*j+32}")
vK1, vV, vK2, vIDX, vKN, vKD, vOF, vHA = 160, 161, 162, 163, 164, 165, 166, 167
S.e(f"""v_lshlrev_b32 v{vK1}, 4, v{vLANE}
v_lshlrev_b32 v{vK2}, 3, v{vLANE}
v_and_b32 v{U+4}, 31, v{vLANE}
v_subrev_u32 v{U+5}, 20, v{U+4}
v_cmp_gt_u32 vcc, 8, v{U+5}
v_min_u32 v{U+4}, 19, v{U+4}
v_addc_co_u32 v{U+4}, vcc, 0, v{U+4}, vcc
v_lshrrev_b32 v{U+5}, 5, v{vLANE}
v_mul_u32_u24 v{U+5}, 336, v{U+5}
v_lshl_add_u32 v{vV}, v{U+4}, 4, v{U+5}
v_mov_b32 v{vIDX}, 0xdddddddd
v_lshlrev_b32 v{vKN}, 2, v{vLANE}
s_lshl_b32 s{sM0}, s{sW}, 12
v_cmp_gt_u32 vcc, 32, v{vLANE}
""")
for j in range(4):
    b = Q2V + 8*j
    for z in (1, 2, 5, 6): S.e(f"v_mov_b32 v{b+z}, 0")
S.e("s_waitcnt lgkmcnt(0)")
for j in range(4):
    b = Q2V + 8*j
    S.e(f"""v_cndmask_b32 v{b}, 0, v{Q1+16+j}, vcc
    v_cndmask_b32 v{b+3}, 0, v{Q1+16+j}, vcc
    v_cndmask_b32 v{b+4}, v{Q1+16+j}, v{b+1}, vcc
    v_cndmask_b32 v{b+7}, v{Q1+16+j}, v{b+1}, vcc""")
for i in range(16): S.e(f"v_accvgpr_write_b32 a{i}, v{Q1+i}")
stamp(S, 4)
S.e(f"s_cmp_lg_u32 s{sW}, 0\ns_cbranch_scc1 L_pk_done")
spin_head(S, "pk")
S.e(f"""buffer_load_dword v{U+16}, off, {srd(sWs)}, s{sHSA} sc1
s_waitcnt vmcnt(0)
v_cmp_eq_u32 vcc, v{U+16}, v{U+17}
s_cbranch_vccnz L_pk_done
s_and_b32 s{sT0}, s{sSPIN}, 15
s_cmp_lg_u32 s{sT0}, 15
s_cbranch_scc1 L_pk_next
buffer_load_dword v{U+16}, v{vKP}, {srd(sDbg)}, 0 offen sc1
s_waitcnt vmcnt(0)
v_cmp_ne_u32 vcc, 0x1010101, v{U+16}
s_cbranch_vccz L_pk_done
L_pk_next:""")
spin_tail(S, "pk", 2)
S.e("L_pk_done:")
S.e("s_barrier")
stamp(S, 5)
vm = Q("vmcnt", 63)
S.e(f"s_mov_b32 s{sOFF}, {KN_OFF}\nbuffer_load_dword v{U+4}, v{vKN}, {srd(sWs)}, s{sOFF} offen sc1"); vm.issue("kn")
def kv_blk(m): return f"s_add_u32 m0, s{sM0}, {m*16384}\ns_add_u32 s{sOFF}, s{sM0}, {m*16384}"
def kv_dma(z): return f"buffer_load_dwordx4 v{vK1}, {srd(sWs)}, s{sOFF} offen offset:{1024*z} sc1 lds"
for m in range(2):
    S.e(kv_blk(m))
    for z in range(4): S.e(kv_dma(z)); vm.issue(m)
qn = U + 8
for j in range(4): S.e(f"v_dot2_f32_bf16 v{qn+j}, v{Q2V+8*j}, v{Q2V+8*j}, 0")
for d in range(4):
    for j in range(4): S.e(f"v_dot2_f32_bf16 v{qn+j}, v{Q1+4*j+d}, v{Q1+4*j+d}, v{qn+j}")
for j in range(4): S.e(f"v_mov_b32 v{qn+4+j}, v{qn+j}")
for j in range(4): S.e(f"v_permlane32_swap_b32 v{qn+j}, v{qn+4+j}")
for j in range(4): S.e(f"v_add_f32 v{qn+j}, v{qn+j}, v{qn+4+j}")
S.e(f"v_max_f32 v{qn}, v{qn}, v{qn+1}\nv_max3_f32 v{qn}, v{qn}, v{qn+2}, v{qn+3}")
S.e(f"s_mov_b32 s{sF}, 0x8765\ns_mov_b32 s{sF+1}, 0x80000000")
for q in range(9):
    it = 4 + q
    S.e(f"s_lshr_b32 s{sT0}, s{sCOL+q}, 7\ns_lshl_b32 s{sT0}, s{sT0}, {4*(it % 8)}\ns_or_b32 s{sF + it//8}, s{sF + it//8}, s{sT0}")
S.e(f"s_mul_i32 s{sT0}, s{sS}, 0x1100000\ns_or_b32 s{sF+1}, s{sF+1}, s{sT0}")
S.e(f"v_accvgpr_read_b32 v{vPFR}, a203\nv_mov_b32 v{vPF}, v254")
line_addr(S, vOF, 8, 2, U+5)
S.e(vm.wait(lambda t: t == "kn"))
wave_max(S, U+4)
S.e(f"""v_mov_b32 v{U+5}, {f2u(-1.0 if FORCE_FB else 4096.0)}
v_readlane_b32 s{sT0}, v{U+4}, 63
v_mul_f32 v{qn}, s{sT0}, v{qn}
v_cmp_nle_f32 vcc, v{qn}, v{U+5}
""")
S.e(vm.wait(lambda t: t == 0))
S.e(f"""s_barrier
s_cbranch_vccnz L_att_fb
ds_read_b64 a[{K2B}:{K2B+1}], v{vK2}
ds_read_b128 a[{K1B}:{K1B+3}], v{vK1} offset:512
s_mov_b32 s{sCNT}, 1
v_mov_b32 v{vKD}, v{vK1}
s_waitcnt lgkmcnt(0)
""")
stamp(S, 6)

def att_step(S, it, u, mode):
    j, t = u & 3, u >> 2
    s = SS + 16*j; e = SS + 16*((j-1) & 3); p = SS + 16*((j-2) & 3); o = OO + 16*((j-2) & 3)
    vb = VB + 8*(((u-2) >> 2) & 1)
    kb = K1B + 4*(t & 1); k2 = K2B + 2*(it & 1)
    base = it*KV_IT
    first = mode == 'peel' and it == 0
    def ex(a):
        if first and u == 0: return
        for i in range(4): S.e(f"v_exp_f32 v{e+a+i}, v{e+a+i}")
    pv = not (first and u < 2)
    pf = mode != 'fb' and not NOPF
    dmas = first
    c = f"v[{CC+16*j}:{CC+16*j+15}]" if mode == 'fb' else "0"
    S.e(f"v_mfma_f32_32x32x16_bf16 v[{s}:{s+15}], a[{kb}:{kb+3}], a[{4*j}:{4*j+3}], {c}")
    if j == 2: S.e("s_waitcnt lgkmcnt(0)")
    if mode != 'peel':
        if it == 1 and u == 1: S.e(f"s_add_u32 s{sCNT}, s{sCNT}, 1")
        if it == 1 and u == 15: S.e(f"s_cmp_lt_u32 s{sCNT}, 8")
    if pf and u == 4: S.e(f"s_and_b32 s{sT0}, s{sF}, 15")
    if pf and u == 5: S.e(f"s_lshl_b32 s{sT0}, s{sT0}, 7")
    if pf and u == 9: S.e(f"s_lshr_b64 s[{sF}:{sF+1}], s[{sF}:{sF+1}], 4")
    ex(0)
    q2 = Q2V + 8*j + 2*t
    S.e(f"v_mfma_f32_32x32x8_bf16 v[{s}:{s+15}], a[{k2}:{k2+1}], v[{q2}:{q2+1}], v[{s}:{s+15}]")
    ex(4)
    if pv: S.e(f"v_smfmac_f32_32x32x32_bf16 v[{o}:{o+15}], a[{vb}:{vb+3}], v[{p}:{p+7}], v{vIDX}")
    if dmas and u % 2 == 0: S.e(kv_blk(2 + u // 2))
    if mode == 'peel' and it == 1 and u == 0:
        S.e(vm.wait(lambda t: t == 1)); S.e("s_barrier")
    if pf and mode == 'loop' and it == 0:
        if u == 0: S.e(f"s_cmp_ge_u32 s{sCNT}, 2\ns_cselect_b32 s{sPF}, s{sWb}, s{sPF}")
        if u == 1: S.e(f"s_cselect_b32 s{sPF+1}, s{sWb+1}, s{sPF+1}\ns_cselect_b32 s{sPF+2}, s{sWb+2}, s{sPF+2}")
        if u == 2: S.e(f"s_cmp_ge_u32 s{sCNT}, 7")
        if u == 3: S.e(f"s_cselect_b32 s{sPF}, s{sWo}, s{sPF}\ns_cselect_b32 s{sPF+1}, s{sWo+1}, s{sPF+1}")
    vn = VB + 8*(t & 1)
    if j == 0: S.e(f"ds_read_b128 a[{vn}:{vn+3}], v{vV} offset:{base + 4608 + VT*t}")
    if j == 1: S.e(f"ds_read_b128 a[{vn+4}:{vn+7}], v{vV} offset:{base + 4608 + VT*t + 672}")
    if j == 2:
        kn = K1B + 4*((t+1) & 1)
        off = base + 512 + 1024*(t+1) if t < 3 else base + KV_IT + 512
        S.e(f"ds_read_b128 a[{kn}:{kn+3}], v{vK1} offset:{off}")
        if t == 2:
            k2n = K2B + 2*((it+1) & 1)
            S.e(f"ds_read_b64 a[{k2n}:{k2n+1}], v{vK2} offset:{base + KV_IT}")
    if j == 3 and it == 1 and t == 3:
        S.e(f"v_add_u32 v{vK1}, {2*KV_IT}, v{vK1}\nv_add_u32 v{vV}, {2*KV_IT}, v{vV}\nv_add_u32 v{vK2}, {2*KV_IT}, v{vK2}")
    if dmas: S.e(kv_dma((2*u) % 4).replace(f"v{vK1},", f"v{vKD},")); vm.issue(2 + u // 2)
    if pf and u == 7: S.e(f"buffer_load_dword a200, v{vPF}, {srd(sPF)}, s{sT0} offen"); vm.issue("pf")
    ex(8)
    if pv: S.e(f"v_smfmac_f32_32x32x32_bf16 v[{o}:{o+15}], a[{vb+4}:{vb+7}], v[{p+8}:{p+15}], v{vIDX}")
    if j == 3: S.e("s_waitcnt lgkmcnt(0)")
    if pf and mode == 'loop' and it == 0 and u == 1: S.e(f"s_cselect_b32 s{sT1}, 1152, s{sT2}")
    if pf and mode == 'loop' and it == 0 and u == 3: S.e(f"v_mul_u32_u24 v{vPF}, s{sT1}, v{vPFR}")
    if dmas: S.e(kv_dma((2*u + 1) % 4).replace(f"v{vK1},", f"v{vKD},")); vm.issue(2 + u // 2)
    ex(12)
S = seg("att_peel")
S.e(f"s_mov_b32 s{sT2}, 9216")
for it in range(2):
    for u in range(16): att_step(S, it, u, 'peel')
S.e(vm.wait(lambda t: t == 9)); S.e("s_barrier")
S = seg("att_loop")
S.e(".p2align 6\nL_att_loop:")
for it in range(2):
    for u in range(16): att_step(S, it, u, 'loop')
S.e("s_cbranch_scc1 L_att_loop")
S = seg("att_tail")
S.e("L_att_tail:")
stamp(S, 7)
vb = VB + 8
p = SS + 32; o = OO + 32; e = SS + 48
S.e(f"v_smfmac_f32_32x32x32_bf16 v[{o}:{o+15}], a[{vb}:{vb+3}], v[{p}:{p+7}], v{vIDX}")
for i in range(8): S.e(f"v_exp_f32 v{e+i}, v{e+i}")
S.e(f"v_smfmac_f32_32x32x32_bf16 v[{o}:{o+15}], a[{vb+4}:{vb+7}], v[{p+8}:{p+15}], v{vIDX}")
for i in range(8, 16): S.e(f"v_exp_f32 v{e+i}, v{e+i}")
S.e(f"""s_lshl_b32 s{sT0}, s{sR}, 2
s_add_u32 s{sT0}, s{sT0}, s{sW}
s_mul_i32 s{sT0}, s{sT0}, {36*1024}
s_add_u32 s{sT0}, s{sT0}, {O_OFF}""")
p = SS + 48; o = OO + 48
S.e(f"v_smfmac_f32_32x32x32_bf16 v[{o}:{o+15}], a[{vb}:{vb+3}], v[{p}:{p+7}], v{vIDX}")
S.e(f"""s_lshl_b32 s{sT1}, s{sS}, 12
s_add_u32 s{sT1}, s{sT1}, s{sT0}
v_bfe_u32 v{U+8}, v{vLANE}, 4, 1
v_lshlrev_b32 v{U+8}, 10, v{U+8}
v_lshrrev_b32 v{U+9}, 5, v{vLANE}
v_lshl_add_u32 v{U+8}, v{U+9}, 8, v{U+8}""")
S.e(f"v_smfmac_f32_32x32x32_bf16 v[{o}:{o+15}], a[{vb+4}:{vb+7}], v[{p+8}:{p+15}], v{vIDX}")
S.e(f"""s_lshr_b32 s{sT2}, s{sS}, 2
s_lshl_b32 s{sT2}, s{sT2}, 11
v_and_b32 v{U+9}, 15, v{vLANE}
v_lshl_add_u32 v{vK1}, v{U+9}, 4, v{U+8}
s_add_u32 s{sT0}, s{sT0}, s{sT2}
s_and_b32 s{sT2}, s{sS}, 3
s_lshl_b32 s{sT2}, s{sT2}, 8
s_add_u32 s{sT0}, s{sT0}, s{sT2}
s_add_u32 s{sT2}, s{sT0}, 32768
v_mov_b32 v{U+10}, 1
""")
for j in range(4):
    o = OO + 16*j; l = U + 2*j; P = 64 + 4*j
    S.e(f"v_mov_b32 v{l}, v{o+10}\nv_mov_b32 v{l+1}, v{o+10}\nv_permlane32_swap_b32 v{l}, v{l+1}\nv_rcp_f32 v{l}, v{l}\ns_nop 0\nv_mov_b32 v{l+1}, v{l}")
    for i in range(0, 10, 2): S.e(f"v_pk_mul_f32 v[{o+i}:{o+i+1}], v[{o+i}:{o+i+1}], v[{l}:{l+1}]")
    for d in range(4): S.e(f"v_cvt_pk_bf16_f32 v{P+d}, v{o+2*d}, v{o+2*d+1}")
    S.e(f"v_cvt_pk_bf16_f32 v{80+j}, v{o+8}, v{o+9}")
    S.e(f"buffer_store_dwordx4 v[{P}:{P+3}], v{vK1}, {srd(sWs)}, s{sT1} offen offset:{2048*(j >> 1) + 512*(j & 1)} sc1")
S.e(f"""s_mov_b32 exec_hi, 0
buffer_store_dwordx4 v[80:83], v{vK1}, {srd(sWs)}, s{sT2} offen sc1
s_mov_b64 exec, -1
s_waitcnt vmcnt(0)""")
S.e(line_store(U+10, vOF, sFLB))
stamp(S, 8)
stamp_out(S)
S.e("s_endpgm")

S = seg("att_fb")
S.e("L_att_fb:")
for m in range(2, 10):
    S.e(kv_blk(m))
    for z in range(4): S.e(kv_dma(z))
S.e(f"s_waitcnt vmcnt(0)\ns_barrier\ns_barrier\ns_mov_b32 s{sCNT}, 0")
mx = 172
for j in range(4): S.e(f"v_mov_b32 v{mx+j}, 0xff800000")
S.e(f"v_mov_b32 v{mx+4}, v{vK1}\nv_mov_b32 v{mx+5}, v{vK2}")
S = seg("att_fb_max")
S.e("L_att_fb_max:")
S.e(f"ds_read_b64 a[{K2B}:{K2B+1}], v{mx+5}")
for t in range(4): S.e(f"ds_read_b128 a[{44+4*t}:{47+4*t}], v{mx+4} offset:{512+1024*t}")
S.e(f"v_add_u32 v{mx+4}, {KV_IT}, v{mx+4}\nv_add_u32 v{mx+5}, {KV_IT}, v{mx+5}\ns_waitcnt lgkmcnt(0)")
for t in range(4):
    for j in range(4):
        s = SS + 16*j; q2 = Q2V + 8*j + 2*t
        S.e(f"v_mfma_f32_32x32x16_bf16 v[{s}:{s+15}], a[{44+4*t}:{47+4*t}], a[{4*j}:{4*j+3}], 0")
        S.e(f"v_mfma_f32_32x32x8_bf16 v[{s}:{s+15}], a[{K2B}:{K2B+1}], v[{q2}:{q2+1}], v[{s}:{s+15}]")
    for j in range(4):
        s = SS + 16*j
        for i in range(0, 16, 2): S.e(f"v_max3_f32 v{mx+j}, v{s+i}, v{s+i+1}, v{mx+j}")
S.e(f"s_add_u32 s{sCNT}, s{sCNT}, 1\ns_cmp_lt_u32 s{sCNT}, 16\ns_cbranch_scc1 L_att_fb_max")
S = seg("att_fb_init")
for j in range(4):
    S.e(f"v_mov_b32 v{mx+4}, v{mx+j}\nv_permlane32_swap_b32 v{mx+j}, v{mx+4}\nv_max_f32 v{mx+j}, v{mx+j}, v{mx+4}")
    for i in range(16): S.e(f"v_sub_f32 v{CC+16*j+i}, 0, v{mx+j}")
for i in range(32, 64): S.e(f"v_mov_b32 v{i}, 0")
for i in range(8): S.e(f"v_accvgpr_write_b32 a{VB+8+i}, 0")
S.e(f"""ds_read_b64 a[{K2B}:{K2B+1}], v{vK2}
ds_read_b128 a[{K1B}:{K1B+3}], v{vK1} offset:512
s_mov_b32 s{sCNT}, 0
s_waitcnt lgkmcnt(0)""")
S = seg("att_fb_loop")
S.e("L_att_fb_loop:")
for it in range(2):
    for u in range(16): att_step(S, it, u, 'fb')
S.e("s_cbranch_scc1 L_att_fb_loop\ns_branch L_att_tail")
S = seg("end")
S.e("L_exit:\ns_endpgm\n.p2align 6\nL_codeend:")

by = {s.name: s for s in segs}
prev = []
for s in segs:
    s.autopad(prev[-40:])
    prev = s.ins
    if s.padded: print(f"seg {s.name}: {s.padded} pads", file=sys.stderr)
paths = [["entry", "att_pro", "att_peel", "att_loop", "att_loop", "att_tail"],
         ["ffn_pro", "ffn_main"], ["ffn_kv", "ffn_kvdone"], ["ffn_tail", "ffn_o3"],
         ["att_fb_max", "att_fb_max"], ["att_fb_loop", "att_fb_loop", "att_tail"]]
for p in paths:
    seq = sum((by[n].ins for n in p), [])
    for i, miss, who in violations(seq):
        print("VIOLATION path", p, seq[i].text, "<-", who.text, miss, file=sys.stderr); sys.exit(1)

hdr = open("cdna_kernels/" + NAME + ".s.ref").read().split("; Override launch")[0]
out = hdr + "; Generated by a hand-written generator (dev/gen.py): one persistent launch, 128 FFN + 128 attention workgroups.\n"
out += "; @launch grid=(256,1,1) block=(256,1,1) lds=163840\n"
out += f""".amdgcn_target "amdgcn-amd-amdhsa--gfx950"
.text
.globl {NAME}_kernel
.p2align 8
.type {NAME}_kernel,@function
{NAME}_kernel:
"""
out += "".join(s.text() for s in segs)
out += f""".section .rodata,"a"
.p2align 6
.amdhsa_kernel {NAME}_kernel
  .amdhsa_next_free_vgpr 512
  .amdhsa_next_free_sgpr 102
  .amdhsa_accum_offset 256
  .amdhsa_group_segment_fixed_size 0
  .amdhsa_kernarg_size 88
  .amdhsa_user_sgpr_count 2
  .amdhsa_user_sgpr_kernarg_segment_ptr 1
  .amdhsa_system_sgpr_workgroup_id_x 1
.end_amdhsa_kernel
"""
dst = [a for a in sys.argv[1:] if not a.startswith("--")]
open(dst[0] if dst else "cdna_kernels/" + NAME + ".s", "w").write(out)
```

```python
import sys, math, struct
from asmlib import Seg, Q, I, violations

NAME = "parallel_sum__grouped_kv_mqa__dense_activation_silu__prompt"
STAMP = "--stamp" in sys.argv
FORCE_FB = "--force-fallback" in sys.argv
MAPPING = 2
for a in sys.argv:
    if a.startswith("--map="): MAPPING = int(a[6:])

def f2u(x): return struct.unpack("<I", struct.pack("<f", x))[0]
LOG2E = 1.4426950408889634
LN2 = 0.6931471805599453

NOPF = "--nopf" in sys.argv

VT = 1344
KV_IT = 512 + 4096 + 4*VT
KV_BYTES = 16 * KV_IT
KN_OFF = 0x28000
KC_OFF = 0x29000
FL_OFF = 0x2f000
O_OFF = 0x38000
P_OFF = 0x280000
ST_OFF = 0x2000000
WS_BYTES = 0x4000000
SK, SV = 0, 4
NW = {0: 16, 1: 8, 2: 4, 3: 2}[MAPPING]
NX = 32 // NW

sF = 26
sX, sWa, sWb, sWo, sKV, sOut, sDbg, sWs = 28, 32, 36, 40, 44, 48, 52, 56
sR, sS, sROLE, sW, sM0, sOFF, sXB = 60, 61, 62, 63, 64, 65, 66
sT0, sT1, sT2, sT3 = 67, 68, 69, 72
sEX = 70
sPL = 73
sCNT = 74
sK = 75
sSEL0, sSEL1, sONES = 76, 77, 78
sSPIN = 79
sCOL = 80
sST = 89
sFLB = 3
sHSA, sHSK = 14, 15
sHI = 97
def srd(b): return f"s[{b}:{b+3}]"
vLANE = 255

segs = []
def seg(name):
    s = Seg(name); segs.append(s); return s

def stamp(S, k):
    if STAMP:
        S.e(f"s_memtime s[98:99]\ns_memrealtime s[100:101]\ns_waitcnt lgkmcnt(0)\nv_writelane_b32 v253, s98, {k}\nv_writelane_b32 v253, s100, {16+k}")
def stamp_out(S):
    if STAMP:
        S.e(f"""s_lshl_b32 s{sT0}, s2, 2
        s_add_u32 s{sT0}, s{sT0}, s{sW}
        s_lshl_b32 s{sT0}, s{sT0}, 8
        s_add_u32 s{sT0}, s{sT0}, {ST_OFF}
        v_lshlrev_b32 v0, 2, v{vLANE}
        buffer_store_dword v253, v0, {srd(sWs)}, s{sT0} offen
        s_waitcnt vmcnt(0)""")
        if "--dbgout" in sys.argv:
            wg = 0 if "ffn" in S.name else 8
            sel = (1, 2, 8, 10, 4, 6, 7) if wg == 0 else (1, 3, 5, 6, 7, 8)
            S.e(f"s_lshl_b32 s{sT0}, s2, 2\ns_add_u32 s{sT0}, s{sT0}, s{sW}\ns_cmp_lg_u32 s{sT0}, {4*wg}\ns_cbranch_scc1 L_nd{wg}\nv_readlane_b32 s{sT0}, v253, 16\nv_mov_b32 v0, 0")
            for i, k in enumerate(sel):
                S.e(f"v_readlane_b32 s{sT1}, v253, {16+k}\ns_sub_u32 s{sT1}, s{sT1}, s{sT0}\nv_mov_b32 v1, s{sT1}\nbuffer_store_short v1, v0, {srd(sDbg)}, 0 offen offset:{32 + (0 if wg == 0 else 16) + 2*i}\ns_waitcnt vmcnt(0)")
            S.e(f"L_nd{wg}:")

SCC_R = ("s_cselect", "s_cbranch_scc", "s_addc")
def interleave(S, start, items):
    body = S.ins[start:]; n = len(body)
    ok = []; skip = None
    for i, x in enumerate(body):
        safe = skip is None
        for y in body[i:]:
            if y.kind == 'salu' and y.op.startswith(SCC_R): safe = False; break
            if y.kind == 'salu' and not y.op.startswith(("s_mov", "s_mul", "s_waitcnt", "s_getpc", "s_mem")): break
        if i and body[i-1].kind == 'salu' and body[i-1].op.startswith("s_getpc"): safe = False
        if x.label and i and not safe: pass
        ok.append(safe)
        if x.kind == 'salu' and x.op.startswith("s_cbranch"): skip = x.ops[0] + ":"
        if x.label and x.text.strip() == skip: skip = None
    out = []; k = 0
    for i, x in enumerate(body):
        if k < len(items) and ok[i] and not x.label and i*len(items) >= k*n:
            out += [I(l.strip()) for l in items[k].split("\n")]; k += 1
        out.append(x)
    assert k == len(items), (k, len(items))
    S.ins[start:] = out

def mk_srd(S, b, lo, nbytes, add=None, shrink=False):
    if add is None:
        S.e(f"s_mov_b32 s{b}, s{lo}\ns_mov_b32 s{b+1}, s{lo+1}")
    else:
        S.e(f"s_add_u32 s{b}, s{lo}, s{add}\ns_addc_u32 s{b+1}, s{lo+1}, 0")
    S.e(f"s_mov_b32 s{b+2}, {nbytes}\ns_mov_b32 s{b+3}, 0x20000")
    if shrink: S.e(f"s_sub_u32 s{b+2}, s{b+2}, s{add}")

TX = 144
vXD0, vXD1, vXR0, vXR1 = TX, TX+1, TX+2, TX+3
vTID = TX + 4
vSTA = TX + 6
S = seg("entry")
S.e(f"""
s_cmp_ge_u32 s2, 256
s_cbranch_scc1 L_exit
s_load_dwordx16 s[4:19], s[0:1], 0
s_load_dwordx4 s[20:23], s[0:1], 64
s_load_dwordx2 s[24:25], s[0:1], 80
""")
if STAMP: S.e("s_memrealtime s[100:101]\ns_memtime s[98:99]")
S.e(f"""
v_lshrrev_b32 v1, 6, v0
v_and_b32 v{vLANE}, 63, v0
v_readfirstlane_b32 s{sW}, v1
s_and_b32 s{sT0}, s2, 7
s_lshr_b32 s{sT1}, s2, 3
s_and_b32 s{sROLE}, s{sT1}, 1
s_lshr_b32 s{sT1}, s{sT1}, 1
""")
if not NOPF:
    S.e(f"""s_cmp_lg_u32 s{sW}, 3
    s_cbranch_scc1 L_ncp0
    s_getpc_b64 s[{sEX}:{sEX+1}]
    L_pc0:
    s_mul_i32 s{sT2}, s{sROLE}, L_att-L_pc0
    v_lshl_add_u32 v1, v{vLANE}, 7, s{sT2}
    v_mov_b32 v3, s{sEX+1}
    v_add_co_u32 v2, vcc, s{sEX}, v1
    v_addc_co_u32 v3, vcc, 0, v3, vcc
    global_load_dword v{TX+6}, v[2:3], off
    L_ncp0:""")
lg = int(math.log2(NW))
S.e(f"""s_and_b32 s{sR}, s{sT0}, {16//NW - 1}
s_lshl_b32 s{sR}, s{sR}, {lg}
s_and_b32 s{sT2}, s{sT1}, {NW - 1}
s_add_u32 s{sR}, s{sR}, s{sT2}
s_and_b32 s{sS}, s{sT0}, {7 & ~(16//NW - 1)}
s_lshr_b32 s{sT2}, s{sT1}, {lg}
s_add_u32 s{sS}, s{sS}, s{sT2}
s_lshr_b32 s{sCNT}, s2, 3
s_lshl_b32 s{sM0}, s{sW}, 10
s_lshl_b32 s{sT0}, s{sR}, 7
s_lshl_b32 s{sT1}, s{sW}, 5
s_add_u32 s{sT0}, s{sT0}, s{sT1}
s_mul_i32 s{sXB}, s{sT0}, 1152
s_mul_i32 s{sT3}, s{sW}, 36864
v_mov_b32 v{vTID}, v0
v_lshrrev_b32 v1, 3, v{vLANE}
v_mul_u32_u24 v1, 1152, v1
v_lshrrev_b32 v2, 4, v{vLANE}
v_and_b32 v3, 7, v{vLANE}
v_xor_b32 v3, v3, v2
v_lshl_add_u32 v{vXD0}, v3, 4, v1
v_xor_b32 v{vXD1}, 64, v{vXD0}
s_lshl_b32 s{sT2}, s{sT2}, 1
s_add_u32 s{sT2}, s{sT2}, s{sROLE}
s_mul_i32 s{sT2}, s{sT2}, {147456 // NX}
s_mul_i32 s{sT0}, s{sR}, 147456
s_add_u32 s{sT2}, s{sT2}, s{sT0}
v_lshlrev_b32 v4, 7, v0
s_waitcnt lgkmcnt(0)
""")
if STAMP: S.e(f"v_mov_b32 v253, 0\nv_writelane_b32 v253, s98, 0\nv_writelane_b32 v253, s100, 16")
mk_srd(S, sX, 4, 2048*1152)
for a_ in sys.argv:
    if a_.startswith("--diag-lat="):
        st = int(a_.split("=")[1])
        mk_srd(S, sWs, 24, 0x10000000)
        S.e(f"s_lshl_b32 s{sT0}, s2, 9\ns_add_u32 s{sT0}, s{sT0}, 0x4000000\ns_lshl_b32 s{sT1}, s{sW}, 7\ns_add_u32 s{sT0}, s{sT0}, s{sT1}")
        for i in range(8):
            S.e(f"buffer_load_dword v6, off, {srd(sWs)}, s{sT0}\ns_waitcnt vmcnt(0)\ns_add_u32 s{sT0}, s{sT0}, {st}")
vm = Q("vmcnt", 63)
if not NOPF:
    nl = 1152 // NX
    for i in range(-(-nl // 256)):
        if i: S.e(f"s_add_u32 s{sT2}, s{sT2}, 32768")
        if nl - 256*i < 256:
            S.e(f"v_cmp_gt_u32 vcc, {nl - 256*i}, v0\ns_and_saveexec_b64 s[{sEX}:{sEX+1}], vcc\ns_cbranch_execz L_nxpf")
        S.e(f"buffer_load_dword v5, v4, {srd(sX)}, s{sT2} offen")
    S.e(f"L_nxpf:\ns_mov_b64 exec, -1")
sXM = sSPIN
def x_items(vm, c):
    it = []
    for o in range(4):
        it.append(f"""s_add_u32 m0, s{sXM}, {c*4096 + o*1024}
        s_add_u32 s{sOFF}, s{sXB}, {8*o*1152 + 128*c}
        buffer_load_dwordx4 v{vXD0 + (o & 1)}, {srd(sX)}, s{sOFF} offen lds""")
        vm.issue(("x", c))
    return it
def x_dma(S, vm, c):
    for t in x_items(vm, c): S.e(t)
S.e(f"s_mov_b32 s{sXM}, s{sT3}")
XPRE = 4
for a_ in sys.argv:
    if a_.startswith('--xpre='): XPRE = int(a_[7:])
XST = '--xstamp' in sys.argv
for c in range(1): x_dma(S, vm, c)
if XST: stamp(S, 11)
mark = len(S.ins)
mk_srd(S, sWs, 24, WS_BYTES)
S.e(f"""s_lshl_b32 s{sFLB}, s{sR}, 11
s_add_u32 s{sFLB}, s{sFLB}, {FL_OFF}
s_xor_b32 s{sT0}, s{sS}, {SK}
s_or_b32 s{sT0}, s{sT0}, s{sROLE}
s_or_b32 s{sT0}, s{sT0}, s{sW}
s_cbranch_scc1 L_nzero
v_lshlrev_b32 v1, 4, v{vLANE}
v_mov_b32 v8, 0
v_mov_b32 v9, 0
v_mov_b32 v10, 0
v_mov_b32 v11, 0
buffer_store_dwordx4 v[8:11], v1, {srd(sWs)}, s{sFLB} offen sc1
buffer_store_dwordx4 v[8:11], v1, {srd(sWs)}, s{sFLB} offen offset:1024 sc1
L_nzero:
""")
S.e(f"""
s_getpc_b64 s[{sEX}:{sEX+1}]
L_pc:
s_mul_i32 s{sT0}, s{sCNT}, (L_codeend-L_pc+4095)/4096*128
v_lshl_add_u32 v1, v{vLANE}, 7, s{sT0}
v_min_u32 v1, L_codeend-L_pc-16, v1
v_mov_b32 v3, s{sEX+1}
v_add_co_u32 v2, vcc, s{sEX}, v1
v_addc_co_u32 v3, vcc, 0, v3, vcc
s_cmp_lg_u32 s{sW}, 2
s_cbranch_scc1 L_ncpf
global_load_dword v{TX+5}, v[2:3], off
L_ncpf:
""")
mk_srd(S, sOut, 20, 2048*1152)
mk_srd(S, sDbg, 22, 256)
mk_srd(S, sWo, 12, 576*1152)
S.e(f"s_mul_i32 s{sT0}, s{sS}, {576*1152}")
mk_srd(S, sWb, 18, 576*1152, add=sT0)
S.e(f"""
s_mov_b32 s{sSEL0}, 0x3f80
s_mov_b32 s{sSEL1}, 0x3f800000
s_mov_b32 s{sONES}, 0x3f803f80
s_mov_b32 s{sHI}, 0xffff0000
s_mov_b32 s{sK}, {f2u(-LOG2E)}
v_and_b32 v1, 15, v{vLANE}
v_lshrrev_b32 v2, 3, v1
v_lshlrev_b32 v2, 10, v2
v_and_b32 v3, 7, v1
v_lshl_add_u32 v2, v3, 7, v2
v_lshrrev_b32 v1, 1, v1
v_lshrrev_b32 v3, 4, v{vLANE}
v_xor_b32 v1, v1, v3
v_lshl_add_u32 v2, v1, 4, v2
v_add_u32 v{vXR0}, s{sT3}, v2
v_xor_b32 v{vXR1}, 64, v{vXR0}
s_lshl_b32 s{sT3}, s{sS}, 7
""")
for q in range(7):
    S.e(f"s_add_u32 s{sT0}, s{sS}, {q+1}\ns_and_b32 s{sT0}, s{sT0}, 7\ns_lshl_b32 s{sCOL+q}, s{sT0}, 7")
S.e(f"s_mov_b32 s{sCOL+7}, 1024\ns_mov_b32 s{sCOL+8}, s{sT3}")
interleave(S, mark, x_items(vm, 1))
S.e(f"s_cmp_eq_u32 s{sROLE}, 1\ns_cbranch_scc1 L_att")
vm_entry = list(vm.q)

def x_read_stats(S, vm, T, hook=None):
    lq = Q("lgkmcnt", 15)
    def stats(c):
        S.e(lq.wait(lambda t: t <= c))
        for kk in range(2):
            for d in range(4):
                for rb in range(2):
                    r = 8*(2*c + kk) + 4*rb + d
                    first = (c == 0 and kk == 0 and d == 0)
                    S.e(f"v_dot2_f32_bf16 v{T+rb}, v{r}, s{sONES}, {'0' if first else 'v%d' % (T+rb)}")
                    S.e(f"v_dot2_f32_bf16 v{T+2+rb}, v{r}, v{r}, {'0' if first else 'v%d' % (T+2+rb)}")
    for c in range(9):
        S.e(vm.wait(lambda t: t[0] == "x" and t[1] <= c))
        if XST and c in (0, 4, 8): stamp(S, 12 + c // 4 if c else 2)
        if c + XPRE < 9: x_dma(S, vm, c + XPRE)
        for kk in range(2):
            for rb in range(2):
                r = 8*(2*c + kk) + 4*rb
                S.e(f"ds_read_b128 v[{r}:{r+3}], v{vXR0+kk} offset:{c*4096 + rb*2048}"); lq.issue(c)
        if c: stats(c - 1)
    if hook: hook()
    S.e("s_waitcnt lgkmcnt(0)\ns_barrier")
    lq.q = [8]
    return lambda: stats(8)

def ln_stats(S, T):
    U = T + 12
    for op in ("v_permlane16_swap_b32", "v_permlane32_swap_b32"):
        for i in range(4): S.e(f"v_mov_b32 v{U+i}, v{T+i}")
        for i in range(4): S.e(f"{op} v{T+i}, v{U+i}")
        for i in range(4): S.e(f"v_add_f32 v{T+i}, v{T+i}, v{U+i}")
    for i in range(4): S.e(f"v_mul_f32 v{T+i}, {f2u(1.0/576)}, v{T+i}")
    for rb in range(2): S.e(f"v_fma_f32 v{T+2+rb}, -v{T+rb}, v{T+rb}, v{T+2+rb}")
    for rb in range(2): S.e(f"v_max_f32 v{T+2+rb}, 0, v{T+2+rb}")
    for rb in range(2): S.e(f"v_add_f32 v{T+2+rb}, {f2u(1e-5)}, v{T+2+rb}")
    for rb in range(2): S.e(f"v_rsq_f32 v{T+2+rb}, v{T+2+rb}")

def ln_norm(S, T, alpha, items=(), centre_only=False):
    U = T + 12
    for rb in range(2): S.e(f"v_mul_f32 v{T+4+4*rb}, {f2u(alpha)}, v{T+2+rb}")
    for rb in range(2 * (not centre_only)): S.e(f"v_mul_f32_e64 v{T+6+4*rb}, -v{T+rb}, v{T+4+4*rb}")
    for rb in range(2 * (not centre_only)): S.e(f"v_mov_b32 v{T+5+4*rb}, v{T+4+4*rb}\nv_mov_b32 v{T+7+4*rb}, v{T+6+4*rb}")
    if centre_only:
        for rb in range(2): S.e(f"v_sub_f32 v{T+rb}, 0, v{T+rb}\nv_accvgpr_write_b32 a{201+rb}, v{T+4+4*rb}")
        assert U % 8 == 4
    t0, t1 = U, U + 2
    items = list(items); ni = len(items); done = 0
    for r in range(0, 144, 2):
        while done < ni and done*72 <= (r // 2)*ni*1.15: items[done](); done += 1
        a = T + 4 + 4*((r >> 2) & 1); b = a + 2
        if centre_only:
            m = T + ((r >> 2) & 1)
            S.e(f"""v_dot2_f32_bf16 v{t0}, v{r}, s{sSEL0}, v{m}
            v_dot2_f32_bf16 v{t0+1}, v{r}, s{sSEL1}, v{m}
            v_dot2_f32_bf16 v{t1}, v{r+1}, s{sSEL0}, v{m}
            v_dot2_f32_bf16 v{t1+1}, v{r+1}, s{sSEL1}, v{m}""")
            if r: S.e(f"v_cvt_pk_bf16_f32 v{r-2}, v{t0^4}, v{(t0^4)+1}\nv_cvt_pk_bf16_f32 v{r-1}, v{t1^4}, v{(t1^4)+1}")
            t0 ^= 4; t1 ^= 4
            if r == 142: S.e(f"v_cvt_pk_bf16_f32 v{r}, v{t0^4}, v{(t0^4)+1}\nv_cvt_pk_bf16_f32 v{r+1}, v{t1^4}, v{(t1^4)+1}")
            continue
        S.e(f"""v_lshlrev_b32 v{t0}, 16, v{r}
        v_and_b32 v{t0+1}, s{sHI}, v{r}
        v_lshlrev_b32 v{t1}, 16, v{r+1}
        v_and_b32 v{t1+1}, s{sHI}, v{r+1}
        v_pk_fma_f32 v[{t0}:{t0+1}], v[{t0}:{t0+1}], v[{a}:{a+1}], v[{b}:{b+1}]
        v_pk_fma_f32 v[{t1}:{t1+1}], v[{t1}:{t1+1}], v[{a}:{a+1}], v[{b}:{b+1}]
        v_cvt_pk_bf16_f32 v{r}, v{t0}, v{t0+1}
        v_cvt_pk_bf16_f32 v{r+1}, v{t1}, v{t1+1}""")

def xres_lane(S, dst, t1):
    S.e(f"""v_lshrrev_b32 v{t1}, 4, v{vLANE}
    v_lshrrev_b32 v{dst}, 5, v{vLANE}
    v_xor_b32 v{dst}, v{t1}, v{dst}
    v_lshlrev_b32 v{dst}, 4, v{dst}
    v_xor_b32 v{dst}, v{vXR0}, v{dst}
    v_and_b32 v{t1}, 1, v{t1}
    v_lshl_add_u32 v{dst}, v{t1}, 3, v{dst}""")

def tr_lane(S, dst, mode, t1):
    S.e(f"""
    v_bfe_u32 v{t1}, v{vLANE}, 2, 2
    v_lshlrev_b32 v{dst}, 6, v{t1}
    v_and_b32 v{t1}, 3, v{vLANE}
    v_lshl_add_u32 v{dst}, v{t1}, 3, v{dst}
    v_bfe_u32 v{t1}, v{vLANE}, 4, 1
    """)
    if mode == 'A':
        S.e(f"v_lshl_add_u32 v{dst}, v{t1}, 5, v{dst}\nv_lshrrev_b32 v{t1}, 4, v{vLANE}\nv_lshl_add_u32 v{dst}, v{t1}, 10, v{dst}")
    else:
        S.e(f"v_mul_u32_u24 v{t1}, 288, v{t1}\nv_add_u32 v{dst}, v{dst}, v{t1}\nv_lshrrev_b32 v{t1}, 5, v{vLANE}\nv_lshl_add_u32 v{dst}, v{t1}, 10, v{dst}")

def dma_lane(S, dst, stride, row, mode, t1):
    S.e(f"v_mul_u32_u24 v{dst}, {stride}, v{row}\nv_lshrrev_b32 v{t1}, 5, v{vLANE}\nv_lshl_add_u32 v{dst}, v{t1}, 6, v{dst}\nv_and_b32 v{t1}, 3, v{vLANE}\nv_lshl_add_u32 v{dst}, v{t1}, 4, v{dst}")
    if mode == 'A':
        S.e(f"s_and_b32 s{sT0}, s{sW}, 1\ns_lshl_b32 s{sT0}, s{sT0}, 5\nv_xor_b32 v{dst}, s{sT0}, v{dst}")
    else:
        S.e(f"v_and_b32 v{t1}, 16, v{vLANE}\nv_lshlrev_b32 v{t1}, 1, v{t1}\nv_xor_b32 v{dst}, v{dst}, v{t1}")

def spin_head(S, name):
    S.e(f"s_mov_b32 s{sSPIN}, 0\nL_{name}_spin:")
def spin_tail(S, name, sl=1):
    S.e(f"s_sleep {sl}\ns_add_u32 s{sSPIN}, s{sSPIN}, 1\ns_cmp_lt_u32 s{sSPIN}, 0x80000\ns_cbranch_scc1 L_{name}_spin")
def poll_all(S, name, srdb, vaddr, soff, v0, first_load=True):
    ld = f"buffer_load_dword v{v0}, v{vaddr}, {srd(srdb)}, {soff} offen sc1"
    if not first_load: S.e(f"v_cmp_eq_u32 vcc, 0x1010101, v{v0}\ns_cmp_eq_u64 vcc, -1\ns_cbranch_scc1 L_{name}_done")
    spin_head(S, name)
    S.e(f"{ld}\ns_waitcnt vmcnt(0)\nv_cmp_eq_u32 vcc, 0x1010101, v{v0}\ns_cmp_eq_u64 vcc, -1\ns_cbranch_scc1 L_{name}_done")
    spin_tail(S, name, 4)
    S.e(f"L_{name}_done:")
def poll_line(S, name, vaddr, off, v0):
    spin_head(S, name)
    S.e(f"""buffer_load_dwordx2 v[{v0}:{v0+1}], v{vaddr}, {srd(sWs)}, 0 offen offset:{off} sc1
    s_waitcnt vmcnt(0)
    v_readfirstlane_b32 s{sT0}, v{v0}
    v_readfirstlane_b32 s{sT1}, v{v0+1}
    s_and_b32 s{sT0}, s{sT0}, s{sT1}
    s_cmp_eq_u32 s{sT0}, 0x1010101
    s_cbranch_scc1 L_{name}_done""")
    spin_tail(S, name)
    S.e(f"L_{name}_done:")
def line_addr(S, dst, nl, const, t1, add=sS):
    S.e(f"""s_lshl_b32 s{sT0}, s{sW}, 3
    s_add_u32 s{sT0}, s{sT0}, s{add}
    s_add_u32 s{sT0}, s{sT0}, {const}
    v_lshl_add_u32 v{dst}, v{vLANE}, 7, s{sT0}
    v_mov_b32 v{t1}, {WS_BYTES}
    v_cmp_gt_u32 vcc, {nl}, v{vLANE}
    v_cndmask_b32 v{dst}, v{t1}, v{dst}, vcc""")
def line_store(vval, vaddr, soff): return f"buffer_store_byte v{vval}, v{vaddr}, {srd(sWs)}, s{soff} offen sc1"

def wave_max(S, v):
    for sh in (1, 2, 4, 8):
        S.e(f"v_max_f32_dpp v{v}, v{v}, v{v} row_shr:{sh} row_mask:0xf bank_mask:0xf")
    S.e(f"v_max_f32_dpp v{v}, v{v}, v{v} row_bcast:15 row_mask:0xa bank_mask:0xf")
    S.e(f"v_max_f32_dpp v{v}, v{v}, v{v} row_bcast:31 row_mask:0xc bank_mask:0xf")

def mf16(a, A, B, first):
    return f"v_mfma_f32_16x16x32_bf16 v[{a}:{a+3}], {A}, {B}, {'0' if first else 'v[%d:%d]' % (a, a+3)}"

FR = 144
DR = 4
def simple_gemm(S, nunits, rd, unit, pre_wait=None, post=None):
    lq = Q("lgkmcnt", 15)
    for j in range(DR):
        for x in rd(j): S.e(x); lq.issue(j)
    S.e(lq.wait(lambda t: t <= 0))
    if pre_wait: pre_wait(0)
    for i in range(nunits):
        m = unit(i); r = rd(i + DR) if i + DR < nunits else []
        S.e(m[0])
        if pre_wait and i + 1 < nunits: pre_wait(i + 1)
        if r: S.e(r[0]); lq.issue(i + DR)
        S.e(m[1])
        x = lq.wait(lambda t: t <= i + 1)
        if x: S.e(x)
        if r: S.e(r[1]); lq.issue(i + DR)
        for x in m[2:]: S.e(x)
def frag(j): return FR + 4*(j % 8)
def trr(f, base, o1, o2, base2=None):
    return [f"ds_read_b64_tr_b16 a[{f}:{f+1}], v{base} offset:{o1}", f"ds_read_b64_tr_b16 a[{f+2}:{f+3}], v{base if base2 is None else base2} offset:{o2}"]

ACC = 144
HV = 208
vT = 224
vRA, vRB = 236, 242
vD1, vD2, vPS, vFA, vFV, vKA = 248, 249, 250, 251, 252, 254
SLOT = 24576
KVIMG = 5 * SLOT
aST = 240
RR, PT0, PT1, XR = 16, 48, 64, 80
vD3, vD4, vFR, vXRA, vOA, vLA, vLA8, vFL = 96, 97, 98, 99, 100, 101, 104, 102
vHS = 200

def hreg(k, rb):
    i = 8*k + 4*rb
    kind, reg = hdst(i)
    return f"{kind}[{reg}:{reg+3}]"
def hdst(i):
    if i < 112: return ('a', i)
    if i < 128: return ('v', HV + i - 112)
    return ('v', i - 128)

S = seg("ffn_pro")
vm = Q("vmcnt", 63); vm.q = list(vm_entry)
mark = len(S.ins)
S.e(f"s_mul_i32 s{sT0}, s{sS}, 1152")
mk_srd(S, sWa, 16, 576*9216, add=sT0, shrink=True)
S.e(f"""s_cmp_eq_u32 s{sS}, {SK}
s_cselect_b32 s{sKV}, s8, s10
s_cselect_b32 s{sKV+1}, s9, s11
s_mov_b32 s{sKV+2}, {576*36}
s_mov_b32 s{sKV+3}, 0x20000
""")
t0, t1, t2 = vT, vT+1, vT+2
S.e(f"v_bfe_u32 v{t0}, v{vLANE}, 2, 3\nv_lshl_add_u32 v{t1}, s{sW}, 3, v{t0}")
dma_lane(S, vD1, 9216, t1, 'A', t2)
dma_lane(S, vD2, 1152, t1, 'B', t2)
tr_lane(S, vRA, 'A', t2); tr_lane(S, vRB, 'B', t2)
for b in (vRA, vRB):
    S.e(f"v_xor_b32 v{b+1}, 32, v{b}")
    for sg in (1, 2): S.e(f"v_add_u32 v{b+2*sg}, {2*sg*SLOT}, v{b}\nv_add_u32 v{b+2*sg+1}, {2*sg*SLOT}, v{b+1}")
S.e(f"""
s_lshl_b32 s{sT0}, s{sW}, 3
s_add_u32 s{sT0}, s{sT0}, s{sT3}
s_add_u32 s{sT0}, s{sT0}, s{sFLB}
v_mov_b32 v{t1}, s{sT0}
v_accvgpr_write_b32 a{aST+2}, v{t1}
s_lshl_b32 s{sT0}, s{sR}, 3
v_and_b32 v{t1}, 15, v{vLANE}
v_mul_u32_u24 v{t1}, 1152, v{t1}
v_add_u32 v{t1}, s{sXB}, v{t1}
v_bfe_u32 v{t2}, v{vLANE}, 4, 1
v_lshl_add_u32 v{t1}, v{t2}, 5, v{t1}
v_lshrrev_b32 v{t2}, 5, v{vLANE}
v_lshl_add_u32 v{t1}, v{t2}, 4, v{t1}
v_accvgpr_write_b32 a{aST+4}, v{t1}
s_lshl_b32 s{sT1}, s{sW}, 12
v_lshl_add_u32 v{vPS}, v{vLANE}, 4, s{sT1}
s_add_u32 s{sT0}, s{sT0}, s{sS}
s_mul_i32 s{sT0}, s{sT0}, 147456
s_add_u32 s{sT0}, s{sT0}, {P_OFF}
s_mul_i32 s{sPL}, s{sR}, {8*147456}
s_lshl_b32 s{sT1}, s{sS}, 14
s_add_u32 s{sPL}, s{sPL}, s{sT1}
s_add_u32 s{sPL}, s{sPL}, {P_OFF}
""")
for q in range(8): S.e(f"s_lshl_b32 s{sT1}, s{sCOL+q}, 7\ns_add_u32 s{sST+q}, s{sT1}, s{sT0}")
line_addr(S, vT+3, 1, 0, t1)
S.e(f"v_accvgpr_write_b32 a{aST+5}, v{vT+3}")
S.e(f"s_lshr_b32 s{sT1}, s{sW}, 1\ns_lshl_b32 s{sT1}, s{sT1}, 9\ns_add_u32 s{sT1}, s{sT1}, s{sS}")
line_addr(S, vT+3, 4, 1024 + 32, t1, add=sT1)
S.e(f"""v_accvgpr_write_b32 a{aST+6}, v{vT+3}
s_lshl_b32 s{sT0}, s{sR}, 1
s_lshr_b32 s{sT2}, s{sS}, 2
s_add_u32 s{sT2}, s{sT2}, s{sT0}
s_cmp_lg_u32 s{sW}, 0
s_cselect_b32 s{sT2}, 1024, s{sT2}
s_cselect_b32 s{sT1}, 0, 16
v_lshl_add_u32 v{vFA}, v{vLANE}, 8, s{sT2}
v_lshlrev_b32 v{vHS}, 7, v{vLANE}
v_add_u32 v{vHS}, {KC_OFF}, v{vHS}
v_mov_b32 v{vHS+1}, {WS_BYTES}
v_cmp_gt_u32 vcc, s{sT1}, v{vLANE}
v_cndmask_b32 v{vHS}, v{vHS+1}, v{vHS}, vcc
s_mov_b32 s{sHSA}, s{sT0}
s_lshl_b32 s{sHSK}, s{sW}, 4
s_add_u32 s{sHSK}, s{sHSK}, s{sS}
v_mov_b32 v{vFV}, 1""")
aXR = 224
vXC = vT + 4
xres_lane(S, t2, t1)
S.e(f"s_lshl_b32 s{sT0}, s{sS}, 12\nv_add_u32 v{vXC}, s{sT0}, v{t2}")
for ct in range(1, 4): S.e(f"v_xor_b32 v{vXC+ct}, {32*ct}, v{vXC}")
LPW = 144 // NW
vW1P = vT + 8
LW1 = 192 // NW
S.e(f"""s_and_b32 s{sT0}, s{sR}, {NW-1}
s_lshl_b32 s{sT0}, s{sT0}, 2
s_add_u32 s{sT0}, s{sT0}, s{sW}
s_mul_i32 s{sT0}, s{sT0}, {LW1}
s_add_u32 s{sT0}, s{sT0}, 384
v_add_u32 v{t1}, s{sT0}, v{vLANE}
v_mul_u32_u24 v{vW1P}, 9216, v{t1}
v_cmp_lt_u32 vcc, 575, v{t1}
v_subrev_u32 v{t1}, {576*9216 - 128}, v{vW1P}
v_cndmask_b32 v{vW1P}, v{vW1P}, v{t1}, vcc
v_cmp_gt_u32 vcc, {LW1}, v{vLANE}
v_mov_b32 v{t1}, 0x40000000
v_cndmask_b32 v{vW1P}, v{t1}, v{vW1P}, vcc""")
interleave(S, mark, sum((x_items(vm, c) for c in range(2, XPRE)), []))
KT = ACC + 8
S.e(f"""s_and_b32 s{sT0}, s{sS}, 3
s_cbranch_scc1 L_ffn_nokv1
v_mul_u32_u24 v{vKA}, 12, v{vLANE}
s_mul_i32 s{sT0}, s{sW}, 756""")
for j in range(7):
    S.e(f"buffer_load_dwordx3 v[{KT+4*j}:{KT+4*j+2}], v{vKA}, {srd(sKV)}, s{sT0} offen")
    if j < 6: S.e(f"s_add_u32 s{sT0}, s{sT0}, 3024")
S.e(f"""v_mul_u32_u24 v{KT+3}, 86, v{vLANE}
v_lshrrev_b32 v{KT+3}, 8, v{KT+3}
v_lshl_add_u32 v{vKA}, v{KT+3}, 2, v{vKA}
s_mul_i32 s{sT0}, s{sW}, 840
s_add_u32 s{sT0}, s{sT0}, {KVIMG}
v_add_u32 v{vKA}, s{sT0}, v{vKA}
L_ffn_nokv1:""")
def xres():
    for ct in range(4):
        for rb in range(2): S.e(f"ds_read_b64 a[{aXR+4*ct+2*rb}:{aXR+4*ct+2*rb+1}], v{vXC+ct} offset:{2048*rb}")
fin = x_read_stats(S, vm, vT, xres)
stamp(S, 1)

def dma_src(T, n):
    P, sg = T // 3, T % 3
    if P < 9:  return sWa, vD1, (192*sg + 32*n) * 9216 + P*128, None
    if P < 18: return sWb, vD2, (192*sg + 32*n) * 1152, sCOL + P - 9
def dma_soff(T, n):
    _, _, c, extra = dma_src(T, n)
    return f"s_mov_b32 s{sOFF}, {c}" if extra is None else f"s_add_u32 s{sOFF}, s{extra}, {c}"
def dma_m0(T, n): return f"s_add_u32 m0, s{sM0}, {(T%6)*SLOT + n*4096}"
def dma_go(T, n):
    b, v, _, _ = dma_src(T, n)
    return f"buffer_load_dwordx4 v{v}, {srd(b)}, s{sOFF} offen lds"
def dma_item(T, n):
    def f(): S.e(dma_m0(T, n)); S.e(dma_soff(T, n)); S.e(dma_go(T, n)); vm.issue(("dma", T))
    return f
for n in range(6): dma_item(0, n)()
if not NOPF: S.e(f"buffer_load_dword a248, v{vW1P}, {srd(sWa)}, 0 offen")
fin()
for i in range(4): S.e(f"v_mov_b32 v{HV+i}, v{vT+i}")
ln_stats(S, HV)
S.e(f"s_and_b32 s{sT0}, s{sS}, 3\ns_cbranch_scc1 L_ffn_norm")

S = seg("ffn_kv")
CS, PK, ONE, VS = ACC + 16, ACC + 24, ACC + 36, ACC + 40
for j in range(7):
    b = KT + 4*j
    if j: S.e(f"v_add_u32 v{vKA}, 3360, v{vKA}")
    S.e(f"ds_write2_b32 v{vKA}, v{b}, v{b+1} offset0:0 offset1:1\nds_write_b32 v{vKA}, v{b+2} offset:8")
for rb in range(2): S.e(f"v_mul_f32 v{HV+4+rb}, v{HV+rb}, v{HV+2+rb}")
S.e(f"""
s_lshl_b32 s{sT0}, s{sW}, 8
s_add_u32 s{sT0}, s{sT0}, {6*SLOT}
v_and_b32 v{t0}, 15, v{vLANE}
v_lshl_add_u32 v{t0}, v{t0}, 2, s{sT0}
ds_write2_b32 v{t0}, v{HV+2}, v{HV+3} offset0:0 offset1:16
ds_write2_b32 v{t0}, v{HV+4}, v{HV+5} offset0:32 offset1:48
v_lshrrev_b32 v{t1}, 4, v{vLANE}
v_lshl_add_u32 v{vT+4}, v{t1}, 4, s{sT0}
v_bfe_u32 v{t0}, v{vLANE}, 2, 2
v_lshl_add_u32 v{t0}, v{t1}, 3, v{t0}
v_mul_u32_u24 v{t0}, 40, v{t0}
v_add_u32 v{vT+3}, {KVIMG+32}, v{t0}
v_and_b32 v{t1}, 3, v{vLANE}
v_lshl_add_u32 v{t0}, v{t1}, 3, v{t0}
v_add_u32 v{vKA}, {KVIMG}, v{t0}
""")
for i in range(4): S.e(f"v_mov_b32 v{ONE+i}, s{sONES}")
S.e(f"""s_waitcnt lgkmcnt(0)
s_barrier
s_cmp_eq_u32 s{sS}, {SV}
s_cbranch_scc1 L_ffn_v
""")
def kv_chain(S, swapped):
    def rd(j):
        k, ct = j // 2, j % 2
        return trr(frag(j), vKA if ct == 0 else vT+3, 1280*k, 1280*k + 160)
    def unit(j):
        k, ct = j // 2, j % 2
        out = []
        for q in range(2):
            rb = q ^ ct; w = f"a[{frag(j)}:{frag(j)+3}]"; x = f"v[{8*k+4*rb}:{8*k+4*rb+3}]"
            out.append(mf16(ACC + 8*ct + 4*rb, *((x, w) if swapped else (w, x)), k == 0))
        x = f"v[{ONE}:{ONE+3}]"
        out.append(mf16(CS + 4*ct, *((x, w) if swapped else (w, x)), k == 0))
        return out
    simple_gemm(S, 36, rd, unit)
kv_chain(S, False)
nrm = vT + 4
S.e(f"""
s_mul_i32 s{sT0}, s{sR}, {KV_IT}
v_and_b32 v{t0}, 15, v{vLANE}
v_lshrrev_b32 v{t1}, 5, v{vLANE}
v_lshlrev_b32 v{t1}, 9, v{t1}
v_lshl_add_u32 v{t1}, v{t0}, 4, v{t1}
v_bfe_u32 v{t2}, v{vLANE}, 4, 1
v_lshl_add_u32 v{t1}, v{t2}, 3, v{t1}
v_add_u32 v{t1}, s{sM0}, v{t1}
s_lshr_b32 s{sT1}, s{sW}, 1
s_lshl_b32 s{sT1}, s{sT1}, 8
s_and_b32 s{sT2}, s{sW}, 1
s_lshl_b32 s{sT2}, s{sT2}, 2
s_add_u32 s{sT1}, s{sT1}, s{sT2}
v_lshl_add_u32 v{t0}, v{t0}, 3, s{sT1}
v_cmp_gt_u32 vcc, 16, v{vLANE}
""")
for rb in range(2):
    for i in (0, 1, 2, 3, 8, 9): S.e(f"v_mul_f32 v{ACC+4*rb+i}, v{HV+2+rb}, v{ACC+4*rb+i}")
for rb in range(2):
    for i in (0, 1, 2, 3, 8, 9): S.e(f"v_fma_f32 v{ACC+4*rb+i}, -v{HV+4+rb}, v{CS + (i if i < 4 else i - 4)}, v{ACC+4*rb+i}")
for rb in range(2):
    a = ACC + 4*rb; p = PK + 4*rb
    S.e(f"v_cvt_pk_bf16_f32 v{p}, v{a}, v{a+1}\nv_cvt_pk_bf16_f32 v{p+1}, v{a+2}, v{a+3}\nv_cvt_pk_bf16_f32 v{p+2}, v{a+8}, v{a+9}")
    S.e(f"buffer_store_dwordx2 v[{p}:{p+1}], v{t1}, {srd(sWs)}, s{sT0} offen offset:{512+256*rb} sc1")
S.e("s_mov_b64 exec, 0xffff")
for rb in range(2): S.e(f"buffer_store_dword v{PK+2+4*rb}, v{t0}, {srd(sWs)}, s{sT0} offen offset:{128*rb} sc1")
S.e("s_mov_b64 exec, -1")
for rb in range(2):
    a = ACC + 4*rb; n = nrm + rb
    S.e(f"v_mul_f32 v{n}, v{a+8}, v{a+8}\nv_fmac_f32 v{n}, v{a+9}, v{a+9}\nv_cndmask_b32 v{n}, 0, v{n}, vcc")
    for i in range(4): S.e(f"v_fmac_f32 v{n}, v{a+i}, v{a+i}")
for op in ("v_permlane16_swap_b32", "v_permlane32_swap_b32"):
    for rb in range(2): S.e(f"v_mov_b32 v{nrm+2+rb}, v{nrm+rb}")
    for rb in range(2): S.e(f"{op} v{nrm+rb}, v{nrm+2+rb}")
    for rb in range(2): S.e(f"v_add_f32 v{nrm+rb}, v{nrm+rb}, v{nrm+2+rb}")
S.e(f"v_max_f32 v{nrm}, v{nrm}, v{nrm+1}")
wave_max(S, nrm)
S.e(f"""v_readlane_b32 s{sT1}, v{nrm}, 63
s_lshl_b32 s{sT0}, s{sR}, 2
s_add_u32 s{sT0}, s{sT0}, s{sW}
s_lshl_b32 s{sT0}, s{sT0}, 2
s_add_u32 s{sT0}, s{sT0}, {KN_OFF}
v_mov_b32 v{nrm}, s{sT1}
v_mov_b32 v{nrm+1}, 0
s_mov_b64 exec, 1
buffer_store_dword v{nrm}, v{nrm+1}, {srd(sWs)}, s{sT0} offen sc1
s_mov_b64 exec, -1
s_branch L_ffn_norm
""")
S = seg("ffn_v")
S.e("L_ffn_v:")
for z in range(4): S.e(f"ds_read_b128 v[{VS+4*z}:{VS+4*z+3}], v{vT+4} offset:{64*z}")
S.e("s_waitcnt lgkmcnt(0)")
kv_chain(S, True)
S.e(f"""
s_mul_i32 s{sT0}, s{sR}, {KV_IT}
s_mul_i32 s{sT1}, s{sW}, {VT}
s_add_u32 s{sT0}, s{sT0}, s{sT1}
s_add_u32 s{sT0}, s{sT0}, {512+4096}
v_and_b32 v{t0}, 15, v{vLANE}
v_lshrrev_b32 v{t1}, 5, v{vLANE}
v_mul_u32_u24 v{t1}, 336, v{t1}
v_lshl_add_u32 v{t1}, v{t0}, 4, v{t1}
v_bfe_u32 v{t2}, v{vLANE}, 4, 1
v_lshl_add_u32 v{t1}, v{t2}, 3, v{t1}
v_cmp_eq_u32 vcc, 2, v{t0}
v_mov_b32 v{t2}, s{sONES}
v_cndmask_b32 v{t2}, 0, v{t2}, vcc
v_cmp_gt_u32 vcc, 2, v{t0}
""")
for e in range(16): S.e(f"v_mul_f32 v{ACC+e}, v{VS + (e & 7)}, v{ACC+e}")
for e in range(16): S.e(f"v_fma_f32 v{ACC+e}, -v{VS + 8 + (e & 7)}, v{CS + 4*(e >> 3)}, v{ACC+e}")
for i in range(8): S.e(f"v_cvt_pk_bf16_f32 v{PK+i}, v{ACC+2*i}, v{ACC+2*i+1}")
for i in range(4, 8): S.e(f"v_cndmask_b32 v{PK+i}, v{t2}, v{PK+i}, vcc")
for rb in range(2): S.e(f"buffer_store_dwordx2 v[{PK+2*rb}:{PK+1+2*rb}], v{t1}, {srd(sWs)}, s{sT0} offen offset:{672*rb} sc1")
S.e("s_mov_b32 exec_lo, 0x1f001f\ns_mov_b32 exec_hi, 0x1f001f")
for rb in range(2): S.e(f"buffer_store_dwordx2 v[{PK+4+2*rb}:{PK+5+2*rb}], v{t1}, {srd(sWs)}, s{sT0} offen offset:{672*rb+256} sc1")
S.e("s_mov_b64 exec, -1")
S = seg("ffn_norm")
S.e("L_ffn_norm:")
if not XST: stamp(S, 14)
nq0 = len(vm.q)
def kv_signal():
    S.e(f"""s_and_b32 s{sT0}, s{sS}, 3
    s_cbranch_scc1 L_ffn_nosig
    s_waitcnt vmcnt({len(vm.q) - nq0})
    s_barrier
    buffer_atomic_add v{vFV}, v{vHS}, {srd(sWs)}, 0 offen sc1
    buffer_store_byte v{vFV}, v{vFA}, {srd(sDbg)}, 0 offen sc1
    L_ffn_nosig:""")
items = [dma_item(1, n) for n in range(6)]
items.insert(3, kv_signal)
ln_norm(S, HV, -LOG2E, items)
if not XST: stamp(S, 2)

S = seg("ffn_main")
S.e("L_ffn_main:")
stamp(S, 3)
NU = 18*72
lg = Q("lgkmcnt", 15)
def rd_ins(j):
    P = j // 72; T = j // 24; ks = (j % 24) >> 2; ct = j & 3
    slot = T % 6
    base = (vRA if P < 9 else vRB) + 2*(slot // 2) + (ct & 1)
    off = (slot % 2)*SLOT + ks*4096 + (ct >> 1)*512
    return trr(frag(j), base, off, off + (256 if P < 9 else 2048))
class Op:
    def __init__(self, cost, text, kind="v", tag=None, early=0, hd=None, label=None):
        self.cost, self.text, self.kind, self.tag, self.early, self.hd = cost, text, kind, tag, early, hd
def silu_ops(P):
    acc = ACC + 32*(P % 2); ops = []
    for g in range(16):
        ct, rb, d = g >> 2, (g >> 1) & 1, g & 1
        e = 8*ct + 4*rb + 2*d; ta = vT + 2*(g % 3); tb = ta + 1
        hi = 8*(2*P + (ct >> 1)) + 4*rb + 2*(ct & 1) + d
        kind, reg = hdst(hi)
        dst = reg if kind == 'v' else vT + 6 + (g % 3)
        ops += [Op(8, f"v_exp_f32 v{ta}, v{acc+e}"), Op(8, f"v_exp_f32 v{tb}, v{acc+e+1}"),
                Op(4, f"v_fma_f32 v{ta}, v{ta}, s{sK}, s{sK}"), Op(4, f"v_fma_f32 v{tb}, v{tb}, s{sK}, s{sK}"),
                Op(8, f"v_rcp_f32 v{ta}, v{ta}"), Op(8, f"v_rcp_f32 v{tb}, v{tb}"),
                Op(4, f"v_mul_f32 v{ta}, v{acc+e}, v{ta}"), Op(4, f"v_mul_f32 v{tb}, v{acc+e+1}, v{tb}"),
                Op(4, f"v_cvt_pk_bf16_f32 v{dst}, v{ta}, v{tb}", hd=hi if kind == 'v' else None)]
        if kind == 'a': ops.append(Op(4, f"v_accvgpr_write_b32 a{reg}, v{dst}", hd=hi))
    return ops
def store_ops(q):
    P = 9 + q; acc = ACC + 32*(P % 2); ops = []
    for ct in range(4):
        t = vT + 4*(ct % 3)
        for d in range(4): ops.append(Op(4, f"v_cvt_pk_bf16_f32 v{t+d}, v{acc+8*ct+2*d}, v{acc+8*ct+2*d+1}"))
        ops.append(Op(24, f"buffer_store_dwordx4 v[{t}:{t+3}], v{vPS}, {srd(sWs)}, s{sST+q} offen offset:{1024*ct} sc1", "big", ("st", q)))
    return ops
stubs = []
def poll_op(early): return [Op(8, f"buffer_load_dwordx2 v[{vFL}:{vFL+1}], v{vFR}, {srd(sWs)}, 0 offen sc1", "big", ("fl",), early)]
def check_ops(qp, PT, early, mid=()):
    ops = [Op(0, f"s_sub_u32 s{sT0}, s{sS}, {qp+1}", "s", early=early), Op(0, f"s_and_b32 s{sT0}, s{sT0}, 7", "s"),
           Op(0, f"s_lshl_b32 s{sT1}, s{sT0}, 3", "s"), Op(0, f"s_mul_i32 s{sT0}, s{sT0}, 147456", "s"), Op(0, f"s_add_u32 s{sT0}, s{sT0}, s{sPL}", "s"),
           Op(0, None, "vmwait", lambda t: t == ("fl",), early + 10), *mid,
           Op(4, f"v_readfirstlane_b32 s{sF}, v{vFL}"), Op(4, f"v_readfirstlane_b32 s{sF+1}, v{vFL+1}"),
           Op(16, f"s_lshr_b64 s[{sF}:{sF+1}], s[{sF}:{sF+1}], s{sT1}\ns_and_b32 s{sF}, s{sF}, 0xff\ns_cbranch_scc0 L_chk{qp}\nL_chk{qp}_ok:", "blk")]
    stubs.append(qp)
    for ct in range(4):
        ops.append(Op(8, f"buffer_load_dwordx4 v[{PT+4*ct}:{PT+4*ct+3}], v{vPS}, {srd(sWs)}, s{sT0} offen offset:{1024*ct} sc1", "big", ("pl", qp)))
    return ops
def add_ops(qp, PT, early):
    ops = [Op(0, None, "vmwait", lambda t: t == ("pl", qp), early)]
    for d in range(16):
        ta = vT + 2*(d % 2); e = RR + 2*d
        ops += [Op(4, f"v_lshlrev_b32 v{ta}, 16, v{PT+d}"), Op(4, f"v_and_b32 v{ta+1}, s{sHI}, v{PT+d}"),
                Op(4, f"v_add_f32 v{e}, v{e}, v{ta}"), Op(4, f"v_add_f32 v{e+1}, v{e+1}, v{ta+1}")]
    return ops
def pos_ops(q):
    ops = []
    PT = lambda qp: PT1 if qp & 1 else PT0
    if q == 1:
        for i, r in enumerate((None, None, vFR, None, vOA, vLA, vLA8)):
            if r: ops.append(Op(4, f"v_accvgpr_read_b32 v{r}, a{aST+i}"))
    ops += store_ops(q - 1)
    if q >= 3: ops += poll_op(0)
    fill = []
    if q == 2:
        for d in range(16):
            ta = vT + (d % 2)
            fill += [Op(4, f"v_accvgpr_read_b32 v{ta}, a{aXR+d}"), Op(4, f"v_lshlrev_b32 v{RR+2*d}, 16, v{ta}"), Op(4, f"v_and_b32 v{RR+2*d+1}, s{sHI}, v{ta}")]
    if q >= 4: fill = add_ops(q - 4, PT(q - 4), 0)
    if q <= 7: flag = [Op(0, f"s_add_u32 s{sT2}, s{sFLB}, s{sCOL+q-1}", "s"), Op(8, line_store(vFV, vLA, sT2), "big", ("flag",))]
    else: flag = [Op(8, line_store(vFV, vLA8, sFLB), "big", ("flag",))]
    ops += fill[:37]
    if q >= 3: ops += check_ops(q - 3, PT(q - 3), 84, flag)
    else: ops += [Op(0, None, "vmwait", lambda t: t == ("st", q - 1), 100)] + flag
    if q == 8: ops += fill[37:53] + poll_op(0) + fill[53:]
    else: ops += fill[37:]
    return ops
def hs_sites(P):
    if 1 <= P <= 8: S.e(f"s_cmp_eq_u32 s{sHSK}, {P-1}\ns_cbranch_scc1 L_hsl{P}\nL_hsl{P}_ok:")
    if 3 <= P <= 10: S.e(f"s_cmp_eq_u32 s{sHSK}, {P-3}\ns_cbranch_scc1 L_hsc{P}\nL_hsc{P}_ok:")
hdone = set()
def put(o):
    if o.kind == "vmwait":
        x = vm.wait(o.tag)
        if x: S.e(x)
        return
    if "--x-nost" in sys.argv and o.kind == "big" and o.tag[0] in ("st", "pl"): return
    S.e(o.text)
    if o.kind == "big": vm.issue(o.tag)
    if o.hd is not None: hdone.add(o.hd)
S.e(vm.wait(lambda t: t == ("dma", 0))); S.e("s_barrier")
rq = [(j, h) for j in range(NU) for h in range(2)]
rp = 0
for _ in range(2*DR):
    j, h = rq[rp]; S.e(rd_ins(j)[h]); lg.issue(j); rp += 1
S.e(lg.wait(lambda t: t <= 0))
dq = [(T, n) for T in (2, 3, 4) for n in range(6)]
owed = 0
est = 0; est_p = []
m0_set = None
for P in range(18):
    phaseA = 1 <= P <= 9
    ops = [] if P == 0 else (silu_ops(P-1) if phaseA else pos_ops(P - 9))
    ntot = len(ops); oi = 0
    G0, G1 = 3, (143 if P < 9 else 132)
    acc = ACC + 32*(P % 2)
    e0 = est
    if P in (1, 5, 9, 11, 12, 15) and not XST: stamp(S, 8 + (1, 5, 9, 11, 12, 15).index(P))
    for u in range(72):
        i = 72*P + u; k, ct = u >> 2, u & 3
        for h in range(2):
            G = 2*u + h
            rb = h ^ (ct & 1); a = acc + 8*ct + 4*rb
            if P < 9: b = f"v[{8*k+4*rb}:{8*k+4*rb+3}]"
            else:
                b = hreg(k, rb)
                assert all(8*k + 4*rb + d in hdone for d in range(4)), (P, u)
            S.e(mf16(a, f"a[{frag(i)}:{frag(i)+3}]", b, k == 0))
            cost = 8
            if G == 1: hs_sites(P)
            dma_now = None
            slot_free = True
            if h == 1:
                if i + 1 < NU:
                    assert rp >= 2*(i + 2), (P, u, rp)
                    x = lg.wait(lambda t: t <= i + 1)
                    if x: S.e(x); slot_free = False
            elif dq and m0_set == dq[0] and (u % 4 == 2 or (P == 0 and u % 2 == 0)):
                dma_now = dq.pop(0); S.e(dma_soff(*dma_now)); slot_free = False
            elif dq and (u % 4 == 1 or (P == 0 and u % 2 == 1)):
                S.e(dma_m0(*dq[0])); m0_set = dq[0]; slot_free = False
            if slot_free and oi < ntot and ops[oi].kind in ("s", "vmwait") and G >= ops[oi].early:
                put(ops[oi]); oi += 1
            if rp < len(rq) and rq[rp][0] <= i + DR: owed = sum(1 for z in rq[rp:rp+6] if 2*z[0] + z[1] <= 2*(i + DR) + h)
            else: owed = 0
            big = dma_now is not None
            if not big and not phaseA and oi < ntot and ops[oi].kind in ("big", "blk") and G >= max(G0, ops[oi].early) and owed <= 1:
                big = True
            if big and owed <= 1:
                nr = 0
            else:
                nr = min(owed, 2)
            for _ in range(nr):
                j, hh = rq[rp]
                if hh == 0 and j % 24 == 0:
                    T = j // 24
                    S.e(vm.wait(lambda t: t == ("dma", T))); S.e("s_barrier" if T == 1 or "--x-nobar" not in sys.argv else None); cost += 8
                    if T == 2: stamp(S, 15)
                    if T + 4 <= 53: dq += [(T + 4, n) for n in range(6)]
                S.e(rd_ins(j)[hh]); lg.issue(j); rp += 1; cost += 4
            if dma_now is not None:
                if "--x-nodma" not in sys.argv: S.e(dma_go(*dma_now)); vm.issue(("dma", dma_now[0]))
                cost += 8
            elif big:
                cost += ops[oi].cost; put(ops[oi]); oi += 1
            if G >= G0:
                if phaseA:
                    tgt = -(-ntot*(G - G0 + 1) // (G1 - G0 + 1))
                    while oi < ntot and oi < tgt and (cost < 16 or (dma_now is None and cost + ops[oi].cost <= 24) or oi < tgt - 1):
                        cost += ops[oi].cost; put(ops[oi]); oi += 1
                else:
                    while oi < ntot and G >= ops[oi].early and ((ops[oi].kind in ("v", "s", "vmwait") and cost + 4 <= 16) or G == 143):
                        cost += max(4, ops[oi].cost); put(ops[oi]); oi += 1
            est += max(16, cost)
    assert oi == ntot, (P, oi, ntot)
    est_p.append(est - e0)
assert not dq
print("ffn stream estimate:", est, est_p, file=sys.stderr)

S = seg("ffn_tail")
stamp(S, 4)
acc = ACC + 32
for o in check_ops(6, PT0, 0): put(o)
def dot_add(R, P, n):
    for d in range(n):
        S.e(f"v_dot2_f32_bf16 v{R+2*d}, v{P+d}, s{sSEL0}, v{R+2*d}\nv_dot2_f32_bf16 v{R+2*d+1}, v{P+d}, s{sSEL1}, v{R+2*d+1}")
S.e(f"s_mul_i32 s{sT2}, s{sS}, 147456\ns_add_u32 s{sT2}, s{sT2}, s{sPL}")
S.e(vm.wait(lambda t: t == ("pl", 5)))
dot_add(RR, PT1, 16)
for e in range(0, 32, 2): S.e(f"v_pk_add_f32 v[{acc+e}:{acc+e+1}], v[{acc+e}:{acc+e+1}], v[{RR+e}:{RR+e+1}]")
S.e(f"buffer_load_ubyte v{vT}, v{vFR}, {srd(sWs)}, 0 offen offset:32 sc1"); vm.issue(("zf",))
S.e(vm.wait(lambda t: t == ("pl", 6)))
dot_add(acc, PT0, 16)
stamp(S, 5)
S.e(f"s_waitcnt vmcnt(0)\nv_cmp_eq_u32 vcc, 1, v{vT}\ns_cbranch_vccnz L_pz_done")
spin_head(S, "pz")
S.e(f"buffer_load_ubyte v{vT}, v{vFR}, {srd(sWs)}, 0 offen offset:32 sc1\ns_waitcnt vmcnt(0)\nv_cmp_eq_u32 vcc, 1, v{vT}\ns_cbranch_vccnz L_pz_done")
spin_tail(S, "pz")
S.e("L_pz_done:")
stamp(S, 6)
zq = Q("vmcnt", 63)
for ct in range(4):
    S.e(f"buffer_load_dwordx4 v[{PT1+4*ct}:{PT1+4*ct+3}], v{vPS}, {srd(sWs)}, s{sT2} offen offset:{1024*ct} sc1"); zq.issue(ct >> 1)
S.e(f"s_add_u32 s{sT2}, s{sT3}, {16*1152}")
for c in range(2):
    S.e(zq.wait(lambda t: t <= c))
    dot_add(acc + 16*c, PT1 + 8*c, 8)
    for rb in range(2):
        p = 8*c + 4*rb
        for z in range(2):
            a = acc + 8*(2*c + z) + 4*rb
            S.e(f"v_cvt_pk_bf16_f32 v{p+2*z}, v{a}, v{a+1}\nv_cvt_pk_bf16_f32 v{p+2*z+1}, v{a+2}, v{a+3}")
    for rb in range(2):
        p = 8*c + 4*rb
        S.e(f"v_permlane16_swap_b32 v{p}, v{p+2}\nv_permlane16_swap_b32 v{p+1}, v{p+3}")
    for rb in range(2):
        p = 8*c + 4*rb
        S.e(f"buffer_store_dwordx4 v[{p}:{p+3}], v{vOA}, {srd(sOut)}, s{sT2 if rb else sT3} offen offset:{64*c}"); zq.issue(9)
S = seg("ffn_end")
S.e("L_ffn_end:")
if "--diag-delay" in sys.argv:
    S.e(f"s_mov_b32 s{sT0}, 1000\nL_dly:\ns_nop 15\ns_nop 7\ns_sub_u32 s{sT0}, s{sT0}, 1\ns_cmp_lg_u32 s{sT0}, 0\ns_cbranch_scc1 L_dly")
if STAMP: S.e("s_waitcnt vmcnt(0)")
stamp(S, 7)
stamp_out(S)
S.e("s_endpgm")
S = seg("ffn_stubs")
for qp in stubs:
    S.e(f"L_chk{qp}:")
    spin_head(S, f"chk{qp}")
    S.e(f"""buffer_load_dwordx2 v[{vFL}:{vFL+1}], v{vFR}, {srd(sWs)}, 0 offen sc1
    s_waitcnt vmcnt(0)
    v_readfirstlane_b32 s{sF}, v{vFL}
    v_readfirstlane_b32 s{sF+1}, v{vFL+1}
    s_lshr_b64 s[{sF}:{sF+1}], s[{sF}:{sF+1}], s{sT1}
    s_and_b32 s{sF}, s{sF}, 0xff
    s_cbranch_scc1 L_chk{qp}_ok""")
    spin_tail(S, f"chk{qp}")
    S.e(f"s_branch L_chk{qp}_ok")
for P in range(1, 9):
    S.e(f"L_hsl{P}:\nbuffer_load_ubyte a247, off, {srd(sDbg)}, s{sHSA} sc1\ns_branch L_hsl{P}_ok")
S.e("L_hs_sub:")
spin_head(S, "hs")
S.e(f"""v_accvgpr_read_b32 v{vFA}, a247
v_readfirstlane_b32 s{sT0}, v{vFA}
s_cmp_eq_u32 s{sT0}, 1
s_cbranch_scc1 L_hs_ret
buffer_load_ubyte a247, off, {srd(sDbg)}, s{sHSA} sc1
s_waitcnt vmcnt(0)""")
spin_tail(S, "hs")
S.e(f"L_hs_ret:")
for P in range(3, 10): S.e(f"s_cmp_eq_u32 s{sHSK}, {P-3}\ns_cbranch_scc1 L_hsc{P}_ok")
S.e("s_branch L_hsc10_ok")
for P in range(3, 11): S.e(f"L_hsc{P}:")
S.e("s_branch L_hs_sub")

QSH = 110592; QST = 152
SS, Q2V, CC, OO = 0, 64, 96, 184
K1B, VB, K2B = 16, 24, 40
vQA = 248
sWQL, sWQG = 89, 90
sPF = sKV
S = seg("att_pro")
S.e("L_att:")
vm = Q("vmcnt", 63); vm.q = list(vm_entry)
mark = len(S.ins)
S.e(f"s_lshl_b32 s{sHSA}, s{sR}, 7\ns_add_u32 s{sHSA}, s{sHSA}, {KC_OFF}\ns_cmp_lg_u32 s{sW}, 0\ns_cbranch_scc1 L_nsnap\nbuffer_load_dword a204, off, {srd(sWs)}, s{sHSA} sc1\nL_nsnap:")
S.e(f"s_mul_i32 s{sT0}, s{sS}, 144\ns_and_b32 s{sT2}, s{sT0}, 63\ns_and_b32 s{sT0}, s{sT0}, 0xffc0")
mk_srd(S, sWa, 6, 576*1152, add=sT0, shrink=True)
S.e(f"s_mul_i32 s{sT0}, s{sS}, 1152")
mk_srd(S, sPF, 16, 576*9216, add=sT0, shrink=True)
AT = TX + 8
t0, t1, t2 = AT+4, AT+5, AT+6
vDQ, vDQ2, vPFR, vPF = 168, 169, 170, 171
t3 = AT + 7
S.e(f"""v_lshrrev_b32 v{t0}, 2, v{vLANE}
v_lshl_add_u32 v{t0}, s{sW}, 4, v{t0}
v_mul_u32_u24 v{t0}, 1152, v{t0}
v_lshrrev_b32 v{t1}, 5, v{vLANE}
v_lshlrev_b32 v{t2}, 1, v{t1}
v_xor_b32 v{t2}, v{t2}, v{vLANE}
v_and_b32 v{t2}, 3, v{t2}
v_lshl_add_u32 v{vDQ}, v{t2}, 4, v{t0}
v_mul_u32_u24 v{t0}, 3072, v{t1}
v_bfe_u32 v{t1}, v{vLANE}, 2, 2
v_lshl_add_u32 v{t0}, v{t1}, 6, v{t0}
v_bfe_u32 v{t1}, v{vLANE}, 4, 1
v_lshl_add_u32 v{t0}, v{t1}, 9, v{t0}
v_lshlrev_b32 v{t1}, 5, v{t1}
s_mul_i32 s{sT1}, s{sW}, 3072""")
for ct in range(5):
    S.e(f"""v_and_b32 v{t2}, {3 if ct < 4 else 1}, v{vLANE}
    v_lshl_add_u32 v{t2}, v{t2}, 3, s{sT2}
    v_add_u32 v{t2}, {32*ct}, v{t2}
    v_lshrrev_b32 v{t3}, 6, v{t2}
    v_lshl_add_u32 v{t3}, v{t3}, 10, v{t0}
    v_and_b32 v{t2}, 63, v{t2}
    v_xor_b32 v{t2}, v{t2}, v{t1}
    v_add_u32 v{vQA+ct}, v{t2}, v{t3}""")
S.e(f"""s_mov_b32 s{sPL}, s{sT1}
s_and_b32 s{sT0}, s{sR}, {NW-1}
s_lshl_b32 s{sT0}, s{sT0}, 2
s_add_u32 s{sT0}, s{sT0}, s{sW}
s_mul_i32 s{sT0}, s{sT0}, {LPW}
v_add_u32 v254, s{sT0}, v{vLANE}
v_mov_b32 v{t1}, 100000
v_cmp_gt_u32 vcc, {LPW}, v{vLANE}
v_cndmask_b32 v254, v{t1}, v254, vcc
s_and_b32 s{sT0}, s{sR}, {NW-1}
s_mul_i32 s{sT0}, s{sT0}, 9
s_lshr_b32 s{sT0}, s{sT0}, {int(math.log2(NW))}
s_mul_i32 s{sWQL}, s{sT0}, 12288
s_add_u32 s{sWQL}, s{sWQL}, s{sPL}
s_mul_i32 s{sWQG}, s{sT0}, 73728
""")
aWO = 205
WOH = 73728
S.e(f"""v_bfe_u32 v{t0}, v{vLANE}, 2, 3
s_and_b32 s{sT0}, s{sW}, 1
s_lshr_b32 s{sT1}, s{sW}, 1
s_mul_i32 s{sT2}, s{sT0}, 18
s_lshl_b32 s{sEX}, s{sT1}, 3
s_add_u32 s{sT2}, s{sT2}, s{sEX}
v_add_u32 v{t1}, s{sT2}, v{t0}
""")
dma_lane(S, t3, 1152, t1, 'B', t2)
S.e(f"""v_accvgpr_write_b32 a{aWO}, v{t3}
v_lshrrev_b32 v{t1}, 2, v{t0}
v_mul_u32_u24 v{t1}, 72, v{t1}
v_bfe_u32 v{t2}, v{t0}, 1, 1
v_mul_u32_u24 v{t2}, 18, v{t2}
v_add_u32 v{t1}, v{t1}, v{t2}
v_and_b32 v{t2}, 1, v{t0}
v_add3_u32 v{AT+8}, v{t1}, v{t2}, 16
s_mul_i32 s{sT2}, s{sT0}, 144
s_mul_i32 s{sEX}, s{sT1}, 36
s_add_u32 s{sT2}, s{sT2}, s{sEX}
v_add_u32 v{t1}, s{sT2}, v{AT+8}
""")
dma_lane(S, t3, 1152, t1, 'B', t2)
S.e(f"""v_accvgpr_write_b32 a{aWO+1}, v{t3}
v_lshrrev_b32 v{AT+9}, 5, v{vLANE}
s_mul_i32 s{sT2}, s{sT1}, 36
s_lshl_b32 s{sEX}, s{sT0}, 3
s_add_u32 s{sT2}, s{sT2}, s{sEX}
v_mul_u32_u24 v{t1}, 18, v{AT+9}
v_add3_u32 v{t1}, v{t1}, v{t0}, s{sT2}
v_lshlrev_b32 v{AT+10}, 6, v{AT+9}
""")
dma_lane(S, t3, 1152, t1, 'B', t2)
S.e(f"""v_sub_u32 v{t3}, v{t3}, v{AT+10}
v_accvgpr_write_b32 a{aWO+2}, v{t3}
s_mul_i32 s{sT2}, s{sT1}, 288
s_mul_i32 s{sEX}, s{sT0}, 36
s_add_u32 s{sT2}, s{sT2}, s{sEX}
v_mul_u32_u24 v{t1}, 144, v{AT+9}
v_add3_u32 v{t1}, v{t1}, v{AT+8}, s{sT2}
""")
dma_lane(S, t3, 1152, t1, 'B', t2)
S.e(f"v_sub_u32 v{t3}, v{t3}, v{AT+10}\nv_accvgpr_write_b32 a{aWO+3}, v{t3}")
tr_lane(S, t3, 'B', t2)
S.e(f"""v_accvgpr_write_b32 a{aWO+4}, v{t3}
v_lshlrev_b32 v{t2}, 9, v{AT+9}
v_sub_u32 v{t3}, v{t3}, v{t2}
s_and_b32 s{sT0}, s{sS}, 1
s_lshl_b32 s{sT0}, s{sT0}, 5
v_xor_b32 v{t3}, s{sT0}, v{t3}
v_add_u32 v{t3}, {WOH}, v{t3}
v_accvgpr_write_b32 a{aWO+5}, v{t3}
v_and_b32 v{t1}, 15, v{vLANE}
v_mul_u32_u24 v{t1}, 1152, v{t1}
v_lshrrev_b32 v{t2}, 4, v{vLANE}
v_lshl_add_u32 v{t1}, v{t2}, 3, v{t1}
v_add_u32 v{t1}, s{sXB}, v{t1}
v_accvgpr_write_b32 a{aWO+6}, v{t1}
""")
line_addr(S, t3, 1, 32, t1, add=sT3)
S.e(f"v_accvgpr_write_b32 a{aWO+7}, v{t3}")
xres_lane(S, AT+8, t1)
S.e(f"s_and_b32 s{sT0}, s{sS}, 3\ns_lshl_b32 s{sT0}, s{sT0}, 5\nv_xor_b32 v{AT+8}, s{sT0}, v{AT+8}")
def xres_att():
    for rb in range(2): S.e(f"ds_read_b64 a[{216+2*rb}:{217+2*rb}], v{AT+8} offset:{32768 + 2048*rb}")
for i in range(64): S.e(f"v_mov_b32 v{OO+i}, 0")
interleave(S, mark, sum((x_items(vm, c) for c in range(2, XPRE)), []))
fin = x_read_stats(S, vm, AT, xres_att)
stamp(S, 1)
def wq_item(n):
    def f():
        t = n % 3
        S.e(f"s_add_u32 m0, s{sWQL}, {t*1024}\ns_add_u32 s{sOFF}, s{sWQG}, {64*t}\nbuffer_load_dwordx4 v{vDQ}, {srd(sWa)}, s{sOFF} offen lds"); vm.issue(("wq",))
        if t == 2 and n < 26:
            S.e(f"""s_add_u32 s{sWQL}, s{sWQL}, 12288
            s_add_u32 s{sWQG}, s{sWQG}, 73728
            s_cmp_eq_u32 s{sWQG}, {9*73728}
            s_cselect_b32 s{sWQL}, s{sPL}, s{sWQL}
            s_cselect_b32 s{sWQG}, 0, s{sWQG}""")
    return f
items = [wq_item(n) for n in range(27)]
for f in items[:9]: f()
fin()
ln_stats(S, AT)
ln_norm(S, AT, LOG2E / math.sqrt(18.0), items[9:], centre_only=True)
if not XST: stamp(S, 2)
S.e(vm.wait(lambda t: t == ("wq",))); S.e("s_barrier")
QA = 144
def rdq(j):
    k, ct = j // 5, j % 5
    r = trr(frag(j), vQA + ct, (k % 9)*6144, (k % 9)*6144 + 256)
    if k == 8: r[1] += f"\nv_add_u32 v{vQA+ct}, {9*6144}, v{vQA+ct}"
    return r
def unitq(j):
    k, ct = j // 5, j % 5
    return [mf16(QA + 8*ct + 4*(h ^ (j & 1)), f"a[{frag(j)}:{frag(j)+3}]", f"v[{8*k+4*(h ^ (j & 1))}:{8*k+4*(h ^ (j & 1))+3}]", k == 0) for h in range(2)]
def preq(j):
    if not NOPF and j in (4, 18, 32, 46, 60): S.e(f"buffer_load_dword a200, v254, {srd(sPF)}, 0 offen offset:{128*(2 + j//14)}")
S.e(f"v_accvgpr_write_b32 a203, v254\nv_mul_u32_u24 v254, 9216, v254")
simple_gemm(S, 90, rdq, unitq, preq)
stamp(S, 3)
cq = LOG2E / math.sqrt(18.0)
U = 96
vQW, vQR, vQR2, vKP = U, U+1, U+2, U+3
S.e(f"""s_mul_i32 s{sT0}, s{sW}, {32*QST}
s_add_u32 s{sT0}, s{sT0}, {QSH}
v_and_b32 v{U+4}, 15, v{vLANE}
v_and_b32 v{vKP}, 7, v{vLANE}
v_lshlrev_b32 v{vKP}, 2, v{vKP}
v_accvgpr_read_b32 v{U+17}, a204
v_add_u32 v{U+17}, 32, v{U+17}
v_mul_u32_u24 v{U+4}, {QST}, v{U+4}
v_lshrrev_b32 v{U+5}, 4, v{vLANE}
v_lshl_add_u32 v{U+4}, v{U+5}, 3, v{U+4}
v_add_u32 v{vQW}, s{sT0}, v{U+4}
v_and_b32 v{U+4}, 31, v{vLANE}
v_mul_u32_u24 v{U+4}, {QST}, v{U+4}
v_add_u32 v{vQR2}, s{sT0}, v{U+4}
v_lshrrev_b32 v{U+5}, 5, v{vLANE}
v_lshl_add_u32 v{vQR}, v{U+5}, 4, v{vQR2}
v_accvgpr_read_b32 v{U+6}, a201
v_accvgpr_read_b32 v{U+7}, a201
v_accvgpr_read_b32 v{U+8}, a202
v_accvgpr_read_b32 v{U+9}, a202
""")
for e in range(0, 40, 2):
    z = U + 6 + 2*((e >> 2) & 1)
    S.e(f"v_pk_mul_f32 v[{QA+e}:{QA+e+1}], v[{QA+e}:{QA+e+1}], v[{z}:{z+1}]")
for ct in range(5):
    for rb in range(2):
        a = QA + 8*ct + 4*rb; p = 4*ct + 2*rb
        S.e(f"v_cvt_pk_bf16_f32 v{p}, v{a}, v{a+1}\nv_cvt_pk_bf16_f32 v{p+1}, v{a+2}, v{a+3}")
    if ct == 4: S.e("s_mov_b32 exec_hi, 0")
    for rb in range(2):
        p = 4*ct + 2*rb
        S.e(f"ds_write_b64 v{vQW}, v[{p}:{p+1}] offset:{16*QST*rb + 32*ct}")
S.e("s_mov_b64 exec, -1\ns_waitcnt lgkmcnt(0)")
Q1 = 32
for j in range(4):
    S.e(f"ds_read2_b32 v[{Q1+4*j}:{Q1+4*j+1}], v{vQR} offset0:{9*j} offset1:{9*j+1}")
    S.e(f"ds_read2_b32 v[{Q1+4*j+2}:{Q1+4*j+3}], v{vQR} offset0:{9*j+2} offset1:{9*j+3}")
    S.e(f"ds_read_b32 v{Q1+16+j}, v{vQR2} offset:{36*j+32}")
vK1, vV, vK2, vIDX, vKN, vKD, vOF, vHA = 160, 161, 162, 163, 164, 165, 166, 167
S.e(f"""v_lshlrev_b32 v{vK1}, 4, v{vLANE}
v_lshlrev_b32 v{vK2}, 3, v{vLANE}
v_and_b32 v{U+4}, 31, v{vLANE}
v_subrev_u32 v{U+5}, 20, v{U+4}
v_cmp_gt_u32 vcc, 8, v{U+5}
v_min_u32 v{U+4}, 19, v{U+4}
v_addc_co_u32 v{U+4}, vcc, 0, v{U+4}, vcc
v_lshrrev_b32 v{U+5}, 5, v{vLANE}
v_mul_u32_u24 v{U+5}, 336, v{U+5}
v_lshl_add_u32 v{vV}, v{U+4}, 4, v{U+5}
v_mov_b32 v{vIDX}, 0xdddddddd
v_lshlrev_b32 v{vKN}, 2, v{vLANE}
s_lshl_b32 s{sM0}, s{sW}, 12
v_cmp_gt_u32 vcc, 32, v{vLANE}
""")
for j in range(4):
    b = Q2V + 8*j
    for z in (1, 2, 5, 6): S.e(f"v_mov_b32 v{b+z}, 0")
S.e("s_waitcnt lgkmcnt(0)")
for j in range(4):
    b = Q2V + 8*j
    S.e(f"""v_cndmask_b32 v{b}, 0, v{Q1+16+j}, vcc
    v_cndmask_b32 v{b+3}, 0, v{Q1+16+j}, vcc
    v_cndmask_b32 v{b+4}, v{Q1+16+j}, v{b+1}, vcc
    v_cndmask_b32 v{b+7}, v{Q1+16+j}, v{b+1}, vcc""")
for i in range(16): S.e(f"v_accvgpr_write_b32 a{i}, v{Q1+i}")
stamp(S, 4)
S.e(f"s_cmp_lg_u32 s{sW}, 0\ns_cbranch_scc1 L_pk_done")
spin_head(S, "pk")
S.e(f"""buffer_load_dword v{U+16}, off, {srd(sWs)}, s{sHSA} sc1
s_waitcnt vmcnt(0)
v_cmp_eq_u32 vcc, v{U+16}, v{U+17}
s_cbranch_vccnz L_pk_done
s_and_b32 s{sT0}, s{sSPIN}, 15
s_cmp_lg_u32 s{sT0}, 15
s_cbranch_scc1 L_pk_next
buffer_load_dword v{U+16}, v{vKP}, {srd(sDbg)}, 0 offen sc1
s_waitcnt vmcnt(0)
v_cmp_ne_u32 vcc, 0x1010101, v{U+16}
s_cbranch_vccz L_pk_done
L_pk_next:""")
spin_tail(S, "pk", 2)
S.e("L_pk_done:")
S.e("s_barrier")
stamp(S, 5)
vm = Q("vmcnt", 63)
S.e(f"s_mov_b32 s{sOFF}, {KN_OFF}\nbuffer_load_dword v{U+4}, v{vKN}, {srd(sWs)}, s{sOFF} offen sc1"); vm.issue("kn")
def kv_blk(m): return f"s_add_u32 m0, s{sM0}, {m*16384}\ns_add_u32 s{sOFF}, s{sM0}, {m*16384}"
def kv_dma(z): return f"buffer_load_dwordx4 v{vK1}, {srd(sWs)}, s{sOFF} offen offset:{1024*z} sc1 lds"
for m in range(2):
    S.e(kv_blk(m))
    for z in range(4): S.e(kv_dma(z)); vm.issue(m)
qn = U + 8
for j in range(4): S.e(f"v_dot2_f32_bf16 v{qn+j}, v{Q2V+8*j}, v{Q2V+8*j}, 0")
for d in range(4):
    for j in range(4): S.e(f"v_dot2_f32_bf16 v{qn+j}, v{Q1+4*j+d}, v{Q1+4*j+d}, v{qn+j}")
for j in range(4): S.e(f"v_mov_b32 v{qn+4+j}, v{qn+j}")
for j in range(4): S.e(f"v_permlane32_swap_b32 v{qn+j}, v{qn+4+j}")
for j in range(4): S.e(f"v_add_f32 v{qn+j}, v{qn+j}, v{qn+4+j}")
S.e(f"v_max_f32 v{qn}, v{qn}, v{qn+1}\nv_max3_f32 v{qn}, v{qn}, v{qn+2}, v{qn+3}")
S.e(f"s_mov_b32 s{sF}, 0x87\ns_mov_b32 s{sF+1}, 0x800000")
for q in range(9):
    it = 2 + q
    S.e(f"s_lshr_b32 s{sT0}, s{sCOL+q}, 7\ns_lshl_b32 s{sT0}, s{sT0}, {4*(it % 8)}\ns_or_b32 s{sF + it//8}, s{sF + it//8}, s{sT0}")
S.e(f"s_mul_i32 s{sT0}, s{sS}, 0x11000\ns_or_b32 s{sF+1}, s{sF+1}, s{sT0}")
S.e(f"v_accvgpr_read_b32 v{vPFR}, a203\nv_mov_b32 v{vPF}, v254")
line_addr(S, vOF, 8, 1024, U+5)
S.e(vm.wait(lambda t: t == "kn"))
wave_max(S, U+4)
S.e(f"""v_mov_b32 v{U+5}, {f2u(-1.0 if FORCE_FB else 4096.0)}
v_readlane_b32 s{sT0}, v{U+4}, 63
v_mul_f32 v{qn}, s{sT0}, v{qn}
v_cmp_nle_f32 vcc, v{qn}, v{U+5}
""")
S.e(vm.wait(lambda t: t == 0))
S.e(f"""s_barrier
s_cbranch_vccnz L_att_fb
ds_read_b64 a[{K2B}:{K2B+1}], v{vK2}
ds_read_b128 a[{K1B}:{K1B+3}], v{vK1} offset:512
s_mov_b32 s{sCNT}, 1
v_mov_b32 v{vKD}, v{vK1}
s_waitcnt lgkmcnt(0)
""")
stamp(S, 6)

def att_step(S, it, u, mode):
    j, t = u & 3, u >> 2
    s = SS + 16*j; e = SS + 16*((j-1) & 3); p = SS + 16*((j-2) & 3); o = OO + 16*((j-2) & 3)
    vb = VB + 8*(((u-2) >> 2) & 1)
    kb = K1B + 4*(t & 1); k2 = K2B + 2*(it & 1)
    base = it*KV_IT
    first = mode == 'peel' and it == 0
    def ex(a):
        if first and u == 0: return
        for i in range(4): S.e(f"v_exp_f32 v{e+a+i}, v{e+a+i}")
    pv = not (first and u < 2)
    pf = mode in ('peel', 'loop') and not NOPF
    dmas = first
    c = f"v[{CC+16*j}:{CC+16*j+15}]" if mode == 'fb' else "0"
    S.e(f"v_mfma_f32_32x32x16_bf16 v[{s}:{s+15}], a[{kb}:{kb+3}], a[{4*j}:{4*j+3}], {c}")
    if j == 2: S.e("s_waitcnt lgkmcnt(0)")
    if mode in ('loop', 'fb'):
        if it == 1 and u == 1: S.e(f"s_add_u32 s{sCNT}, s{sCNT}, 1")
        if it == 1 and u == 15: S.e(f"s_cmp_lt_u32 s{sCNT}, {7 if mode == 'loop' else 8}")
    if pf and u == 4: S.e(f"s_and_b32 s{sT0}, s{sF}, 15")
    if pf and u == 5: S.e(f"s_lshl_b32 s{sT0}, s{sT0}, 7")
    if pf and u == 9: S.e(f"s_lshr_b64 s[{sF}:{sF+1}], s[{sF}:{sF+1}], 4")
    ex(0)
    q2 = Q2V + 8*j + 2*t
    S.e(f"v_mfma_f32_32x32x8_bf16 v[{s}:{s+15}], a[{k2}:{k2+1}], v[{q2}:{q2+1}], v[{s}:{s+15}]")
    ex(4)
    if pv: S.e(f"v_smfmac_f32_32x32x32_bf16 v[{o}:{o+15}], a[{vb}:{vb+3}], v[{p}:{p+7}], v{vIDX}")
    if dmas and u % 2 == 0: S.e(kv_blk(2 + u // 2))
    if mode == 'peel' and it == 1 and u == 0:
        S.e(vm.wait(lambda t: t == 1)); S.e("s_barrier")
    if pf and mode == 'loop' and it == 0:
        if u == 0: S.e(f"s_cmp_ge_u32 s{sCNT}, 6\ns_cselect_b32 s{sPF}, s{sWo}, s{sPF}")
        if u == 1: S.e(f"s_cselect_b32 s{sPF+1}, s{sWo+1}, s{sPF+1}")
    wo = 16*it + u - 2 if mode == 'last' else -1
    if 0 <= wo < 27:
        if wo < 18:
            lds = wo*4096; soff = 36*wo*1152 if wo < 16 else 288*(wo - 16)*1152; wv = vWO + (wo >= 16); sb = sT3
        else:
            n = wo - 18; lds = WOH + n*4096; soff = 72*n*1152 if n < 8 else 0; wv = vWO + 2 + (n == 8); sb = sT1
        S.e(f"s_add_u32 m0, s{sT2}, {lds}\ns_add_u32 s{sOFF}, s{sb}, {soff}")
    vn = VB + 8*(t & 1)
    if j == 0: S.e(f"ds_read_b128 a[{vn}:{vn+3}], v{vV} offset:{base + 4608 + VT*t}")
    if j == 1: S.e(f"ds_read_b128 a[{vn+4}:{vn+7}], v{vV} offset:{base + 4608 + VT*t + 672}")
    if j == 2:
        kn = K1B + 4*((t+1) & 1)
        off = base + 512 + 1024*(t+1) if t < 3 else base + KV_IT + 512
        S.e(f"ds_read_b128 a[{kn}:{kn+3}], v{vK1} offset:{off}")
        if t == 2:
            k2n = K2B + 2*((it+1) & 1)
            S.e(f"ds_read_b64 a[{k2n}:{k2n+1}], v{vK2} offset:{base + KV_IT}")
    if j == 3 and it == 1 and t == 3:
        S.e(f"v_add_u32 v{vK1}, {2*KV_IT}, v{vK1}\nv_add_u32 v{vV}, {2*KV_IT}, v{vV}\nv_add_u32 v{vK2}, {2*KV_IT}, v{vK2}")
    if dmas: S.e(kv_dma((2*u) % 4).replace(f"v{vK1},", f"v{vKD},")); vm.issue(2 + u // 2)
    if 0 <= wo < 27: S.e(f"buffer_load_dwordx4 v{wv}, {srd(sWo)}, s{sOFF} offen lds")
    if pf and u == 7: S.e(f"buffer_load_dword a200, v{vPF}, {srd(sPF)}, s{sT0} offen"); vm.issue("pf")
    ex(8)
    if pv: S.e(f"v_smfmac_f32_32x32x32_bf16 v[{o}:{o+15}], a[{vb+4}:{vb+7}], v[{p+8}:{p+15}], v{vIDX}")
    if j == 3: S.e("s_waitcnt lgkmcnt(0)")
    if dmas: S.e(kv_dma((2*u + 1) % 4).replace(f"v{vK1},", f"v{vKD},")); vm.issue(2 + u // 2)
    ex(12)
S = seg("att_peel")
for it in range(2):
    for u in range(16): att_step(S, it, u, 'peel')
S.e(vm.wait(lambda t: t == 9)); S.e("s_barrier")
S.e(f"s_mov_b32 s{sPF}, s{sWb}\ns_mov_b32 s{sPF+1}, s{sWb+1}\ns_mov_b32 s{sPF+2}, s{sWb+2}\nv_mul_u32_u24 v{vPF}, 1152, v{vPFR}")
S = seg("att_loop")
S.e(".p2align 6\nL_att_loop:")
for it in range(2):
    for u in range(16): att_step(S, it, u, 'loop')
S.e("s_cbranch_scc1 L_att_loop")
S = seg("att_last")
vWO = 172
def wo_setup(S):
    for i in range(4): S.e(f"v_accvgpr_read_b32 v{vWO+i}, a{aWO+i}")
    S.e(f"s_lshl_b32 s{sT2}, s{sW}, 10\ns_and_b32 s{sT1}, s{sS}, 2\ns_lshl_b32 s{sT1}, s{sT1}, 5\ns_add_u32 s{sT1}, s{sT1}, 1024")
S.e("s_barrier")
wo_setup(S)
for it in range(2):
    for u in range(16): att_step(S, it, u, 'last')
S = seg("att_tail")
S.e("L_att_tail:")
stamp(S, 7)
vb = VB + 8
p = SS + 32; o = OO + 32; e = SS + 48
S.e(f"v_smfmac_f32_32x32x32_bf16 v[{o}:{o+15}], a[{vb}:{vb+3}], v[{p}:{p+7}], v{vIDX}")
for i in range(8): S.e(f"v_exp_f32 v{e+i}, v{e+i}")
S.e(f"v_smfmac_f32_32x32x32_bf16 v[{o}:{o+15}], a[{vb+4}:{vb+7}], v[{p+8}:{p+15}], v{vIDX}")
for i in range(8, 16): S.e(f"v_exp_f32 v{e+i}, v{e+i}")
S.e(f"""s_lshl_b32 s{sT0}, s{sR}, 2
s_add_u32 s{sT0}, s{sT0}, s{sW}
s_mul_i32 s{sT0}, s{sT0}, {36*1024}
s_add_u32 s{sT0}, s{sT0}, {O_OFF}""")
p = SS + 48; o = OO + 48
S.e(f"v_smfmac_f32_32x32x32_bf16 v[{o}:{o+15}], a[{vb}:{vb+3}], v[{p}:{p+7}], v{vIDX}")
S.e(f"""s_lshl_b32 s{sT1}, s{sS}, 12
s_add_u32 s{sT1}, s{sT1}, s{sT0}
v_bfe_u32 v{U+8}, v{vLANE}, 4, 1
v_lshlrev_b32 v{U+8}, 10, v{U+8}
v_lshrrev_b32 v{U+9}, 5, v{vLANE}
v_lshl_add_u32 v{U+8}, v{U+9}, 8, v{U+8}""")
S.e(f"v_smfmac_f32_32x32x32_bf16 v[{o}:{o+15}], a[{vb+4}:{vb+7}], v[{p+8}:{p+15}], v{vIDX}")
S.e(f"""s_lshr_b32 s{sT2}, s{sS}, 2
s_lshl_b32 s{sT2}, s{sT2}, 11
v_and_b32 v{U+9}, 15, v{vLANE}
v_lshl_add_u32 v{vK1}, v{U+9}, 4, v{U+8}
s_add_u32 s{sT0}, s{sT0}, s{sT2}
s_and_b32 s{sT2}, s{sS}, 3
s_lshl_b32 s{sT2}, s{sT2}, 8
s_add_u32 s{sT0}, s{sT0}, s{sT2}
s_add_u32 s{sT2}, s{sT0}, 32768
v_mov_b32 v{U+10}, 1
""")
for j in range(4):
    o = OO + 16*j; l = U + 2*j; P = 64 + 4*j
    S.e(f"v_mov_b32 v{l}, v{o+10}\nv_mov_b32 v{l+1}, v{o+10}\nv_permlane32_swap_b32 v{l}, v{l+1}\nv_rcp_f32 v{l}, v{l}\ns_nop 0\nv_mov_b32 v{l+1}, v{l}")
    for i in range(0, 10, 2): S.e(f"v_pk_mul_f32 v[{o+i}:{o+i+1}], v[{o+i}:{o+i+1}], v[{l}:{l+1}]")
    for d in range(4): S.e(f"v_cvt_pk_bf16_f32 v{P+d}, v{o+2*d}, v{o+2*d+1}")
    S.e(f"v_cvt_pk_bf16_f32 v{80+j}, v{o+8}, v{o+9}")
    S.e(f"buffer_store_dwordx4 v[{P}:{P+3}], v{vK1}, {srd(sWs)}, s{sT1} offen offset:{2048*(j >> 1) + 512*(j & 1)} sc1")
S.e(f"""s_mov_b32 exec_hi, 0
buffer_store_dwordx4 v[80:83], v{vK1}, {srd(sWs)}, s{sT2} offen sc1
s_mov_b64 exec, -1
s_waitcnt vmcnt(0)""")
S.e(line_store(U+10, vOF, sFLB))
S.e("s_barrier")
stamp(S, 8)
vB, vH8, vLN, vPL, vPS2, vZF, vO8 = 104, 108, 109, 110, 111, 112, 113
S.e(f"""v_accvgpr_read_b32 v{vB}, a{aWO+4}
v_accvgpr_read_b32 v{vH8}, a{aWO+5}
v_accvgpr_read_b32 v{vO8}, a{aWO+6}
v_accvgpr_read_b32 v{vZF}, a{aWO+7}
v_xor_b32 v{vB+1}, 32, v{vB}
v_add_u32 v{vB+2}, 49152, v{vB}
v_add_u32 v{vB+3}, 49152, v{vB+1}
v_lshlrev_b32 v{vLN}, 4, v{vLANE}
v_add_u32 v{vPS2}, s{sM0}, v{vLN}
s_lshl_b32 s{sT2}, s{sW}, 3
s_add_u32 s{sT2}, s{sT2}, s{sT3}
s_add_u32 s{sT2}, s{sT2}, s{sFLB}
s_add_u32 s{sT2}, s{sT2}, 1024
v_mov_b32 v{vPL}, s{sT2}
s_lshl_b32 s{sOFF}, s{sR}, 2
s_add_u32 s{sOFF}, s{sOFF}, s{sW}
s_mul_i32 s{sOFF}, s{sOFF}, {36*1024}
s_add_u32 s{sOFF}, s{sOFF}, {O_OFF}
""")
poll_line(S, "po", vPL, 0, 114)
stamp(S, 9)
oq = Q("vmcnt", 63)
def o_load(S, oq, k):
    S.e(f"buffer_load_dwordx4 a[{4*k}:{4*k+3}], v{vLN}, {srd(sWs)}, s{sOFF} offen offset:{1024*(k%4)} sc1"); oq.issue(k // 2)
    if k % 4 == 3 and k < 35: S.e(f"s_add_u32 s{sOFF}, s{sOFF}, 4096")
NPRE = 12
for k in range(NPRE): o_load(S, oq, k)
S.e(f"""s_mul_i32 s{sPL}, s{sR}, {8*147456}
s_add_u32 s{sPL}, s{sPL}, {P_OFF}
s_mul_i32 s{sT2}, s{sS}, {147456 + 16384}
s_add_u32 s{sT2}, s{sT2}, s{sPL}
s_lshr_b32 s{sT0}, s{sS}, 2
s_lshr_b32 s{sT1}, s{sW}, 1
s_cmp_eq_u32 s{sT0}, s{sT1}
s_cbranch_scc1 L_att_o5""")
def oproj(S, nct, oq0):
    oq = Q("vmcnt", 63); oq.q = list(oq0.q)
    nxt = [NPRE]
    def rd(j):
        k, ct = j // nct, j % nct
        if ct < 4:
            off = (k % 12)*4096 + (ct >> 1)*512
            return trr(frag(j), vB + 2*(k // 12) + (ct & 1), off, off + 2048)
        return trr(frag(j), vH8, k*2048, k*2048 + 1024)
    def unit(j):
        k, ct = j // nct, j % nct
        return [mf16(8*ct + 4*(h ^ (j & 1)), f"a[{frag(j)}:{frag(j)+3}]", f"a[{8*k+4*(h ^ (j & 1))}:{8*k+4*(h ^ (j & 1))+3}]", k == 0) for h in range(2)]
    def pre(j):
        k, ct = j // nct, j % nct
        if ct in (1, 2) and nxt[0] < 36: o_load(S, oq, nxt[0]); nxt[0] += 1
        if ct == 0: S.e(oq.wait(lambda t: t <= k))
    simple_gemm(S, 18*nct, rd, unit, pre)
    for ct in range(4):
        p = 48 + 4*ct
        for d in range(4): S.e(f"v_cvt_pk_bf16_f32 v{p+d}, v{8*ct+2*d}, v{8*ct+2*d+1}")
        S.e(f"buffer_store_dwordx4 v[{p}:{p+3}], v{vPS2}, {srd(sWs)}, s{sT2} offen offset:{1024*ct} sc1")
    S.e(f"v_mov_b32 v{U+10}, 1\ns_waitcnt vmcnt(0)")
    S.e(line_store(U+10, vZF, sFLB))
S = seg("att_o4")
oproj(S, 4, oq)
S.e("s_branch L_att_end")
S = seg("att_o5")
S.e("L_att_o5:")
oproj(S, 5, oq)
for d in range(4): S.e(f"v_accvgpr_read_b32 v{40+d}, a{216+d}")
for d in range(4): S.e(f"v_dot2_f32_bf16 v{32+2*d}, v{40+d}, s{sSEL0}, v{32+2*d}\nv_dot2_f32_bf16 v{33+2*d}, v{40+d}, s{sSEL1}, v{33+2*d}")
poll_line(S, "p8", vPL, 32, 114)
S.e(f"s_and_b32 s{sT0}, s{sS}, 3\ns_lshl_b32 s{sT1}, s{sT0}, 10\ns_add_u32 s{sPL}, s{sPL}, s{sT1}\ns_add_u32 s{sPL}, s{sPL}, {8*16384}")
q = Q("vmcnt", 63)
for sp in range(8):
    S.e(f"buffer_load_dwordx4 v[{64+4*sp}:{67+4*sp}], v{vPS2}, {srd(sWs)}, s{sPL} offen sc1"); q.issue(sp)
    if sp < 7: S.e(f"s_add_u32 s{sPL}, s{sPL}, 147456")
S.e(f"s_lshl_b32 s{sT0}, s{sT0}, 5\ns_add_u32 s{sT0}, s{sT0}, 1024\ns_add_u32 s{sT1}, s{sT0}, {16*1152}")
for sp in range(8):
    S.e(q.wait(lambda t: t <= sp))
    for d in range(4): S.e(f"v_dot2_f32_bf16 v{32+2*d}, v{64+4*sp+d}, s{sSEL0}, v{32+2*d}\nv_dot2_f32_bf16 v{33+2*d}, v{64+4*sp+d}, s{sSEL1}, v{33+2*d}")
for d in range(4): S.e(f"v_cvt_pk_bf16_f32 v{40+d}, v{32+2*d}, v{33+2*d}")
for rb in range(2): S.e(f"buffer_store_dwordx2 v[{40+2*rb}:{41+2*rb}], v{vO8}, {srd(sOut)}, s{sT1 if rb else sT0} offen")
S = seg("att_end")
S.e("L_att_end:")
if STAMP: S.e("s_waitcnt vmcnt(0)")
stamp(S, 10)
stamp_out(S)
S.e("s_endpgm")

S = seg("att_fb")
S.e("L_att_fb:")
for m in range(2, 10):
    S.e(kv_blk(m))
    for z in range(4): S.e(kv_dma(z))
S.e(f"s_waitcnt vmcnt(0)\ns_barrier\ns_barrier\ns_mov_b32 s{sCNT}, 0")
mx = 172
for j in range(4): S.e(f"v_mov_b32 v{mx+j}, 0xff800000")
S.e(f"v_mov_b32 v{mx+4}, v{vK1}\nv_mov_b32 v{mx+5}, v{vK2}")
S = seg("att_fb_max")
S.e("L_att_fb_max:")
S.e(f"ds_read_b64 a[{K2B}:{K2B+1}], v{mx+5}")
for t in range(4): S.e(f"ds_read_b128 a[{44+4*t}:{47+4*t}], v{mx+4} offset:{512+1024*t}")
S.e(f"v_add_u32 v{mx+4}, {KV_IT}, v{mx+4}\nv_add_u32 v{mx+5}, {KV_IT}, v{mx+5}\ns_waitcnt lgkmcnt(0)")
for t in range(4):
    for j in range(4):
        s = SS + 16*j; q2 = Q2V + 8*j + 2*t
        S.e(f"v_mfma_f32_32x32x16_bf16 v[{s}:{s+15}], a[{44+4*t}:{47+4*t}], a[{4*j}:{4*j+3}], 0")
        S.e(f"v_mfma_f32_32x32x8_bf16 v[{s}:{s+15}], a[{K2B}:{K2B+1}], v[{q2}:{q2+1}], v[{s}:{s+15}]")
    for j in range(4):
        s = SS + 16*j
        for i in range(0, 16, 2): S.e(f"v_max3_f32 v{mx+j}, v{s+i}, v{s+i+1}, v{mx+j}")
S.e(f"s_add_u32 s{sCNT}, s{sCNT}, 1\ns_cmp_lt_u32 s{sCNT}, 16\ns_cbranch_scc1 L_att_fb_max")
S = seg("att_fb_init")
for j in range(4):
    S.e(f"v_mov_b32 v{mx+4}, v{mx+j}\nv_permlane32_swap_b32 v{mx+j}, v{mx+4}\nv_max_f32 v{mx+j}, v{mx+j}, v{mx+4}")
    for i in range(16): S.e(f"v_sub_f32 v{CC+16*j+i}, 0, v{mx+j}")
for i in range(32, 64): S.e(f"v_mov_b32 v{i}, 0")
for i in range(8): S.e(f"v_accvgpr_write_b32 a{VB+8+i}, 0")
S.e(f"""ds_read_b64 a[{K2B}:{K2B+1}], v{vK2}
ds_read_b128 a[{K1B}:{K1B+3}], v{vK1} offset:512
s_mov_b32 s{sCNT}, 0
s_waitcnt lgkmcnt(0)""")
S = seg("att_fb_loop")
S.e("L_att_fb_loop:")
for it in range(2):
    for u in range(16): att_step(S, it, u, 'fb')
S.e("s_cbranch_scc1 L_att_fb_loop\ns_barrier")
S = seg("att_fb_wo")
wo_setup(S)
for wo in range(27):
    if wo < 18:
        lds = wo*4096; soff = 36*wo*1152 if wo < 16 else 288*(wo - 16)*1152; wv = vWO + (wo >= 16); sb = sT3
    else:
        n = wo - 18; lds = WOH + n*4096; soff = 72*n*1152 if n < 8 else 0; wv = vWO + 2 + (n == 8); sb = sT1
    S.e(f"s_add_u32 m0, s{sT2}, {lds}\ns_add_u32 s{sOFF}, s{sb}, {soff}\nbuffer_load_dwordx4 v{wv}, {srd(sWo)}, s{sOFF} offen lds")
S.e("s_branch L_att_tail")
S = seg("end")
S.e("L_exit:\ns_endpgm\n.p2align 6\nL_codeend:")

by = {s.name: s for s in segs}
prev = []
for s in segs:
    s.autopad(prev[-40:])
    prev = s.ins
    if s.padded: print(f"seg {s.name}: {s.padded} pads", file=sys.stderr)
paths = [["entry", "att_pro", "att_peel", "att_loop", "att_loop", "att_last", "att_tail", "att_o5"],
         ["ffn_pro", "ffn_norm"], ["ffn_kv", "ffn_norm"],
         ["att_fb_max", "att_fb_max"], ["att_fb_loop", "att_fb_loop", "att_fb_wo", "att_tail"]]
for p in paths:
    seq = sum((by[n].ins for n in p), [])
    for i, miss, who in violations(seq):
        print("VIOLATION path", p, seq[i].text, "<-", who.text, miss, file=sys.stderr); sys.exit(1)

hdr = open("cdna_kernels/" + NAME + ".s.ref").read().split("; Override launch")[0]
out = hdr + "; Generated by a hand-written generator (dev/gen.py): one persistent launch, 128 FFN + 128 attention workgroups.\n"
out += "; @launch grid=(256,1,1) block=(256,1,1) lds=163840\n"
out += f""".amdgcn_target "amdgcn-amd-amdhsa--gfx950"
.text
.globl {NAME}_kernel
.p2align 8
.type {NAME}_kernel,@function
{NAME}_kernel:
"""
out += "".join(s.text() for s in segs)
out += f""".section .rodata,"a"
.p2align 6
.amdhsa_kernel {NAME}_kernel
  .amdhsa_next_free_vgpr 512
  .amdhsa_next_free_sgpr 102
  .amdhsa_accum_offset 256
  .amdhsa_group_segment_fixed_size 0
  .amdhsa_kernarg_size 88
  .amdhsa_user_sgpr_count 2
  .amdhsa_user_sgpr_kernarg_segment_ptr 1
  .amdhsa_system_sgpr_workgroup_id_x 1
.end_amdhsa_kernel
"""
dst = [a for a in sys.argv[1:] if not a.startswith("--")]
open(dst[0] if dst else "cdna_kernels/" + NAME + ".s", "w").write(out)
```

```python
import sys, math, struct
from asmlib import Seg, Q, I, violations

NAME = "parallel_sum__grouped_kv_mqa__dense_activation_silu__prompt"
STAMP = "--stamp" in sys.argv
FORCE_FB = "--force-fallback" in sys.argv
MAPPING = 2
for a in sys.argv:
    if a.startswith("--map="): MAPPING = int(a[6:])

def f2u(x): return struct.unpack("<I", struct.pack("<f", x))[0]
LOG2E = 1.4426950408889634
LN2 = 0.6931471805599453

NOPF = "--nopf" in sys.argv

VT = 1344
KV_IT = 512 + 4096 + 4*VT
KV_BYTES = 16 * KV_IT
KN_OFF = 0x28000
KC_OFF = 0x29000
FL_OFF = 0x2f000
O_OFF = 0x38000
P_OFF = 0x280000
ST_OFF = 0x2000000
WS_BYTES = 0x4000000
SK, SV = 0, 4
NW = {0: 16, 1: 8, 2: 4, 3: 2}[MAPPING]
NX = 32 // NW

sF = 26
sX, sWa, sWb, sWo, sKV, sOut, sDbg, sWs = 28, 32, 36, 40, 44, 48, 52, 56
sR, sS, sROLE, sW, sM0, sOFF, sXB = 60, 61, 62, 63, 64, 65, 66
sT0, sT1, sT2, sT3 = 67, 68, 69, 72
sEX = 70
sPL = 73
sCNT = 74
sK = 75
sSEL0, sSEL1, sONES = 76, 77, 78
sSPIN = 79
sCOL = 80
sST = 89
sFLB = 3
sHSA, sHSK = 14, 15
sHI = 97
def srd(b): return f"s[{b}:{b+3}]"
vLANE = 255

segs = []
def seg(name):
    s = Seg(name); segs.append(s); return s

def stamp(S, k):
    if STAMP:
        S.e(f"s_memtime s[98:99]\ns_memrealtime s[100:101]\ns_waitcnt lgkmcnt(0)\nv_writelane_b32 v253, s98, {k}\nv_writelane_b32 v253, s100, {16+k}")
def stamp_out(S):
    if STAMP:
        S.e(f"""s_lshl_b32 s{sT0}, s2, 2
        s_add_u32 s{sT0}, s{sT0}, s{sW}
        s_lshl_b32 s{sT0}, s{sT0}, 8
        s_add_u32 s{sT0}, s{sT0}, {ST_OFF}
        v_lshlrev_b32 v0, 2, v{vLANE}
        buffer_store_dword v253, v0, {srd(sWs)}, s{sT0} offen
        s_waitcnt vmcnt(0)""")
        if "--dbgout" in sys.argv:
            wg = 0 if "ffn" in S.name else 8
            sel = (1, 2, 8, 10, 4, 6, 7) if wg == 0 else (1, 3, 5, 6, 7, 8)
            S.e(f"s_lshl_b32 s{sT0}, s2, 2\ns_add_u32 s{sT0}, s{sT0}, s{sW}\ns_cmp_lg_u32 s{sT0}, {4*wg}\ns_cbranch_scc1 L_nd{wg}\nv_readlane_b32 s{sT0}, v253, 16\nv_mov_b32 v0, 0")
            for i, k in enumerate(sel):
                S.e(f"v_readlane_b32 s{sT1}, v253, {16+k}\ns_sub_u32 s{sT1}, s{sT1}, s{sT0}\nv_mov_b32 v1, s{sT1}\nbuffer_store_short v1, v0, {srd(sDbg)}, 0 offen offset:{32 + (0 if wg == 0 else 16) + 2*i}\ns_waitcnt vmcnt(0)")
            S.e(f"L_nd{wg}:")

SCC_R = ("s_cselect", "s_cbranch_scc", "s_addc")
def interleave(S, start, items):
    body = S.ins[start:]; n = len(body)
    ok = []; skip = None
    for i, x in enumerate(body):
        safe = skip is None
        for y in body[i:]:
            if y.kind == 'salu' and y.op.startswith(SCC_R): safe = False; break
            if y.kind == 'salu' and not y.op.startswith(("s_mov", "s_mul", "s_waitcnt", "s_getpc", "s_mem")): break
        if i and body[i-1].kind == 'salu' and body[i-1].op.startswith("s_getpc"): safe = False
        if x.label and i and not safe: pass
        ok.append(safe)
        if x.kind == 'salu' and x.op.startswith("s_cbranch"): skip = x.ops[0] + ":"
        if x.label and x.text.strip() == skip: skip = None
    out = []; k = 0
    for i, x in enumerate(body):
        if k < len(items) and ok[i] and not x.label and i*len(items) >= k*n:
            out += [I(l.strip()) for l in items[k].split("\n")]; k += 1
        out.append(x)
    assert k == len(items), (k, len(items))
    S.ins[start:] = out

def mk_srd(S, b, lo, nbytes, add=None, shrink=False):
    if add is None:
        S.e(f"s_mov_b32 s{b}, s{lo}\ns_mov_b32 s{b+1}, s{lo+1}")
    else:
        S.e(f"s_add_u32 s{b}, s{lo}, s{add}\ns_addc_u32 s{b+1}, s{lo+1}, 0")
    S.e(f"s_mov_b32 s{b+2}, {nbytes}\ns_mov_b32 s{b+3}, 0x20000")
    if shrink: S.e(f"s_sub_u32 s{b+2}, s{b+2}, s{add}")

TX = 144
vXD0, vXD1, vXR0, vXR1 = TX, TX+1, TX+2, TX+3
vTID = TX + 4
vSTA = TX + 6
S = seg("entry")
S.e(f"""
s_cmp_ge_u32 s2, 256
s_cbranch_scc1 L_exit
s_load_dwordx16 s[4:19], s[0:1], 0
s_load_dwordx4 s[20:23], s[0:1], 64
s_load_dwordx2 s[24:25], s[0:1], 80
""")
if STAMP: S.e("s_memrealtime s[100:101]\ns_memtime s[98:99]")
S.e(f"""
v_lshrrev_b32 v1, 6, v0
v_and_b32 v{vLANE}, 63, v0
v_readfirstlane_b32 s{sW}, v1
s_and_b32 s{sT0}, s2, 7
s_lshr_b32 s{sT1}, s2, 3
""")
ORDER = 0
for a_ in sys.argv:
    if a_.startswith('--order='): ORDER = int(a_[8:])
if ORDER == 0:
    S.e(f"s_and_b32 s{sROLE}, s{sT1}, 1\ns_lshr_b32 s{sT1}, s{sT1}, 1")
elif ORDER == 1:
    S.e(f"""s_sub_u32 s{sT2}, s{sT1}, 4
    s_cmp_lt_u32 s{sT2}, 16
    s_cselect_b32 s{sROLE}, 1, 0
    s_cselect_b32 s{sT2}, s{sT2}, s{sT1}
    s_sub_u32 s{sT1}, s{sT1}, 16
    s_cmp_lt_u32 s{sT2}, 20
    s_cselect_b32 s{sT1}, s{sT2}, s{sT1}""")
elif ORDER == 2:
    S.e(f"s_lshr_b32 s{sROLE}, s{sT1}, 4\ns_and_b32 s{sT1}, s{sT1}, 15")
OUTF = ""
for a_ in sys.argv:
    if a_.startswith('--outf='): OUTF = a_[7:]
if not NOPF:
    S.e(f"""s_cmp_lg_u32 s{sW}, 3
    s_cbranch_scc1 L_ncp0
    s_getpc_b64 s[{sEX}:{sEX+1}]
    L_pc0:
    s_mul_i32 s{sT2}, s{sROLE}, L_att-L_pc0
    v_lshl_add_u32 v1, v{vLANE}, 7, s{sT2}
    v_mov_b32 v3, s{sEX+1}
    v_add_co_u32 v2, vcc, s{sEX}, v1
    v_addc_co_u32 v3, vcc, 0, v3, vcc
    global_load_dword v{TX+6}, v[2:3], off
    L_ncp0:""")
lg = int(math.log2(NW))
S.e(f"""s_and_b32 s{sR}, s{sT0}, {16//NW - 1}
s_lshl_b32 s{sR}, s{sR}, {lg}
s_and_b32 s{sT2}, s{sT1}, {NW - 1}
s_add_u32 s{sR}, s{sR}, s{sT2}
s_and_b32 s{sS}, s{sT0}, {7 & ~(16//NW - 1)}
s_lshr_b32 s{sT2}, s{sT1}, {lg}
s_add_u32 s{sS}, s{sS}, s{sT2}
s_lshr_b32 s{sCNT}, s2, 3
s_lshl_b32 s{sM0}, s{sW}, 10
s_lshl_b32 s{sT0}, s{sR}, 7
s_lshl_b32 s{sT1}, s{sW}, 5
s_add_u32 s{sT0}, s{sT0}, s{sT1}
s_mul_i32 s{sXB}, s{sT0}, 1152
s_mul_i32 s{sT3}, s{sW}, 36864
v_mov_b32 v{vTID}, v0
v_lshrrev_b32 v1, 3, v{vLANE}
v_mul_u32_u24 v1, 1152, v1
v_lshrrev_b32 v2, 4, v{vLANE}
v_and_b32 v3, 7, v{vLANE}
v_xor_b32 v3, v3, v2
v_lshl_add_u32 v{vXD0}, v3, 4, v1
v_xor_b32 v{vXD1}, 64, v{vXD0}
s_lshl_b32 s{sT2}, s{sT2}, 1
s_add_u32 s{sT2}, s{sT2}, s{sROLE}
s_mul_i32 s{sT2}, s{sT2}, {147456 // NX}
s_mul_i32 s{sT0}, s{sR}, 147456
s_add_u32 s{sT2}, s{sT2}, s{sT0}
v_lshlrev_b32 v4, 7, v0
s_waitcnt lgkmcnt(0)
""")
if STAMP: S.e(f"v_mov_b32 v253, 0\nv_writelane_b32 v253, s98, 0\nv_writelane_b32 v253, s100, 16")
mk_srd(S, sX, 4, 2048*1152)
for a_ in sys.argv:
    if a_.startswith("--diag-lat="):
        st = int(a_.split("=")[1])
        mk_srd(S, sWs, 24, 0x10000000)
        S.e(f"s_lshl_b32 s{sT0}, s2, 9\ns_add_u32 s{sT0}, s{sT0}, 0x4000000\ns_lshl_b32 s{sT1}, s{sW}, 7\ns_add_u32 s{sT0}, s{sT0}, s{sT1}")
        for i in range(8):
            S.e(f"buffer_load_dword v6, off, {srd(sWs)}, s{sT0}\ns_waitcnt vmcnt(0)\ns_add_u32 s{sT0}, s{sT0}, {st}")
vm = Q("vmcnt", 63)
if not NOPF:
    nl = 1152 // NX
    for i in range(-(-nl // 256)):
        if i: S.e(f"s_add_u32 s{sT2}, s{sT2}, 32768")
        if nl - 256*i < 256:
            S.e(f"v_cmp_gt_u32 vcc, {nl - 256*i}, v0\ns_and_saveexec_b64 s[{sEX}:{sEX+1}], vcc\ns_cbranch_execz L_nxpf")
        S.e(f"buffer_load_dword v5, v4, {srd(sX)}, s{sT2} offen")
    S.e(f"L_nxpf:\ns_mov_b64 exec, -1")
sXM = sSPIN
def x_items(vm, c):
    it = []
    for o in range(4):
        it.append(f"""s_add_u32 m0, s{sXM}, {c*4096 + o*1024}
        s_add_u32 s{sOFF}, s{sXB}, {8*o*1152 + 128*c}
        buffer_load_dwordx4 v{vXD0 + (o & 1)}, {srd(sX)}, s{sOFF} offen lds""")
        vm.issue(("x", c))
    return it
def x_dma(S, vm, c):
    for t in x_items(vm, c): S.e(t)
S.e(f"s_mov_b32 s{sXM}, s{sT3}")
XPRE = 4
for a_ in sys.argv:
    if a_.startswith('--xpre='): XPRE = int(a_[7:])
XST = '--xstamp' in sys.argv
for c in range(1): x_dma(S, vm, c)
if XST: stamp(S, 11)
mark = len(S.ins)
mk_srd(S, sWs, 24, WS_BYTES)
S.e(f"""s_lshl_b32 s{sFLB}, s{sR}, 11
s_add_u32 s{sFLB}, s{sFLB}, {FL_OFF}
s_xor_b32 s{sT0}, s{sS}, {SK}
s_or_b32 s{sT0}, s{sT0}, s{sROLE}
s_or_b32 s{sT0}, s{sT0}, s{sW}
s_cbranch_scc1 L_nzero
v_lshlrev_b32 v1, 4, v{vLANE}
v_mov_b32 v8, 0
v_mov_b32 v9, 0
v_mov_b32 v10, 0
v_mov_b32 v11, 0
buffer_store_dwordx4 v[8:11], v1, {srd(sWs)}, s{sFLB} offen sc1
buffer_store_dwordx4 v[8:11], v1, {srd(sWs)}, s{sFLB} offen offset:1024 sc1
L_nzero:
""")
S.e(f"""
s_getpc_b64 s[{sEX}:{sEX+1}]
L_pc:
s_mul_i32 s{sT0}, s{sCNT}, (L_codeend-L_pc+4095)/4096*128
v_lshl_add_u32 v1, v{vLANE}, 7, s{sT0}
v_min_u32 v1, L_codeend-L_pc-16, v1
v_mov_b32 v3, s{sEX+1}
v_add_co_u32 v2, vcc, s{sEX}, v1
v_addc_co_u32 v3, vcc, 0, v3, vcc
s_cmp_lg_u32 s{sW}, 2
s_cbranch_scc1 L_ncpf
global_load_dword v{TX+5}, v[2:3], off
L_ncpf:
""")
mk_srd(S, sOut, 20, 2048*1152)
mk_srd(S, sDbg, 22, 256)
mk_srd(S, sWo, 12, 576*1152)
S.e(f"s_mul_i32 s{sT0}, s{sS}, {576*1152}")
mk_srd(S, sWb, 18, 576*1152, add=sT0)
S.e(f"""
s_mov_b32 s{sSEL0}, 0x3f80
s_mov_b32 s{sSEL1}, 0x3f800000
s_mov_b32 s{sONES}, 0x3f803f80
s_mov_b32 s{sHI}, 0xffff0000
s_mov_b32 s{sK}, {f2u(-LOG2E)}
v_and_b32 v1, 15, v{vLANE}
v_lshrrev_b32 v2, 3, v1
v_lshlrev_b32 v2, 10, v2
v_and_b32 v3, 7, v1
v_lshl_add_u32 v2, v3, 7, v2
v_lshrrev_b32 v1, 1, v1
v_lshrrev_b32 v3, 4, v{vLANE}
v_xor_b32 v1, v1, v3
v_lshl_add_u32 v2, v1, 4, v2
v_add_u32 v{vXR0}, s{sT3}, v2
v_xor_b32 v{vXR1}, 64, v{vXR0}
s_lshl_b32 s{sT3}, s{sS}, 7
""")
for q in range(7):
    S.e(f"s_add_u32 s{sT0}, s{sS}, {q+1}\ns_and_b32 s{sT0}, s{sT0}, 7\ns_lshl_b32 s{sCOL+q}, s{sT0}, 7")
S.e(f"s_mov_b32 s{sCOL+7}, 1024\ns_mov_b32 s{sCOL+8}, s{sT3}")
interleave(S, mark, x_items(vm, 1))
S.e(f"s_cmp_eq_u32 s{sROLE}, 1\ns_cbranch_scc1 L_att")
vm_entry = list(vm.q)

def x_read_stats(S, vm, T, hook=None):
    lq = Q("lgkmcnt", 15)
    def stats(c):
        S.e(lq.wait(lambda t: t <= c))
        for kk in range(2):
            for d in range(4):
                for rb in range(2):
                    r = 8*(2*c + kk) + 4*rb + d
                    first = (c == 0 and kk == 0 and d == 0)
                    S.e(f"v_dot2_f32_bf16 v{T+rb}, v{r}, s{sONES}, {'0' if first else 'v%d' % (T+rb)}")
                    S.e(f"v_dot2_f32_bf16 v{T+2+rb}, v{r}, v{r}, {'0' if first else 'v%d' % (T+2+rb)}")
    for c in range(9):
        S.e(vm.wait(lambda t: t[0] == "x" and t[1] <= c))
        if XST and c in (0, 4, 8): stamp(S, 12 + c // 4 if c else 2)
        if c + XPRE < 9: x_dma(S, vm, c + XPRE)
        for kk in range(2):
            for rb in range(2):
                r = 8*(2*c + kk) + 4*rb
                S.e(f"ds_read_b128 v[{r}:{r+3}], v{vXR0+kk} offset:{c*4096 + rb*2048}"); lq.issue(c)
        if c: stats(c - 1)
    if hook: hook()
    S.e("s_waitcnt lgkmcnt(0)\ns_barrier")
    lq.q = [8]
    return lambda: stats(8)

def ln_stats(S, T):
    U = T + 12
    for op in ("v_permlane16_swap_b32", "v_permlane32_swap_b32"):
        for i in range(4): S.e(f"v_mov_b32 v{U+i}, v{T+i}")
        for i in range(4): S.e(f"{op} v{T+i}, v{U+i}")
        for i in range(4): S.e(f"v_add_f32 v{T+i}, v{T+i}, v{U+i}")
    for i in range(4): S.e(f"v_mul_f32 v{T+i}, {f2u(1.0/576)}, v{T+i}")
    for rb in range(2): S.e(f"v_fma_f32 v{T+2+rb}, -v{T+rb}, v{T+rb}, v{T+2+rb}")
    for rb in range(2): S.e(f"v_max_f32 v{T+2+rb}, 0, v{T+2+rb}")
    for rb in range(2): S.e(f"v_add_f32 v{T+2+rb}, {f2u(1e-5)}, v{T+2+rb}")
    for rb in range(2): S.e(f"v_rsq_f32 v{T+2+rb}, v{T+2+rb}")

def ln_norm(S, T, alpha, items=(), centre_only=False):
    U = T + 12
    for rb in range(2): S.e(f"v_mul_f32 v{T+4+4*rb}, {f2u(alpha)}, v{T+2+rb}")
    for rb in range(2 * (not centre_only)): S.e(f"v_mul_f32_e64 v{T+6+4*rb}, -v{T+rb}, v{T+4+4*rb}")
    for rb in range(2 * (not centre_only)): S.e(f"v_mov_b32 v{T+5+4*rb}, v{T+4+4*rb}\nv_mov_b32 v{T+7+4*rb}, v{T+6+4*rb}")
    if centre_only:
        for rb in range(2): S.e(f"v_sub_f32 v{T+rb}, 0, v{T+rb}\nv_accvgpr_write_b32 a{201+rb}, v{T+4+4*rb}")
        assert U % 8 == 4
    t0, t1 = U, U + 2
    items = list(items); ni = len(items); done = 0
    for r in range(0, 144, 2):
        while done < ni and done*72 <= (r // 2)*ni*1.15: items[done](); done += 1
        a = T + 4 + 4*((r >> 2) & 1); b = a + 2
        if centre_only:
            m = T + ((r >> 2) & 1)
            S.e(f"""v_dot2_f32_bf16 v{t0}, v{r}, s{sSEL0}, v{m}
            v_dot2_f32_bf16 v{t0+1}, v{r}, s{sSEL1}, v{m}
            v_dot2_f32_bf16 v{t1}, v{r+1}, s{sSEL0}, v{m}
            v_dot2_f32_bf16 v{t1+1}, v{r+1}, s{sSEL1}, v{m}""")
            if r: S.e(f"v_cvt_pk_bf16_f32 v{r-2}, v{t0^4}, v{(t0^4)+1}\nv_cvt_pk_bf16_f32 v{r-1}, v{t1^4}, v{(t1^4)+1}")
            t0 ^= 4; t1 ^= 4
            if r == 142: S.e(f"v_cvt_pk_bf16_f32 v{r}, v{t0^4}, v{(t0^4)+1}\nv_cvt_pk_bf16_f32 v{r+1}, v{t1^4}, v{(t1^4)+1}")
            continue
        S.e(f"""v_lshlrev_b32 v{t0}, 16, v{r}
        v_and_b32 v{t0+1}, s{sHI}, v{r}
        v_lshlrev_b32 v{t1}, 16, v{r+1}
        v_and_b32 v{t1+1}, s{sHI}, v{r+1}
        v_pk_fma_f32 v[{t0}:{t0+1}], v[{t0}:{t0+1}], v[{a}:{a+1}], v[{b}:{b+1}]
        v_pk_fma_f32 v[{t1}:{t1+1}], v[{t1}:{t1+1}], v[{a}:{a+1}], v[{b}:{b+1}]
        v_cvt_pk_bf16_f32 v{r}, v{t0}, v{t0+1}
        v_cvt_pk_bf16_f32 v{r+1}, v{t1}, v{t1+1}""")

def xres_lane(S, dst, t1):
    S.e(f"""v_lshrrev_b32 v{t1}, 4, v{vLANE}
    v_lshrrev_b32 v{dst}, 5, v{vLANE}
    v_xor_b32 v{dst}, v{t1}, v{dst}
    v_lshlrev_b32 v{dst}, 4, v{dst}
    v_xor_b32 v{dst}, v{vXR0}, v{dst}
    v_and_b32 v{t1}, 1, v{t1}
    v_lshl_add_u32 v{dst}, v{t1}, 3, v{dst}""")

def tr_lane(S, dst, mode, t1):
    S.e(f"""
    v_bfe_u32 v{t1}, v{vLANE}, 2, 2
    v_lshlrev_b32 v{dst}, 6, v{t1}
    v_and_b32 v{t1}, 3, v{vLANE}
    v_lshl_add_u32 v{dst}, v{t1}, 3, v{dst}
    v_bfe_u32 v{t1}, v{vLANE}, 4, 1
    """)
    if mode == 'A':
        S.e(f"v_lshl_add_u32 v{dst}, v{t1}, 5, v{dst}\nv_lshrrev_b32 v{t1}, 4, v{vLANE}\nv_lshl_add_u32 v{dst}, v{t1}, 10, v{dst}")
    else:
        S.e(f"v_mul_u32_u24 v{t1}, 288, v{t1}\nv_add_u32 v{dst}, v{dst}, v{t1}\nv_lshrrev_b32 v{t1}, 5, v{vLANE}\nv_lshl_add_u32 v{dst}, v{t1}, 10, v{dst}")

def dma_lane(S, dst, stride, row, mode, t1):
    S.e(f"v_mul_u32_u24 v{dst}, {stride}, v{row}\nv_lshrrev_b32 v{t1}, 5, v{vLANE}\nv_lshl_add_u32 v{dst}, v{t1}, 6, v{dst}\nv_and_b32 v{t1}, 3, v{vLANE}\nv_lshl_add_u32 v{dst}, v{t1}, 4, v{dst}")
    if mode == 'A':
        S.e(f"s_and_b32 s{sT0}, s{sW}, 1\ns_lshl_b32 s{sT0}, s{sT0}, 5\nv_xor_b32 v{dst}, s{sT0}, v{dst}")
    else:
        S.e(f"v_and_b32 v{t1}, 16, v{vLANE}\nv_lshlrev_b32 v{t1}, 1, v{t1}\nv_xor_b32 v{dst}, v{dst}, v{t1}")

def spin_head(S, name):
    S.e(f"s_mov_b32 s{sSPIN}, 0\nL_{name}_spin:")
def spin_tail(S, name, sl=1):
    S.e(f"s_sleep {sl}\ns_add_u32 s{sSPIN}, s{sSPIN}, 1\ns_cmp_lt_u32 s{sSPIN}, 0x80000\ns_cbranch_scc1 L_{name}_spin")
def poll_all(S, name, srdb, vaddr, soff, v0, first_load=True):
    ld = f"buffer_load_dword v{v0}, v{vaddr}, {srd(srdb)}, {soff} offen sc1"
    if not first_load: S.e(f"v_cmp_eq_u32 vcc, 0x1010101, v{v0}\ns_cmp_eq_u64 vcc, -1\ns_cbranch_scc1 L_{name}_done")
    spin_head(S, name)
    S.e(f"{ld}\ns_waitcnt vmcnt(0)\nv_cmp_eq_u32 vcc, 0x1010101, v{v0}\ns_cmp_eq_u64 vcc, -1\ns_cbranch_scc1 L_{name}_done")
    spin_tail(S, name, 4)
    S.e(f"L_{name}_done:")
def poll_line(S, name, vaddr, off, v0):
    spin_head(S, name)
    S.e(f"""buffer_load_dwordx2 v[{v0}:{v0+1}], v{vaddr}, {srd(sWs)}, 0 offen offset:{off} sc1
    s_waitcnt vmcnt(0)
    v_readfirstlane_b32 s{sT0}, v{v0}
    v_readfirstlane_b32 s{sT1}, v{v0+1}
    s_and_b32 s{sT0}, s{sT0}, s{sT1}
    s_cmp_eq_u32 s{sT0}, 0x1010101
    s_cbranch_scc1 L_{name}_done""")
    spin_tail(S, name)
    S.e(f"L_{name}_done:")
def line_addr(S, dst, nl, const, t1, add=sS):
    S.e(f"""s_lshl_b32 s{sT0}, s{sW}, 3
    s_add_u32 s{sT0}, s{sT0}, s{add}
    s_add_u32 s{sT0}, s{sT0}, {const}
    v_lshl_add_u32 v{dst}, v{vLANE}, 7, s{sT0}
    v_mov_b32 v{t1}, {WS_BYTES}
    v_cmp_gt_u32 vcc, {nl}, v{vLANE}
    v_cndmask_b32 v{dst}, v{t1}, v{dst}, vcc""")
def line_store(vval, vaddr, soff): return f"buffer_store_byte v{vval}, v{vaddr}, {srd(sWs)}, s{soff} offen sc1"

def wave_max(S, v):
    for sh in (1, 2, 4, 8):
        S.e(f"v_max_f32_dpp v{v}, v{v}, v{v} row_shr:{sh} row_mask:0xf bank_mask:0xf")
    S.e(f"v_max_f32_dpp v{v}, v{v}, v{v} row_bcast:15 row_mask:0xa bank_mask:0xf")
    S.e(f"v_max_f32_dpp v{v}, v{v}, v{v} row_bcast:31 row_mask:0xc bank_mask:0xf")

def mf16(a, A, B, first):
    return f"v_mfma_f32_16x16x32_bf16 v[{a}:{a+3}], {A}, {B}, {'0' if first else 'v[%d:%d]' % (a, a+3)}"

FR = 144
DR = 4
def simple_gemm(S, nunits, rd, unit, pre_wait=None, post=None):
    lq = Q("lgkmcnt", 15)
    for j in range(DR):
        for x in rd(j): S.e(x); lq.issue(j)
    S.e(lq.wait(lambda t: t <= 0))
    if pre_wait: pre_wait(0)
    for i in range(nunits):
        m = unit(i); r = rd(i + DR) if i + DR < nunits else []
        S.e(m[0])
        if pre_wait and i + 1 < nunits: pre_wait(i + 1)
        if r: S.e(r[0]); lq.issue(i + DR)
        S.e(m[1])
        x = lq.wait(lambda t: t <= i + 1)
        if x: S.e(x)
        if r: S.e(r[1]); lq.issue(i + DR)
        for x in m[2:]: S.e(x)
def frag(j): return FR + 4*(j % 8)
def trr(f, base, o1, o2, base2=None):
    return [f"ds_read_b64_tr_b16 a[{f}:{f+1}], v{base} offset:{o1}", f"ds_read_b64_tr_b16 a[{f+2}:{f+3}], v{base if base2 is None else base2} offset:{o2}"]

ACC = 144
HV = 208
vT = 224
vRA, vRB = 236, 242
vD1, vD2, vPS, vFA, vFV, vKA = 248, 249, 250, 251, 252, 254
SLOT = 24576
KVIMG = 5 * SLOT
aST = 240
RR, PT0, PT1, XR = 16, 48, 64, 80
vD3, vD4, vFR, vXRA, vOA, vLA, vLA8, vFL = 96, 97, 98, 99, 100, 101, 104, 102
vHS = 200

def hreg(k, rb):
    i = 8*k + 4*rb
    kind, reg = hdst(i)
    return f"{kind}[{reg}:{reg+3}]"
def hdst(i):
    if i < 112: return ('a', i)
    if i < 128: return ('v', HV + i - 112)
    return ('v', i - 128)

S = seg("ffn_pro")
vm = Q("vmcnt", 63); vm.q = list(vm_entry)
mark = len(S.ins)
S.e(f"s_mul_i32 s{sT0}, s{sS}, 1152")
mk_srd(S, sWa, 16, 576*9216, add=sT0, shrink=True)
S.e(f"""s_cmp_eq_u32 s{sS}, {SK}
s_cselect_b32 s{sKV}, s8, s10
s_cselect_b32 s{sKV+1}, s9, s11
s_mov_b32 s{sKV+2}, {576*36}
s_mov_b32 s{sKV+3}, 0x20000
""")
t0, t1, t2 = vT, vT+1, vT+2
S.e(f"v_bfe_u32 v{t0}, v{vLANE}, 2, 3\nv_lshl_add_u32 v{t1}, s{sW}, 3, v{t0}")
dma_lane(S, vD1, 9216, t1, 'A', t2)
dma_lane(S, vD2, 1152, t1, 'B', t2)
tr_lane(S, vRA, 'A', t2); tr_lane(S, vRB, 'B', t2)
for b in (vRA, vRB):
    S.e(f"v_xor_b32 v{b+1}, 32, v{b}")
    for sg in (1, 2): S.e(f"v_add_u32 v{b+2*sg}, {2*sg*SLOT}, v{b}\nv_add_u32 v{b+2*sg+1}, {2*sg*SLOT}, v{b+1}")
S.e(f"""
s_lshl_b32 s{sT0}, s{sW}, 3
s_add_u32 s{sT0}, s{sT0}, s{sT3}
s_add_u32 s{sT0}, s{sT0}, s{sFLB}
v_mov_b32 v{t1}, s{sT0}
v_accvgpr_write_b32 a{aST+2}, v{t1}
s_lshl_b32 s{sT0}, s{sR}, 3
v_and_b32 v{t1}, 15, v{vLANE}
v_mul_u32_u24 v{t1}, 1152, v{t1}
v_add_u32 v{t1}, s{sXB}, v{t1}
v_bfe_u32 v{t2}, v{vLANE}, 4, 1
v_lshl_add_u32 v{t1}, v{t2}, 5, v{t1}
v_lshrrev_b32 v{t2}, 5, v{vLANE}
v_lshl_add_u32 v{t1}, v{t2}, 4, v{t1}
v_accvgpr_write_b32 a{aST+4}, v{t1}
s_lshl_b32 s{sT1}, s{sW}, 12
v_lshl_add_u32 v{vPS}, v{vLANE}, 4, s{sT1}
s_add_u32 s{sT0}, s{sT0}, s{sS}
s_mul_i32 s{sT0}, s{sT0}, 147456
s_add_u32 s{sT0}, s{sT0}, {P_OFF}
s_mul_i32 s{sPL}, s{sR}, {8*147456}
s_lshl_b32 s{sT1}, s{sS}, 14
s_add_u32 s{sPL}, s{sPL}, s{sT1}
s_add_u32 s{sPL}, s{sPL}, {P_OFF}
""")
for q in range(8): S.e(f"s_lshl_b32 s{sT1}, s{sCOL+q}, 7\ns_add_u32 s{sST+q}, s{sT1}, s{sT0}")
line_addr(S, vT+3, 1, 0, t1)
S.e(f"v_accvgpr_write_b32 a{aST+5}, v{vT+3}")
S.e(f"s_lshr_b32 s{sT1}, s{sW}, 1\ns_lshl_b32 s{sT1}, s{sT1}, 9\ns_add_u32 s{sT1}, s{sT1}, s{sS}")
line_addr(S, vT+3, 4, 1024 + 32, t1, add=sT1)
S.e(f"""v_accvgpr_write_b32 a{aST+6}, v{vT+3}
s_lshl_b32 s{sT0}, s{sR}, 1
s_lshr_b32 s{sT2}, s{sS}, 2
s_add_u32 s{sT2}, s{sT2}, s{sT0}
s_cmp_lg_u32 s{sW}, 0
s_cselect_b32 s{sT2}, 1024, s{sT2}
s_cselect_b32 s{sT1}, 0, 16
v_lshl_add_u32 v{vFA}, v{vLANE}, 8, s{sT2}
v_lshlrev_b32 v{vHS}, 7, v{vLANE}
v_add_u32 v{vHS}, {KC_OFF}, v{vHS}
v_mov_b32 v{vHS+1}, {WS_BYTES}
v_cmp_gt_u32 vcc, s{sT1}, v{vLANE}
v_cndmask_b32 v{vHS}, v{vHS+1}, v{vHS}, vcc
s_mov_b32 s{sHSA}, s{sT0}
s_lshl_b32 s{sHSK}, s{sW}, 4
s_add_u32 s{sHSK}, s{sHSK}, s{sS}
v_mov_b32 v{vFV}, 1""")
aXR = 224
vXC = vT + 4
xres_lane(S, t2, t1)
S.e(f"s_lshl_b32 s{sT0}, s{sS}, 12\nv_add_u32 v{vXC}, s{sT0}, v{t2}")
for ct in range(1, 4): S.e(f"v_xor_b32 v{vXC+ct}, {32*ct}, v{vXC}")
LPW = 144 // NW
vW1P = vT + 8
LW1 = 192 // NW
S.e(f"""s_and_b32 s{sT0}, s{sR}, {NW-1}
s_lshl_b32 s{sT0}, s{sT0}, 2
s_add_u32 s{sT0}, s{sT0}, s{sW}
s_mul_i32 s{sT0}, s{sT0}, {LW1}
s_add_u32 s{sT0}, s{sT0}, 384
v_add_u32 v{t1}, s{sT0}, v{vLANE}
v_mul_u32_u24 v{vW1P}, 9216, v{t1}
v_cmp_lt_u32 vcc, 575, v{t1}
v_subrev_u32 v{t1}, {576*9216 - 128}, v{vW1P}
v_cndmask_b32 v{vW1P}, v{vW1P}, v{t1}, vcc
v_cmp_gt_u32 vcc, {LW1}, v{vLANE}
v_mov_b32 v{t1}, 0x40000000
v_cndmask_b32 v{vW1P}, v{t1}, v{vW1P}, vcc""")
interleave(S, mark, sum((x_items(vm, c) for c in range(2, XPRE)), []))
KT = ACC + 8
S.e(f"""s_and_b32 s{sT0}, s{sS}, 3
s_cbranch_scc1 L_ffn_nokv1
v_mul_u32_u24 v{vKA}, 12, v{vLANE}
s_mul_i32 s{sT0}, s{sW}, 756""")
for j in range(7):
    S.e(f"buffer_load_dwordx3 v[{KT+4*j}:{KT+4*j+2}], v{vKA}, {srd(sKV)}, s{sT0} offen")
    if j < 6: S.e(f"s_add_u32 s{sT0}, s{sT0}, 3024")
S.e(f"""v_mul_u32_u24 v{KT+3}, 86, v{vLANE}
v_lshrrev_b32 v{KT+3}, 8, v{KT+3}
v_lshl_add_u32 v{vKA}, v{KT+3}, 2, v{vKA}
s_mul_i32 s{sT0}, s{sW}, 840
s_add_u32 s{sT0}, s{sT0}, {KVIMG}
v_add_u32 v{vKA}, s{sT0}, v{vKA}
L_ffn_nokv1:""")
def xres():
    for ct in range(4):
        for rb in range(2): S.e(f"ds_read_b64 a[{aXR+4*ct+2*rb}:{aXR+4*ct+2*rb+1}], v{vXC+ct} offset:{2048*rb}")
fin = x_read_stats(S, vm, vT, xres)
stamp(S, 1)

def dma_src(T, n):
    P, sg = T // 3, T % 3
    if P < 9:  return sWa, vD1, (192*sg + 32*n) * 9216 + P*128, None
    if P < 18: return sWb, vD2, (192*sg + 32*n) * 1152, sCOL + P - 9
def dma_soff(T, n):
    _, _, c, extra = dma_src(T, n)
    return f"s_mov_b32 s{sOFF}, {c}" if extra is None else f"s_add_u32 s{sOFF}, s{extra}, {c}"
def dma_m0(T, n): return f"s_add_u32 m0, s{sM0}, {(T%6)*SLOT + n*4096}"
def dma_go(T, n):
    b, v, _, _ = dma_src(T, n)
    return f"buffer_load_dwordx4 v{v}, {srd(b)}, s{sOFF} offen lds"
def dma_item(T, n):
    def f(): S.e(dma_m0(T, n)); S.e(dma_soff(T, n)); S.e(dma_go(T, n)); vm.issue(("dma", T))
    return f
for n in range(6): dma_item(0, n)()
if not NOPF: S.e(f"buffer_load_dword a248, v{vW1P}, {srd(sWa)}, 0 offen")
fin()
for i in range(4): S.e(f"v_mov_b32 v{HV+i}, v{vT+i}")
ln_stats(S, HV)
S.e(f"s_and_b32 s{sT0}, s{sS}, 3\ns_cbranch_scc1 L_ffn_norm")

S = seg("ffn_kv")
CS, PK, ONE, VS = ACC + 16, ACC + 24, ACC + 36, ACC + 40
for j in range(7):
    b = KT + 4*j
    if j: S.e(f"v_add_u32 v{vKA}, 3360, v{vKA}")
    S.e(f"ds_write2_b32 v{vKA}, v{b}, v{b+1} offset0:0 offset1:1\nds_write_b32 v{vKA}, v{b+2} offset:8")
for rb in range(2): S.e(f"v_mul_f32 v{HV+4+rb}, v{HV+rb}, v{HV+2+rb}")
S.e(f"""
s_lshl_b32 s{sT0}, s{sW}, 8
s_add_u32 s{sT0}, s{sT0}, {6*SLOT}
v_and_b32 v{t0}, 15, v{vLANE}
v_lshl_add_u32 v{t0}, v{t0}, 2, s{sT0}
ds_write2_b32 v{t0}, v{HV+2}, v{HV+3} offset0:0 offset1:16
ds_write2_b32 v{t0}, v{HV+4}, v{HV+5} offset0:32 offset1:48
v_lshrrev_b32 v{t1}, 4, v{vLANE}
v_lshl_add_u32 v{vT+4}, v{t1}, 4, s{sT0}
v_bfe_u32 v{t0}, v{vLANE}, 2, 2
v_lshl_add_u32 v{t0}, v{t1}, 3, v{t0}
v_mul_u32_u24 v{t0}, 40, v{t0}
v_add_u32 v{vT+3}, {KVIMG+32}, v{t0}
v_and_b32 v{t1}, 3, v{vLANE}
v_lshl_add_u32 v{t0}, v{t1}, 3, v{t0}
v_add_u32 v{vKA}, {KVIMG}, v{t0}
""")
for i in range(4): S.e(f"v_mov_b32 v{ONE+i}, s{sONES}")
S.e(f"""s_waitcnt lgkmcnt(0)
s_barrier
s_cmp_eq_u32 s{sS}, {SV}
s_cbranch_scc1 L_ffn_v
""")
def kv_chain(S, swapped):
    def rd(j):
        k, ct = j // 2, j % 2
        return trr(frag(j), vKA if ct == 0 else vT+3, 1280*k, 1280*k + 160)
    def unit(j):
        k, ct = j // 2, j % 2
        out = []
        for q in range(2):
            rb = q ^ ct; w = f"a[{frag(j)}:{frag(j)+3}]"; x = f"v[{8*k+4*rb}:{8*k+4*rb+3}]"
            out.append(mf16(ACC + 8*ct + 4*rb, *((x, w) if swapped else (w, x)), k == 0))
        x = f"v[{ONE}:{ONE+3}]"
        out.append(mf16(CS + 4*ct, *((x, w) if swapped else (w, x)), k == 0))
        return out
    simple_gemm(S, 36, rd, unit)
kv_chain(S, False)
nrm = vT + 4
S.e(f"""
s_mul_i32 s{sT0}, s{sR}, {KV_IT}
v_and_b32 v{t0}, 15, v{vLANE}
v_lshrrev_b32 v{t1}, 5, v{vLANE}
v_lshlrev_b32 v{t1}, 9, v{t1}
v_lshl_add_u32 v{t1}, v{t0}, 4, v{t1}
v_bfe_u32 v{t2}, v{vLANE}, 4, 1
v_lshl_add_u32 v{t1}, v{t2}, 3, v{t1}
v_add_u32 v{t1}, s{sM0}, v{t1}
s_lshr_b32 s{sT1}, s{sW}, 1
s_lshl_b32 s{sT1}, s{sT1}, 8
s_and_b32 s{sT2}, s{sW}, 1
s_lshl_b32 s{sT2}, s{sT2}, 2
s_add_u32 s{sT1}, s{sT1}, s{sT2}
v_lshl_add_u32 v{t0}, v{t0}, 3, s{sT1}
v_cmp_gt_u32 vcc, 16, v{vLANE}
""")
for rb in range(2):
    for i in (0, 1, 2, 3, 8, 9): S.e(f"v_mul_f32 v{ACC+4*rb+i}, v{HV+2+rb}, v{ACC+4*rb+i}")
for rb in range(2):
    for i in (0, 1, 2, 3, 8, 9): S.e(f"v_fma_f32 v{ACC+4*rb+i}, -v{HV+4+rb}, v{CS + (i if i < 4 else i - 4)}, v{ACC+4*rb+i}")
for rb in range(2):
    a = ACC + 4*rb; p = PK + 4*rb
    S.e(f"v_cvt_pk_bf16_f32 v{p}, v{a}, v{a+1}\nv_cvt_pk_bf16_f32 v{p+1}, v{a+2}, v{a+3}\nv_cvt_pk_bf16_f32 v{p+2}, v{a+8}, v{a+9}")
    S.e(f"buffer_store_dwordx2 v[{p}:{p+1}], v{t1}, {srd(sWs)}, s{sT0} offen offset:{512+256*rb} sc1")
S.e("s_mov_b64 exec, 0xffff")
for rb in range(2): S.e(f"buffer_store_dword v{PK+2+4*rb}, v{t0}, {srd(sWs)}, s{sT0} offen offset:{128*rb} sc1")
S.e("s_mov_b64 exec, -1")
for rb in range(2):
    a = ACC + 4*rb; n = nrm + rb
    S.e(f"v_mul_f32 v{n}, v{a+8}, v{a+8}\nv_fmac_f32 v{n}, v{a+9}, v{a+9}\nv_cndmask_b32 v{n}, 0, v{n}, vcc")
    for i in range(4): S.e(f"v_fmac_f32 v{n}, v{a+i}, v{a+i}")
for op in ("v_permlane16_swap_b32", "v_permlane32_swap_b32"):
    for rb in range(2): S.e(f"v_mov_b32 v{nrm+2+rb}, v{nrm+rb}")
    for rb in range(2): S.e(f"{op} v{nrm+rb}, v{nrm+2+rb}")
    for rb in range(2): S.e(f"v_add_f32 v{nrm+rb}, v{nrm+rb}, v{nrm+2+rb}")
S.e(f"v_max_f32 v{nrm}, v{nrm}, v{nrm+1}")
wave_max(S, nrm)
S.e(f"""v_readlane_b32 s{sT1}, v{nrm}, 63
s_lshl_b32 s{sT0}, s{sR}, 2
s_add_u32 s{sT0}, s{sT0}, s{sW}
s_lshl_b32 s{sT0}, s{sT0}, 2
s_add_u32 s{sT0}, s{sT0}, {KN_OFF}
v_mov_b32 v{nrm}, s{sT1}
v_mov_b32 v{nrm+1}, 0
s_mov_b64 exec, 1
buffer_store_dword v{nrm}, v{nrm+1}, {srd(sWs)}, s{sT0} offen sc1
s_mov_b64 exec, -1
s_branch L_ffn_norm
""")
S = seg("ffn_v")
S.e("L_ffn_v:")
for z in range(4): S.e(f"ds_read_b128 v[{VS+4*z}:{VS+4*z+3}], v{vT+4} offset:{64*z}")
S.e("s_waitcnt lgkmcnt(0)")
kv_chain(S, True)
S.e(f"""
s_mul_i32 s{sT0}, s{sR}, {KV_IT}
s_mul_i32 s{sT1}, s{sW}, {VT}
s_add_u32 s{sT0}, s{sT0}, s{sT1}
s_add_u32 s{sT0}, s{sT0}, {512+4096}
v_and_b32 v{t0}, 15, v{vLANE}
v_lshrrev_b32 v{t1}, 5, v{vLANE}
v_mul_u32_u24 v{t1}, 336, v{t1}
v_lshl_add_u32 v{t1}, v{t0}, 4, v{t1}
v_bfe_u32 v{t2}, v{vLANE}, 4, 1
v_lshl_add_u32 v{t1}, v{t2}, 3, v{t1}
v_cmp_eq_u32 vcc, 2, v{t0}
v_mov_b32 v{t2}, s{sONES}
v_cndmask_b32 v{t2}, 0, v{t2}, vcc
v_cmp_gt_u32 vcc, 2, v{t0}
""")
for e in range(16): S.e(f"v_mul_f32 v{ACC+e}, v{VS + (e & 7)}, v{ACC+e}")
for e in range(16): S.e(f"v_fma_f32 v{ACC+e}, -v{VS + 8 + (e & 7)}, v{CS + 4*(e >> 3)}, v{ACC+e}")
for i in range(8): S.e(f"v_cvt_pk_bf16_f32 v{PK+i}, v{ACC+2*i}, v{ACC+2*i+1}")
for i in range(4, 8): S.e(f"v_cndmask_b32 v{PK+i}, v{t2}, v{PK+i}, vcc")
for rb in range(2): S.e(f"buffer_store_dwordx2 v[{PK+2*rb}:{PK+1+2*rb}], v{t1}, {srd(sWs)}, s{sT0} offen offset:{672*rb} sc1")
S.e("s_mov_b32 exec_lo, 0x1f001f\ns_mov_b32 exec_hi, 0x1f001f")
for rb in range(2): S.e(f"buffer_store_dwordx2 v[{PK+4+2*rb}:{PK+5+2*rb}], v{t1}, {srd(sWs)}, s{sT0} offen offset:{672*rb+256} sc1")
S.e("s_mov_b64 exec, -1")
S = seg("ffn_norm")
S.e("L_ffn_norm:")
if not XST: stamp(S, 14)
nq0 = len(vm.q)
def kv_signal():
    S.e(f"""s_and_b32 s{sT0}, s{sS}, 3
    s_cbranch_scc1 L_ffn_nosig
    s_waitcnt vmcnt({len(vm.q) - nq0})
    s_barrier
    buffer_atomic_add v{vFV}, v{vHS}, {srd(sWs)}, 0 offen sc1
    buffer_store_byte v{vFV}, v{vFA}, {srd(sDbg)}, 0 offen sc1
    L_ffn_nosig:""")
items = [dma_item(1, n) for n in range(6)]
items.insert(3, kv_signal)
ln_norm(S, HV, -LOG2E, items)
if not XST: stamp(S, 2)

S = seg("ffn_main")
S.e("L_ffn_main:")
stamp(S, 3)
NU = 18*72
lg = Q("lgkmcnt", 15)
def rd_ins(j):
    P = j // 72; T = j // 24; ks = (j % 24) >> 2; ct = j & 3
    slot = T % 6
    base = (vRA if P < 9 else vRB) + 2*(slot // 2) + (ct & 1)
    off = (slot % 2)*SLOT + ks*4096 + (ct >> 1)*512
    return trr(frag(j), base, off, off + (256 if P < 9 else 2048))
class Op:
    def __init__(self, cost, text, kind="v", tag=None, early=0, hd=None, label=None):
        self.cost, self.text, self.kind, self.tag, self.early, self.hd = cost, text, kind, tag, early, hd
def silu_ops(P):
    acc = ACC + 32*(P % 2); ops = []
    for g in range(16):
        ct, rb, d = g >> 2, (g >> 1) & 1, g & 1
        e = 8*ct + 4*rb + 2*d; ta = vT + 2*(g % 3); tb = ta + 1
        hi = 8*(2*P + (ct >> 1)) + 4*rb + 2*(ct & 1) + d
        kind, reg = hdst(hi)
        dst = reg if kind == 'v' else vT + 6 + (g % 3)
        ops += [Op(8, f"v_exp_f32 v{ta}, v{acc+e}"), Op(8, f"v_exp_f32 v{tb}, v{acc+e+1}"),
                Op(4, f"v_fma_f32 v{ta}, v{ta}, s{sK}, s{sK}"), Op(4, f"v_fma_f32 v{tb}, v{tb}, s{sK}, s{sK}"),
                Op(8, f"v_rcp_f32 v{ta}, v{ta}"), Op(8, f"v_rcp_f32 v{tb}, v{tb}"),
                Op(4, f"v_mul_f32 v{ta}, v{acc+e}, v{ta}"), Op(4, f"v_mul_f32 v{tb}, v{acc+e+1}, v{tb}"),
                Op(4, f"v_cvt_pk_bf16_f32 v{dst}, v{ta}, v{tb}", hd=hi if kind == 'v' else None)]
        if kind == 'a': ops.append(Op(4, f"v_accvgpr_write_b32 a{reg}, v{dst}", hd=hi))
    return ops
def store_ops(q):
    P = 9 + q; acc = ACC + 32*(P % 2); ops = []
    for ct in range(4):
        t = vT + 4*(ct % 3)
        for d in range(4): ops.append(Op(4, f"v_cvt_pk_bf16_f32 v{t+d}, v{acc+8*ct+2*d}, v{acc+8*ct+2*d+1}"))
        ops.append(Op(24, f"buffer_store_dwordx4 v[{t}:{t+3}], v{vPS}, {srd(sWs)}, s{sST+q} offen offset:{1024*ct} sc1", "big", ("st", q)))
    return ops
stubs = []
def poll_op(early): return [Op(8, f"buffer_load_dwordx2 v[{vFL}:{vFL+1}], v{vFR}, {srd(sWs)}, 0 offen sc1", "big", ("fl",), early)]
def check_ops(qp, PT, early, mid=()):
    ops = [Op(0, f"s_sub_u32 s{sT0}, s{sS}, {qp+1}", "s", early=early), Op(0, f"s_and_b32 s{sT0}, s{sT0}, 7", "s"),
           Op(0, f"s_lshl_b32 s{sT1}, s{sT0}, 3", "s"), Op(0, f"s_mul_i32 s{sT0}, s{sT0}, 147456", "s"), Op(0, f"s_add_u32 s{sT0}, s{sT0}, s{sPL}", "s"),
           Op(0, None, "vmwait", lambda t: t == ("fl",), early + 10), *mid,
           Op(4, f"v_readfirstlane_b32 s{sF}, v{vFL}"), Op(4, f"v_readfirstlane_b32 s{sF+1}, v{vFL+1}"),
           Op(16, f"s_lshr_b64 s[{sF}:{sF+1}], s[{sF}:{sF+1}], s{sT1}\ns_and_b32 s{sF}, s{sF}, 0xff\ns_cbranch_scc0 L_chk{qp}\nL_chk{qp}_ok:", "blk")]
    stubs.append(qp)
    for ct in range(4):
        ops.append(Op(8, f"buffer_load_dwordx4 v[{PT+4*ct}:{PT+4*ct+3}], v{vPS}, {srd(sWs)}, s{sT0} offen offset:{1024*ct} sc1", "big", ("pl", qp)))
    return ops
def add_ops(qp, PT, early):
    ops = [Op(0, None, "vmwait", lambda t: t == ("pl", qp), early)]
    for d in range(16):
        ta = vT + 2*(d % 2); e = RR + 2*d
        ops += [Op(4, f"v_lshlrev_b32 v{ta}, 16, v{PT+d}"), Op(4, f"v_and_b32 v{ta+1}, s{sHI}, v{PT+d}"),
                Op(4, f"v_add_f32 v{e}, v{e}, v{ta}"), Op(4, f"v_add_f32 v{e+1}, v{e+1}, v{ta+1}")]
    return ops
def pos_ops(q):
    ops = []
    PT = lambda qp: PT1 if qp & 1 else PT0
    if q == 1:
        for i, r in enumerate((None, None, vFR, None, vOA, vLA, vLA8)):
            if r: ops.append(Op(4, f"v_accvgpr_read_b32 v{r}, a{aST+i}"))
    ops += store_ops(q - 1)
    if q >= 3: ops += poll_op(0)
    fill = []
    if q == 2:
        for d in range(16):
            ta = vT + (d % 2)
            fill += [Op(4, f"v_accvgpr_read_b32 v{ta}, a{aXR+d}"), Op(4, f"v_lshlrev_b32 v{RR+2*d}, 16, v{ta}"), Op(4, f"v_and_b32 v{RR+2*d+1}, s{sHI}, v{ta}")]
    if q >= 4: fill = add_ops(q - 4, PT(q - 4), 0)
    if q <= 7: flag = [Op(0, f"s_add_u32 s{sT2}, s{sFLB}, s{sCOL+q-1}", "s"), Op(8, line_store(vFV, vLA, sT2), "big", ("flag",))]
    else: flag = [Op(8, line_store(vFV, vLA8, sFLB), "big", ("flag",))]
    ops += fill[:37]
    if q >= 3: ops += check_ops(q - 3, PT(q - 3), 84, flag)
    else: ops += [Op(0, None, "vmwait", lambda t: t == ("st", q - 1), 100)] + flag
    if q == 8: ops += fill[37:53] + poll_op(0) + fill[53:]
    else: ops += fill[37:]
    return ops
def hs_sites(P):
    if 1 <= P <= 8: S.e(f"s_cmp_eq_u32 s{sHSK}, {P-1}\ns_cbranch_scc1 L_hsl{P}\nL_hsl{P}_ok:")
    if 3 <= P <= 10: S.e(f"s_cmp_eq_u32 s{sHSK}, {P-3}\ns_cbranch_scc1 L_hsc{P}\nL_hsc{P}_ok:")
hdone = set()
def put(o):
    if o.kind == "vmwait":
        x = vm.wait(o.tag)
        if x: S.e(x)
        return
    if "--x-nost" in sys.argv and o.kind == "big" and o.tag[0] in ("st", "pl"): return
    S.e(o.text)
    if o.kind == "big": vm.issue(o.tag)
    if o.hd is not None: hdone.add(o.hd)
S.e(vm.wait(lambda t: t == ("dma", 0))); S.e("s_barrier")
rq = [(j, h) for j in range(NU) for h in range(2)]
rp = 0
for _ in range(2*DR):
    j, h = rq[rp]; S.e(rd_ins(j)[h]); lg.issue(j); rp += 1
S.e(lg.wait(lambda t: t <= 0))
dq = [(T, n) for T in (2, 3, 4) for n in range(6)]
owed = 0
est = 0; est_p = []
m0_set = None
for P in range(18):
    phaseA = 1 <= P <= 9
    ops = [] if P == 0 else (silu_ops(P-1) if phaseA else pos_ops(P - 9))
    ntot = len(ops); oi = 0
    G0, G1 = 3, (143 if P < 9 else 132)
    acc = ACC + 32*(P % 2)
    e0 = est
    if P in (1, 5, 9, 11, 12, 15) and not XST: stamp(S, 8 + (1, 5, 9, 11, 12, 15).index(P))
    for u in range(72):
        i = 72*P + u; k, ct = u >> 2, u & 3
        for h in range(2):
            G = 2*u + h
            rb = h ^ (ct & 1); a = acc + 8*ct + 4*rb
            if P < 9: b = f"v[{8*k+4*rb}:{8*k+4*rb+3}]"
            else:
                b = hreg(k, rb)
                assert all(8*k + 4*rb + d in hdone for d in range(4)), (P, u)
            S.e(mf16(a, f"a[{frag(i)}:{frag(i)+3}]", b, k == 0))
            cost = 8
            if G == 1: hs_sites(P)
            dma_now = None
            slot_free = True
            if h == 1:
                if i + 1 < NU:
                    assert rp >= 2*(i + 2), (P, u, rp)
                    x = lg.wait(lambda t: t <= i + 1)
                    if x: S.e(x); slot_free = False
            elif dq and m0_set == dq[0] and (u % 4 == 2 or (P == 0 and u % 2 == 0)):
                dma_now = dq.pop(0); S.e(dma_soff(*dma_now)); slot_free = False
            elif dq and (u % 4 == 1 or (P == 0 and u % 2 == 1)):
                S.e(dma_m0(*dq[0])); m0_set = dq[0]; slot_free = False
            if slot_free and oi < ntot and ops[oi].kind in ("s", "vmwait") and G >= ops[oi].early:
                put(ops[oi]); oi += 1
            if rp < len(rq) and rq[rp][0] <= i + DR: owed = sum(1 for z in rq[rp:rp+6] if 2*z[0] + z[1] <= 2*(i + DR) + h)
            else: owed = 0
            big = dma_now is not None
            if not big and not phaseA and oi < ntot and ops[oi].kind in ("big", "blk") and G >= max(G0, ops[oi].early) and owed <= 1:
                big = True
            if big and owed <= 1:
                nr = 0
            else:
                nr = min(owed, 2)
            for _ in range(nr):
                j, hh = rq[rp]
                if hh == 0 and j % 24 == 0:
                    T = j // 24
                    S.e(vm.wait(lambda t: t == ("dma", T))); S.e("s_barrier" if T == 1 or "--x-nobar" not in sys.argv else None); cost += 8
                    if T == 2: stamp(S, 15)
                    if T + 4 <= 53: dq += [(T + 4, n) for n in range(6)]
                S.e(rd_ins(j)[hh]); lg.issue(j); rp += 1; cost += 4
            if dma_now is not None:
                if "--x-nodma" not in sys.argv: S.e(dma_go(*dma_now)); vm.issue(("dma", dma_now[0]))
                cost += 8
            elif big:
                cost += ops[oi].cost; put(ops[oi]); oi += 1
            if G >= G0:
                if phaseA:
                    tgt = -(-ntot*(G - G0 + 1) // (G1 - G0 + 1))
                    while oi < ntot and oi < tgt and (cost < 16 or (dma_now is None and cost + ops[oi].cost <= 24) or oi < tgt - 1):
                        cost += ops[oi].cost; put(ops[oi]); oi += 1
                else:
                    while oi < ntot and G >= ops[oi].early and ((ops[oi].kind in ("v", "s", "vmwait") and cost + 4 <= 16) or G == 143):
                        cost += max(4, ops[oi].cost); put(ops[oi]); oi += 1
            est += max(16, cost)
    assert oi == ntot, (P, oi, ntot)
    est_p.append(est - e0)
assert not dq
print("ffn stream estimate:", est, est_p, file=sys.stderr)

S = seg("ffn_tail")
stamp(S, 4)
acc = ACC + 32
for o in check_ops(6, PT0, 0): put(o)
def dot_add(R, P, n):
    for d in range(n):
        S.e(f"v_dot2_f32_bf16 v{R+2*d}, v{P+d}, s{sSEL0}, v{R+2*d}\nv_dot2_f32_bf16 v{R+2*d+1}, v{P+d}, s{sSEL1}, v{R+2*d+1}")
S.e(f"s_mul_i32 s{sT2}, s{sS}, 147456\ns_add_u32 s{sT2}, s{sT2}, s{sPL}")
S.e(vm.wait(lambda t: t == ("pl", 5)))
dot_add(RR, PT1, 16)
for e in range(0, 32, 2): S.e(f"v_pk_add_f32 v[{acc+e}:{acc+e+1}], v[{acc+e}:{acc+e+1}], v[{RR+e}:{RR+e+1}]")
S.e(f"buffer_load_ubyte v{vT}, v{vFR}, {srd(sWs)}, 0 offen offset:32 sc1"); vm.issue(("zf",))
S.e(vm.wait(lambda t: t == ("pl", 6)))
dot_add(acc, PT0, 16)
stamp(S, 5)
S.e(f"s_waitcnt vmcnt(0)\nv_cmp_eq_u32 vcc, 1, v{vT}\ns_cbranch_vccnz L_pz_done")
spin_head(S, "pz")
S.e(f"buffer_load_ubyte v{vT}, v{vFR}, {srd(sWs)}, 0 offen offset:32 sc1\ns_waitcnt vmcnt(0)\nv_cmp_eq_u32 vcc, 1, v{vT}\ns_cbranch_vccnz L_pz_done")
spin_tail(S, "pz")
S.e("L_pz_done:")
stamp(S, 6)
zq = Q("vmcnt", 63)
for ct in range(4):
    S.e(f"buffer_load_dwordx4 v[{PT1+4*ct}:{PT1+4*ct+3}], v{vPS}, {srd(sWs)}, s{sT2} offen offset:{1024*ct} sc1"); zq.issue(ct >> 1)
S.e(f"s_add_u32 s{sT2}, s{sT3}, {16*1152}")
for c in range(2):
    S.e(zq.wait(lambda t: t <= c))
    dot_add(acc + 16*c, PT1 + 8*c, 8)
    for rb in range(2):
        p = 8*c + 4*rb
        for z in range(2):
            a = acc + 8*(2*c + z) + 4*rb
            S.e(f"v_cvt_pk_bf16_f32 v{p+2*z}, v{a}, v{a+1}\nv_cvt_pk_bf16_f32 v{p+2*z+1}, v{a+2}, v{a+3}")
    for rb in range(2):
        p = 8*c + 4*rb
        S.e(f"v_permlane16_swap_b32 v{p}, v{p+2}\nv_permlane16_swap_b32 v{p+1}, v{p+3}")
    for rb in range(2):
        p = 8*c + 4*rb
        S.e(f"buffer_store_dwordx4 v[{p}:{p+3}], v{vOA}, {srd(sOut)}, s{sT2 if rb else sT3} offen offset:{64*c} {OUTF}"); zq.issue(9)
S = seg("ffn_end")
S.e("L_ffn_end:")
if "--diag-delay" in sys.argv:
    S.e(f"s_mov_b32 s{sT0}, 1000\nL_dly:\ns_nop 15\ns_nop 7\ns_sub_u32 s{sT0}, s{sT0}, 1\ns_cmp_lg_u32 s{sT0}, 0\ns_cbranch_scc1 L_dly")
if STAMP: S.e("s_waitcnt vmcnt(0)")
stamp(S, 7)
stamp_out(S)
S.e("s_endpgm")
S = seg("ffn_stubs")
for qp in stubs:
    S.e(f"L_chk{qp}:")
    spin_head(S, f"chk{qp}")
    S.e(f"""buffer_load_dwordx2 v[{vFL}:{vFL+1}], v{vFR}, {srd(sWs)}, 0 offen sc1
    s_waitcnt vmcnt(0)
    v_readfirstlane_b32 s{sF}, v{vFL}
    v_readfirstlane_b32 s{sF+1}, v{vFL+1}
    s_lshr_b64 s[{sF}:{sF+1}], s[{sF}:{sF+1}], s{sT1}
    s_and_b32 s{sF}, s{sF}, 0xff
    s_cbranch_scc1 L_chk{qp}_ok""")
    spin_tail(S, f"chk{qp}")
    S.e(f"s_branch L_chk{qp}_ok")
for P in range(1, 9):
    S.e(f"L_hsl{P}:\nbuffer_load_ubyte a247, off, {srd(sDbg)}, s{sHSA} sc1\ns_branch L_hsl{P}_ok")
S.e("L_hs_sub:")
spin_head(S, "hs")
S.e(f"""v_accvgpr_read_b32 v{vFA}, a247
v_readfirstlane_b32 s{sT0}, v{vFA}
s_cmp_eq_u32 s{sT0}, 1
s_cbranch_scc1 L_hs_ret
buffer_load_ubyte a247, off, {srd(sDbg)}, s{sHSA} sc1
s_waitcnt vmcnt(0)""")
spin_tail(S, "hs")
S.e(f"L_hs_ret:")
for P in range(3, 10): S.e(f"s_cmp_eq_u32 s{sHSK}, {P-3}\ns_cbranch_scc1 L_hsc{P}_ok")
S.e("s_branch L_hsc10_ok")
for P in range(3, 11): S.e(f"L_hsc{P}:")
S.e("s_branch L_hs_sub")

QSH = 110592; QST = 152
SS, Q2V, CC, OO = 0, 64, 96, 184
K1B, VB, K2B = 16, 24, 40
vQA = 248
sWQL, sWQG = 89, 90
sPF = sKV
S = seg("att_pro")
S.e("L_att:")
vm = Q("vmcnt", 63); vm.q = list(vm_entry)
mark = len(S.ins)
S.e(f"s_lshl_b32 s{sHSA}, s{sR}, 7\ns_add_u32 s{sHSA}, s{sHSA}, {KC_OFF}\ns_cmp_lg_u32 s{sW}, 0\ns_cbranch_scc1 L_nsnap\nbuffer_load_dword a204, off, {srd(sWs)}, s{sHSA} sc1\nL_nsnap:")
S.e(f"s_mul_i32 s{sT0}, s{sS}, 144\ns_and_b32 s{sT2}, s{sT0}, 63\ns_and_b32 s{sT0}, s{sT0}, 0xffc0")
mk_srd(S, sWa, 6, 576*1152, add=sT0, shrink=True)
S.e(f"s_mul_i32 s{sT0}, s{sS}, 1152")
mk_srd(S, sPF, 16, 576*9216, add=sT0, shrink=True)
AT = TX + 8
t0, t1, t2 = AT+4, AT+5, AT+6
vDQ, vDQ2, vPFR, vPF = 168, 169, 170, 171
t3 = AT + 7
S.e(f"""v_lshrrev_b32 v{t0}, 2, v{vLANE}
v_lshl_add_u32 v{t0}, s{sW}, 4, v{t0}
v_mul_u32_u24 v{t0}, 1152, v{t0}
v_lshrrev_b32 v{t1}, 5, v{vLANE}
v_lshlrev_b32 v{t2}, 1, v{t1}
v_xor_b32 v{t2}, v{t2}, v{vLANE}
v_and_b32 v{t2}, 3, v{t2}
v_lshl_add_u32 v{vDQ}, v{t2}, 4, v{t0}
v_mul_u32_u24 v{t0}, 3072, v{t1}
v_bfe_u32 v{t1}, v{vLANE}, 2, 2
v_lshl_add_u32 v{t0}, v{t1}, 6, v{t0}
v_bfe_u32 v{t1}, v{vLANE}, 4, 1
v_lshl_add_u32 v{t0}, v{t1}, 9, v{t0}
v_lshlrev_b32 v{t1}, 5, v{t1}
s_mul_i32 s{sT1}, s{sW}, 3072""")
for ct in range(5):
    S.e(f"""v_and_b32 v{t2}, {3 if ct < 4 else 1}, v{vLANE}
    v_lshl_add_u32 v{t2}, v{t2}, 3, s{sT2}
    v_add_u32 v{t2}, {32*ct}, v{t2}
    v_lshrrev_b32 v{t3}, 6, v{t2}
    v_lshl_add_u32 v{t3}, v{t3}, 10, v{t0}
    v_and_b32 v{t2}, 63, v{t2}
    v_xor_b32 v{t2}, v{t2}, v{t1}
    v_add_u32 v{vQA+ct}, v{t2}, v{t3}""")
S.e(f"""s_mov_b32 s{sPL}, s{sT1}
s_and_b32 s{sT0}, s{sR}, {NW-1}
s_lshl_b32 s{sT0}, s{sT0}, 2
s_add_u32 s{sT0}, s{sT0}, s{sW}
s_mul_i32 s{sT0}, s{sT0}, {LPW}
v_add_u32 v254, s{sT0}, v{vLANE}
v_mov_b32 v{t1}, 100000
v_cmp_gt_u32 vcc, {LPW}, v{vLANE}
v_cndmask_b32 v254, v{t1}, v254, vcc
s_and_b32 s{sT0}, s{sR}, {NW-1}
s_mul_i32 s{sT0}, s{sT0}, 9
s_lshr_b32 s{sT0}, s{sT0}, {int(math.log2(NW))}
s_mul_i32 s{sWQL}, s{sT0}, 12288
s_add_u32 s{sWQL}, s{sWQL}, s{sPL}
s_mul_i32 s{sWQG}, s{sT0}, 73728
""")
aWO = 205
WOH = 73728
S.e(f"""v_bfe_u32 v{t0}, v{vLANE}, 2, 3
s_and_b32 s{sT0}, s{sW}, 1
s_lshr_b32 s{sT1}, s{sW}, 1
s_mul_i32 s{sT2}, s{sT0}, 18
s_lshl_b32 s{sEX}, s{sT1}, 3
s_add_u32 s{sT2}, s{sT2}, s{sEX}
v_add_u32 v{t1}, s{sT2}, v{t0}
""")
dma_lane(S, t3, 1152, t1, 'B', t2)
S.e(f"""v_accvgpr_write_b32 a{aWO}, v{t3}
v_lshrrev_b32 v{t1}, 2, v{t0}
v_mul_u32_u24 v{t1}, 72, v{t1}
v_bfe_u32 v{t2}, v{t0}, 1, 1
v_mul_u32_u24 v{t2}, 18, v{t2}
v_add_u32 v{t1}, v{t1}, v{t2}
v_and_b32 v{t2}, 1, v{t0}
v_add3_u32 v{AT+8}, v{t1}, v{t2}, 16
s_mul_i32 s{sT2}, s{sT0}, 144
s_mul_i32 s{sEX}, s{sT1}, 36
s_add_u32 s{sT2}, s{sT2}, s{sEX}
v_add_u32 v{t1}, s{sT2}, v{AT+8}
""")
dma_lane(S, t3, 1152, t1, 'B', t2)
S.e(f"""v_accvgpr_write_b32 a{aWO+1}, v{t3}
v_lshrrev_b32 v{AT+9}, 5, v{vLANE}
s_mul_i32 s{sT2}, s{sT1}, 36
s_lshl_b32 s{sEX}, s{sT0}, 3
s_add_u32 s{sT2}, s{sT2}, s{sEX}
v_mul_u32_u24 v{t1}, 18, v{AT+9}
v_add3_u32 v{t1}, v{t1}, v{t0}, s{sT2}
v_lshlrev_b32 v{AT+10}, 6, v{AT+9}
""")
dma_lane(S, t3, 1152, t1, 'B', t2)
S.e(f"""v_sub_u32 v{t3}, v{t3}, v{AT+10}
v_accvgpr_write_b32 a{aWO+2}, v{t3}
s_mul_i32 s{sT2}, s{sT1}, 288
s_mul_i32 s{sEX}, s{sT0}, 36
s_add_u32 s{sT2}, s{sT2}, s{sEX}
v_mul_u32_u24 v{t1}, 144, v{AT+9}
v_add3_u32 v{t1}, v{t1}, v{AT+8}, s{sT2}
""")
dma_lane(S, t3, 1152, t1, 'B', t2)
S.e(f"v_sub_u32 v{t3}, v{t3}, v{AT+10}\nv_accvgpr_write_b32 a{aWO+3}, v{t3}")
tr_lane(S, t3, 'B', t2)
S.e(f"""v_accvgpr_write_b32 a{aWO+4}, v{t3}
v_lshlrev_b32 v{t2}, 9, v{AT+9}
v_sub_u32 v{t3}, v{t3}, v{t2}
s_and_b32 s{sT0}, s{sS}, 1
s_lshl_b32 s{sT0}, s{sT0}, 5
v_xor_b32 v{t3}, s{sT0}, v{t3}
v_add_u32 v{t3}, {WOH}, v{t3}
v_accvgpr_write_b32 a{aWO+5}, v{t3}
v_and_b32 v{t1}, 15, v{vLANE}
v_mul_u32_u24 v{t1}, 1152, v{t1}
v_lshrrev_b32 v{t2}, 4, v{vLANE}
v_lshl_add_u32 v{t1}, v{t2}, 3, v{t1}
v_add_u32 v{t1}, s{sXB}, v{t1}
v_accvgpr_write_b32 a{aWO+6}, v{t1}
""")
line_addr(S, t3, 1, 32, t1, add=sT3)
S.e(f"v_accvgpr_write_b32 a{aWO+7}, v{t3}")
xres_lane(S, AT+8, t1)
S.e(f"s_and_b32 s{sT0}, s{sS}, 3\ns_lshl_b32 s{sT0}, s{sT0}, 5\nv_xor_b32 v{AT+8}, s{sT0}, v{AT+8}")
def xres_att():
    for rb in range(2): S.e(f"ds_read_b64 a[{216+2*rb}:{217+2*rb}], v{AT+8} offset:{32768 + 2048*rb}")
for i in range(64): S.e(f"v_mov_b32 v{OO+i}, 0")
interleave(S, mark, sum((x_items(vm, c) for c in range(2, XPRE)), []))
fin = x_read_stats(S, vm, AT, xres_att)
stamp(S, 1)
def wq_item(n):
    def f():
        t = n % 3
        S.e(f"s_add_u32 m0, s{sWQL}, {t*1024}\ns_add_u32 s{sOFF}, s{sWQG}, {64*t}\nbuffer_load_dwordx4 v{vDQ}, {srd(sWa)}, s{sOFF} offen lds"); vm.issue(("wq",))
        if t == 2 and n < 26:
            S.e(f"""s_add_u32 s{sWQL}, s{sWQL}, 12288
            s_add_u32 s{sWQG}, s{sWQG}, 73728
            s_cmp_eq_u32 s{sWQG}, {9*73728}
            s_cselect_b32 s{sWQL}, s{sPL}, s{sWQL}
            s_cselect_b32 s{sWQG}, 0, s{sWQG}""")
    return f
items = [wq_item(n) for n in range(27)]
for f in items[:9]: f()
fin()
ln_stats(S, AT)
ln_norm(S, AT, LOG2E / math.sqrt(18.0), items[9:], centre_only=True)
if not XST: stamp(S, 2)
S.e(vm.wait(lambda t: t == ("wq",))); S.e("s_barrier")
QA = 144
def rdq(j):
    k, ct = j // 5, j % 5
    r = trr(frag(j), vQA + ct, (k % 9)*6144, (k % 9)*6144 + 256)
    if k == 8: r[1] += f"\nv_add_u32 v{vQA+ct}, {9*6144}, v{vQA+ct}"
    return r
def unitq(j):
    k, ct = j // 5, j % 5
    return [mf16(QA + 8*ct + 4*(h ^ (j & 1)), f"a[{frag(j)}:{frag(j)+3}]", f"v[{8*k+4*(h ^ (j & 1))}:{8*k+4*(h ^ (j & 1))+3}]", k == 0) for h in range(2)]
def preq(j):
    if not NOPF and j in (4, 18, 32, 46, 60): S.e(f"buffer_load_dword a200, v254, {srd(sPF)}, 0 offen offset:{128*(2 + j//14)}")
S.e(f"v_accvgpr_write_b32 a203, v254\nv_mul_u32_u24 v254, 9216, v254")
simple_gemm(S, 90, rdq, unitq, preq)
stamp(S, 3)
cq = LOG2E / math.sqrt(18.0)
U = 96
vQW, vQR, vQR2, vKP = U, U+1, U+2, U+3
S.e(f"""s_mul_i32 s{sT0}, s{sW}, {32*QST}
s_add_u32 s{sT0}, s{sT0}, {QSH}
v_and_b32 v{U+4}, 15, v{vLANE}
v_and_b32 v{vKP}, 7, v{vLANE}
v_lshlrev_b32 v{vKP}, 2, v{vKP}
v_accvgpr_read_b32 v{U+17}, a204
v_add_u32 v{U+17}, 32, v{U+17}
v_mul_u32_u24 v{U+4}, {QST}, v{U+4}
v_lshrrev_b32 v{U+5}, 4, v{vLANE}
v_lshl_add_u32 v{U+4}, v{U+5}, 3, v{U+4}
v_add_u32 v{vQW}, s{sT0}, v{U+4}
v_and_b32 v{U+4}, 31, v{vLANE}
v_mul_u32_u24 v{U+4}, {QST}, v{U+4}
v_add_u32 v{vQR2}, s{sT0}, v{U+4}
v_lshrrev_b32 v{U+5}, 5, v{vLANE}
v_lshl_add_u32 v{vQR}, v{U+5}, 4, v{vQR2}
v_accvgpr_read_b32 v{U+6}, a201
v_accvgpr_read_b32 v{U+7}, a201
v_accvgpr_read_b32 v{U+8}, a202
v_accvgpr_read_b32 v{U+9}, a202
""")
for e in range(0, 40, 2):
    z = U + 6 + 2*((e >> 2) & 1)
    S.e(f"v_pk_mul_f32 v[{QA+e}:{QA+e+1}], v[{QA+e}:{QA+e+1}], v[{z}:{z+1}]")
for ct in range(5):
    for rb in range(2):
        a = QA + 8*ct + 4*rb; p = 4*ct + 2*rb
        S.e(f"v_cvt_pk_bf16_f32 v{p}, v{a}, v{a+1}\nv_cvt_pk_bf16_f32 v{p+1}, v{a+2}, v{a+3}")
    if ct == 4: S.e("s_mov_b32 exec_hi, 0")
    for rb in range(2):
        p = 4*ct + 2*rb
        S.e(f"ds_write_b64 v{vQW}, v[{p}:{p+1}] offset:{16*QST*rb + 32*ct}")
S.e("s_mov_b64 exec, -1\ns_waitcnt lgkmcnt(0)")
Q1 = 32
for j in range(4):
    S.e(f"ds_read2_b32 v[{Q1+4*j}:{Q1+4*j+1}], v{vQR} offset0:{9*j} offset1:{9*j+1}")
    S.e(f"ds_read2_b32 v[{Q1+4*j+2}:{Q1+4*j+3}], v{vQR} offset0:{9*j+2} offset1:{9*j+3}")
    S.e(f"ds_read_b32 v{Q1+16+j}, v{vQR2} offset:{36*j+32}")
vK1, vV, vK2, vIDX, vKN, vKD, vOF, vHA = 160, 161, 162, 163, 164, 165, 166, 167
S.e(f"""v_lshlrev_b32 v{vK1}, 4, v{vLANE}
v_lshlrev_b32 v{vK2}, 3, v{vLANE}
v_and_b32 v{U+4}, 31, v{vLANE}
v_subrev_u32 v{U+5}, 20, v{U+4}
v_cmp_gt_u32 vcc, 8, v{U+5}
v_min_u32 v{U+4}, 19, v{U+4}
v_addc_co_u32 v{U+4}, vcc, 0, v{U+4}, vcc
v_lshrrev_b32 v{U+5}, 5, v{vLANE}
v_mul_u32_u24 v{U+5}, 336, v{U+5}
v_lshl_add_u32 v{vV}, v{U+4}, 4, v{U+5}
v_mov_b32 v{vIDX}, 0xdddddddd
v_lshlrev_b32 v{vKN}, 2, v{vLANE}
s_lshl_b32 s{sM0}, s{sW}, 12
v_cmp_gt_u32 vcc, 32, v{vLANE}
""")
for j in range(4):
    b = Q2V + 8*j
    for z in (1, 2, 5, 6): S.e(f"v_mov_b32 v{b+z}, 0")
S.e("s_waitcnt lgkmcnt(0)")
for j in range(4):
    b = Q2V + 8*j
    S.e(f"""v_cndmask_b32 v{b}, 0, v{Q1+16+j}, vcc
    v_cndmask_b32 v{b+3}, 0, v{Q1+16+j}, vcc
    v_cndmask_b32 v{b+4}, v{Q1+16+j}, v{b+1}, vcc
    v_cndmask_b32 v{b+7}, v{Q1+16+j}, v{b+1}, vcc""")
for i in range(16): S.e(f"v_accvgpr_write_b32 a{i}, v{Q1+i}")
stamp(S, 4)
S.e(f"s_cmp_lg_u32 s{sW}, 0\ns_cbranch_scc1 L_pk_done")
spin_head(S, "pk")
S.e(f"""buffer_load_dword v{U+16}, off, {srd(sWs)}, s{sHSA} sc1
s_waitcnt vmcnt(0)
v_cmp_eq_u32 vcc, v{U+16}, v{U+17}
s_cbranch_vccnz L_pk_done
s_and_b32 s{sT0}, s{sSPIN}, 15
s_cmp_lg_u32 s{sT0}, 15
s_cbranch_scc1 L_pk_next
buffer_load_dword v{U+16}, v{vKP}, {srd(sDbg)}, 0 offen sc1
s_waitcnt vmcnt(0)
v_cmp_ne_u32 vcc, 0x1010101, v{U+16}
s_cbranch_vccz L_pk_done
L_pk_next:""")
spin_tail(S, "pk", 2)
S.e("L_pk_done:")
S.e("s_barrier")
stamp(S, 5)
vm = Q("vmcnt", 63)
S.e(f"s_mov_b32 s{sOFF}, {KN_OFF}\nbuffer_load_dword v{U+4}, v{vKN}, {srd(sWs)}, s{sOFF} offen sc1"); vm.issue("kn")
def kv_blk(m): return f"s_add_u32 m0, s{sM0}, {m*16384}\ns_add_u32 s{sOFF}, s{sM0}, {m*16384}"
def kv_dma(z): return f"buffer_load_dwordx4 v{vK1}, {srd(sWs)}, s{sOFF} offen offset:{1024*z} sc1 lds"
for m in range(2):
    S.e(kv_blk(m))
    for z in range(4): S.e(kv_dma(z)); vm.issue(m)
qn = U + 8
for j in range(4): S.e(f"v_dot2_f32_bf16 v{qn+j}, v{Q2V+8*j}, v{Q2V+8*j}, 0")
for d in range(4):
    for j in range(4): S.e(f"v_dot2_f32_bf16 v{qn+j}, v{Q1+4*j+d}, v{Q1+4*j+d}, v{qn+j}")
for j in range(4): S.e(f"v_mov_b32 v{qn+4+j}, v{qn+j}")
for j in range(4): S.e(f"v_permlane32_swap_b32 v{qn+j}, v{qn+4+j}")
for j in range(4): S.e(f"v_add_f32 v{qn+j}, v{qn+j}, v{qn+4+j}")
S.e(f"v_max_f32 v{qn}, v{qn}, v{qn+1}\nv_max3_f32 v{qn}, v{qn}, v{qn+2}, v{qn+3}")
S.e(f"s_mov_b32 s{sF}, 0x87\ns_mov_b32 s{sF+1}, 0x800000")
for q in range(9):
    it = 2 + q
    S.e(f"s_lshr_b32 s{sT0}, s{sCOL+q}, 7\ns_lshl_b32 s{sT0}, s{sT0}, {4*(it % 8)}\ns_or_b32 s{sF + it//8}, s{sF + it//8}, s{sT0}")
S.e(f"s_mul_i32 s{sT0}, s{sS}, 0x11000\ns_or_b32 s{sF+1}, s{sF+1}, s{sT0}")
S.e(f"v_accvgpr_read_b32 v{vPFR}, a203\nv_mov_b32 v{vPF}, v254")
line_addr(S, vOF, 8, 1024, U+5)
S.e(vm.wait(lambda t: t == "kn"))
wave_max(S, U+4)
S.e(f"""v_mov_b32 v{U+5}, {f2u(-1.0 if FORCE_FB else 4096.0)}
v_readlane_b32 s{sT0}, v{U+4}, 63
v_mul_f32 v{qn}, s{sT0}, v{qn}
v_cmp_nle_f32 vcc, v{qn}, v{U+5}
""")
S.e(vm.wait(lambda t: t == 0))
S.e(f"""s_barrier
s_cbranch_vccnz L_att_fb
ds_read_b64 a[{K2B}:{K2B+1}], v{vK2}
ds_read_b128 a[{K1B}:{K1B+3}], v{vK1} offset:512
s_mov_b32 s{sCNT}, 1
v_mov_b32 v{vKD}, v{vK1}
s_waitcnt lgkmcnt(0)
""")
stamp(S, 6)

def att_step(S, it, u, mode):
    j, t = u & 3, u >> 2
    s = SS + 16*j; e = SS + 16*((j-1) & 3); p = SS + 16*((j-2) & 3); o = OO + 16*((j-2) & 3)
    vb = VB + 8*(((u-2) >> 2) & 1)
    kb = K1B + 4*(t & 1); k2 = K2B + 2*(it & 1)
    base = it*KV_IT
    first = mode == 'peel' and it == 0
    def ex(a):
        if first and u == 0: return
        for i in range(4): S.e(f"v_exp_f32 v{e+a+i}, v{e+a+i}")
    pv = not (first and u < 2)
    pf = mode in ('peel', 'loop') and not NOPF
    dmas = first
    c = f"v[{CC+16*j}:{CC+16*j+15}]" if mode == 'fb' else "0"
    S.e(f"v_mfma_f32_32x32x16_bf16 v[{s}:{s+15}], a[{kb}:{kb+3}], a[{4*j}:{4*j+3}], {c}")
    if j == 2: S.e("s_waitcnt lgkmcnt(0)")
    if mode in ('loop', 'fb'):
        if it == 1 and u == 1: S.e(f"s_add_u32 s{sCNT}, s{sCNT}, 1")
        if it == 1 and u == 15: S.e(f"s_cmp_lt_u32 s{sCNT}, {7 if mode == 'loop' else 8}")
    if pf and u == 4: S.e(f"s_and_b32 s{sT0}, s{sF}, 15")
    if pf and u == 5: S.e(f"s_lshl_b32 s{sT0}, s{sT0}, 7")
    if pf and u == 9: S.e(f"s_lshr_b64 s[{sF}:{sF+1}], s[{sF}:{sF+1}], 4")
    ex(0)
    q2 = Q2V + 8*j + 2*t
    S.e(f"v_mfma_f32_32x32x8_bf16 v[{s}:{s+15}], a[{k2}:{k2+1}], v[{q2}:{q2+1}], v[{s}:{s+15}]")
    ex(4)
    if pv: S.e(f"v_smfmac_f32_32x32x32_bf16 v[{o}:{o+15}], a[{vb}:{vb+3}], v[{p}:{p+7}], v{vIDX}")
    if dmas and u % 2 == 0: S.e(kv_blk(2 + u // 2))
    if mode == 'peel' and it == 1 and u == 0:
        S.e(vm.wait(lambda t: t == 1)); S.e("s_barrier")
    if pf and mode == 'loop' and it == 0:
        if u == 0: S.e(f"s_cmp_ge_u32 s{sCNT}, 6\ns_cselect_b32 s{sPF}, s{sWo}, s{sPF}")
        if u == 1: S.e(f"s_cselect_b32 s{sPF+1}, s{sWo+1}, s{sPF+1}")
    wo = 16*it + u - 2 if mode == 'last' else -1
    if 0 <= wo < 27:
        if wo < 18:
            lds = wo*4096; soff = 36*wo*1152 if wo < 16 else 288*(wo - 16)*1152; wv = vWO + (wo >= 16); sb = sT3
        else:
            n = wo - 18; lds = WOH + n*4096; soff = 72*n*1152 if n < 8 else 0; wv = vWO + 2 + (n == 8); sb = sT1
        S.e(f"s_add_u32 m0, s{sT2}, {lds}\ns_add_u32 s{sOFF}, s{sb}, {soff}")
    vn = VB + 8*(t & 1)
    if j == 0: S.e(f"ds_read_b128 a[{vn}:{vn+3}], v{vV} offset:{base + 4608 + VT*t}")
    if j == 1: S.e(f"ds_read_b128 a[{vn+4}:{vn+7}], v{vV} offset:{base + 4608 + VT*t + 672}")
    if j == 2:
        kn = K1B + 4*((t+1) & 1)
        off = base + 512 + 1024*(t+1) if t < 3 else base + KV_IT + 512
        S.e(f"ds_read_b128 a[{kn}:{kn+3}], v{vK1} offset:{off}")
        if t == 2:
            k2n = K2B + 2*((it+1) & 1)
            S.e(f"ds_read_b64 a[{k2n}:{k2n+1}], v{vK2} offset:{base + KV_IT}")
    if j == 3 and it == 1 and t == 3:
        S.e(f"v_add_u32 v{vK1}, {2*KV_IT}, v{vK1}\nv_add_u32 v{vV}, {2*KV_IT}, v{vV}\nv_add_u32 v{vK2}, {2*KV_IT}, v{vK2}")
    if dmas: S.e(kv_dma((2*u) % 4).replace(f"v{vK1},", f"v{vKD},")); vm.issue(2 + u // 2)
    if 0 <= wo < 27: S.e(f"buffer_load_dwordx4 v{wv}, {srd(sWo)}, s{sOFF} offen lds")
    if pf and u == 7: S.e(f"buffer_load_dword a200, v{vPF}, {srd(sPF)}, s{sT0} offen"); vm.issue("pf")
    ex(8)
    if pv: S.e(f"v_smfmac_f32_32x32x32_bf16 v[{o}:{o+15}], a[{vb+4}:{vb+7}], v[{p+8}:{p+15}], v{vIDX}")
    if j == 3: S.e("s_waitcnt lgkmcnt(0)")
    if dmas: S.e(kv_dma((2*u + 1) % 4).replace(f"v{vK1},", f"v{vKD},")); vm.issue(2 + u // 2)
    ex(12)
S = seg("att_peel")
for it in range(2):
    for u in range(16): att_step(S, it, u, 'peel')
S.e(vm.wait(lambda t: t == 9)); S.e("s_barrier")
S.e(f"s_mov_b32 s{sPF}, s{sWb}\ns_mov_b32 s{sPF+1}, s{sWb+1}\ns_mov_b32 s{sPF+2}, s{sWb+2}\nv_mul_u32_u24 v{vPF}, 1152, v{vPFR}")
S = seg("att_loop")
S.e(".p2align 6\nL_att_loop:")
for it in range(2):
    for u in range(16): att_step(S, it, u, 'loop')
S.e("s_cbranch_scc1 L_att_loop")
S = seg("att_last")
vWO = 172
def wo_setup(S):
    for i in range(4): S.e(f"v_accvgpr_read_b32 v{vWO+i}, a{aWO+i}")
    S.e(f"s_lshl_b32 s{sT2}, s{sW}, 10\ns_and_b32 s{sT1}, s{sS}, 2\ns_lshl_b32 s{sT1}, s{sT1}, 5\ns_add_u32 s{sT1}, s{sT1}, 1024")
S.e("s_barrier")
wo_setup(S)
for it in range(2):
    for u in range(16): att_step(S, it, u, 'last')
S = seg("att_tail")
S.e("L_att_tail:")
stamp(S, 7)
vb = VB + 8
p = SS + 32; o = OO + 32; e = SS + 48
S.e(f"v_smfmac_f32_32x32x32_bf16 v[{o}:{o+15}], a[{vb}:{vb+3}], v[{p}:{p+7}], v{vIDX}")
for i in range(8): S.e(f"v_exp_f32 v{e+i}, v{e+i}")
S.e(f"v_smfmac_f32_32x32x32_bf16 v[{o}:{o+15}], a[{vb+4}:{vb+7}], v[{p+8}:{p+15}], v{vIDX}")
for i in range(8, 16): S.e(f"v_exp_f32 v{e+i}, v{e+i}")
S.e(f"""s_lshl_b32 s{sT0}, s{sR}, 2
s_add_u32 s{sT0}, s{sT0}, s{sW}
s_mul_i32 s{sT0}, s{sT0}, {36*1024}
s_add_u32 s{sT0}, s{sT0}, {O_OFF}""")
p = SS + 48; o = OO + 48
S.e(f"v_smfmac_f32_32x32x32_bf16 v[{o}:{o+15}], a[{vb}:{vb+3}], v[{p}:{p+7}], v{vIDX}")
S.e(f"""s_lshl_b32 s{sT1}, s{sS}, 12
s_add_u32 s{sT1}, s{sT1}, s{sT0}
v_bfe_u32 v{U+8}, v{vLANE}, 4, 1
v_lshlrev_b32 v{U+8}, 10, v{U+8}
v_lshrrev_b32 v{U+9}, 5, v{vLANE}
v_lshl_add_u32 v{U+8}, v{U+9}, 8, v{U+8}""")
S.e(f"v_smfmac_f32_32x32x32_bf16 v[{o}:{o+15}], a[{vb+4}:{vb+7}], v[{p+8}:{p+15}], v{vIDX}")
S.e(f"""s_lshr_b32 s{sT2}, s{sS}, 2
s_lshl_b32 s{sT2}, s{sT2}, 11
v_and_b32 v{U+9}, 15, v{vLANE}
v_lshl_add_u32 v{vK1}, v{U+9}, 4, v{U+8}
s_add_u32 s{sT0}, s{sT0}, s{sT2}
s_and_b32 s{sT2}, s{sS}, 3
s_lshl_b32 s{sT2}, s{sT2}, 8
s_add_u32 s{sT0}, s{sT0}, s{sT2}
s_add_u32 s{sT2}, s{sT0}, 32768
v_mov_b32 v{U+10}, 1
""")
for j in range(4):
    o = OO + 16*j; l = U + 2*j; P = 64 + 4*j
    S.e(f"v_mov_b32 v{l}, v{o+10}\nv_mov_b32 v{l+1}, v{o+10}\nv_permlane32_swap_b32 v{l}, v{l+1}\nv_rcp_f32 v{l}, v{l}\ns_nop 0\nv_mov_b32 v{l+1}, v{l}")
    for i in range(0, 10, 2): S.e(f"v_pk_mul_f32 v[{o+i}:{o+i+1}], v[{o+i}:{o+i+1}], v[{l}:{l+1}]")
    for d in range(4): S.e(f"v_cvt_pk_bf16_f32 v{P+d}, v{o+2*d}, v{o+2*d+1}")
    S.e(f"v_cvt_pk_bf16_f32 v{80+j}, v{o+8}, v{o+9}")
    S.e(f"buffer_store_dwordx4 v[{P}:{P+3}], v{vK1}, {srd(sWs)}, s{sT1} offen offset:{2048*(j >> 1) + 512*(j & 1)} sc1")
S.e(f"""s_mov_b32 exec_hi, 0
buffer_store_dwordx4 v[80:83], v{vK1}, {srd(sWs)}, s{sT2} offen sc1
s_mov_b64 exec, -1
s_waitcnt vmcnt(0)""")
S.e(line_store(U+10, vOF, sFLB))
S.e("s_barrier")
stamp(S, 8)
vB, vH8, vLN, vPL, vPS2, vZF, vO8 = 104, 108, 109, 110, 111, 112, 113
S.e(f"""v_accvgpr_read_b32 v{vB}, a{aWO+4}
v_accvgpr_read_b32 v{vH8}, a{aWO+5}
v_accvgpr_read_b32 v{vO8}, a{aWO+6}
v_accvgpr_read_b32 v{vZF}, a{aWO+7}
v_xor_b32 v{vB+1}, 32, v{vB}
v_add_u32 v{vB+2}, 49152, v{vB}
v_add_u32 v{vB+3}, 49152, v{vB+1}
v_lshlrev_b32 v{vLN}, 4, v{vLANE}
v_add_u32 v{vPS2}, s{sM0}, v{vLN}
s_lshl_b32 s{sT2}, s{sW}, 3
s_add_u32 s{sT2}, s{sT2}, s{sT3}
s_add_u32 s{sT2}, s{sT2}, s{sFLB}
s_add_u32 s{sT2}, s{sT2}, 1024
v_mov_b32 v{vPL}, s{sT2}
s_lshl_b32 s{sOFF}, s{sR}, 2
s_add_u32 s{sOFF}, s{sOFF}, s{sW}
s_mul_i32 s{sOFF}, s{sOFF}, {36*1024}
s_add_u32 s{sOFF}, s{sOFF}, {O_OFF}
""")
poll_line(S, "po", vPL, 0, 114)
stamp(S, 9)
oq = Q("vmcnt", 63)
def o_load(S, oq, k):
    S.e(f"buffer_load_dwordx4 a[{4*k}:{4*k+3}], v{vLN}, {srd(sWs)}, s{sOFF} offen offset:{1024*(k%4)} sc1"); oq.issue(k // 2)
    if k % 4 == 3 and k < 35: S.e(f"s_add_u32 s{sOFF}, s{sOFF}, 4096")
NPRE = 12
for k in range(NPRE): o_load(S, oq, k)
S.e(f"""s_mul_i32 s{sPL}, s{sR}, {8*147456}
s_add_u32 s{sPL}, s{sPL}, {P_OFF}
s_mul_i32 s{sT2}, s{sS}, {147456 + 16384}
s_add_u32 s{sT2}, s{sT2}, s{sPL}
s_lshr_b32 s{sT0}, s{sS}, 2
s_lshr_b32 s{sT1}, s{sW}, 1
s_cmp_eq_u32 s{sT0}, s{sT1}
s_cbranch_scc1 L_att_o5""")
def oproj(S, nct, oq0):
    oq = Q("vmcnt", 63); oq.q = list(oq0.q)
    nxt = [NPRE]
    def rd(j):
        k, ct = j // nct, j % nct
        if ct < 4:
            off = (k % 12)*4096 + (ct >> 1)*512
            return trr(frag(j), vB + 2*(k // 12) + (ct & 1), off, off + 2048)
        return trr(frag(j), vH8, k*2048, k*2048 + 1024)
    def unit(j):
        k, ct = j // nct, j % nct
        return [mf16(8*ct + 4*(h ^ (j & 1)), f"a[{frag(j)}:{frag(j)+3}]", f"a[{8*k+4*(h ^ (j & 1))}:{8*k+4*(h ^ (j & 1))+3}]", k == 0) for h in range(2)]
    def pre(j):
        k, ct = j // nct, j % nct
        if ct in (1, 2) and nxt[0] < 36: o_load(S, oq, nxt[0]); nxt[0] += 1
        if ct == 0: S.e(oq.wait(lambda t: t <= k))
    simple_gemm(S, 18*nct, rd, unit, pre)
    for ct in range(4):
        p = 48 + 4*ct
        for d in range(4): S.e(f"v_cvt_pk_bf16_f32 v{p+d}, v{8*ct+2*d}, v{8*ct+2*d+1}")
        S.e(f"buffer_store_dwordx4 v[{p}:{p+3}], v{vPS2}, {srd(sWs)}, s{sT2} offen offset:{1024*ct} sc1")
    S.e(f"v_mov_b32 v{U+10}, 1\ns_waitcnt vmcnt(0)")
    S.e(line_store(U+10, vZF, sFLB))
S = seg("att_o4")
oproj(S, 4, oq)
S.e("s_branch L_att_end")
S = seg("att_o5")
S.e("L_att_o5:")
oproj(S, 5, oq)
for d in range(4): S.e(f"v_accvgpr_read_b32 v{40+d}, a{216+d}")
for d in range(4): S.e(f"v_dot2_f32_bf16 v{32+2*d}, v{40+d}, s{sSEL0}, v{32+2*d}\nv_dot2_f32_bf16 v{33+2*d}, v{40+d}, s{sSEL1}, v{33+2*d}")
poll_line(S, "p8", vPL, 32, 114)
S.e(f"s_and_b32 s{sT0}, s{sS}, 3\ns_lshl_b32 s{sT1}, s{sT0}, 10\ns_add_u32 s{sPL}, s{sPL}, s{sT1}\ns_add_u32 s{sPL}, s{sPL}, {8*16384}")
q = Q("vmcnt", 63)
for sp in range(8):
    S.e(f"buffer_load_dwordx4 v[{64+4*sp}:{67+4*sp}], v{vPS2}, {srd(sWs)}, s{sPL} offen sc1"); q.issue(sp)
    if sp < 7: S.e(f"s_add_u32 s{sPL}, s{sPL}, 147456")
S.e(f"s_lshl_b32 s{sT0}, s{sT0}, 5\ns_add_u32 s{sT0}, s{sT0}, 1024\ns_add_u32 s{sT1}, s{sT0}, {16*1152}")
for sp in range(8):
    S.e(q.wait(lambda t: t <= sp))
    for d in range(4): S.e(f"v_dot2_f32_bf16 v{32+2*d}, v{64+4*sp+d}, s{sSEL0}, v{32+2*d}\nv_dot2_f32_bf16 v{33+2*d}, v{64+4*sp+d}, s{sSEL1}, v{33+2*d}")
for d in range(4): S.e(f"v_cvt_pk_bf16_f32 v{40+d}, v{32+2*d}, v{33+2*d}")
for rb in range(2): S.e(f"buffer_store_dwordx2 v[{40+2*rb}:{41+2*rb}], v{vO8}, {srd(sOut)}, s{sT1 if rb else sT0} offen {OUTF}")
S = seg("att_end")
S.e("L_att_end:")
if STAMP: S.e("s_waitcnt vmcnt(0)")
stamp(S, 10)
stamp_out(S)
S.e("s_endpgm")

S = seg("att_fb")
S.e("L_att_fb:")
for m in range(2, 10):
    S.e(kv_blk(m))
    for z in range(4): S.e(kv_dma(z))
S.e(f"s_waitcnt vmcnt(0)\ns_barrier\ns_barrier\ns_mov_b32 s{sCNT}, 0")
mx = 172
for j in range(4): S.e(f"v_mov_b32 v{mx+j}, 0xff800000")
S.e(f"v_mov_b32 v{mx+4}, v{vK1}\nv_mov_b32 v{mx+5}, v{vK2}")
S = seg("att_fb_max")
S.e("L_att_fb_max:")
S.e(f"ds_read_b64 a[{K2B}:{K2B+1}], v{mx+5}")
for t in range(4): S.e(f"ds_read_b128 a[{44+4*t}:{47+4*t}], v{mx+4} offset:{512+1024*t}")
S.e(f"v_add_u32 v{mx+4}, {KV_IT}, v{mx+4}\nv_add_u32 v{mx+5}, {KV_IT}, v{mx+5}\ns_waitcnt lgkmcnt(0)")
for t in range(4):
    for j in range(4):
        s = SS + 16*j; q2 = Q2V + 8*j + 2*t
        S.e(f"v_mfma_f32_32x32x16_bf16 v[{s}:{s+15}], a[{44+4*t}:{47+4*t}], a[{4*j}:{4*j+3}], 0")
        S.e(f"v_mfma_f32_32x32x8_bf16 v[{s}:{s+15}], a[{K2B}:{K2B+1}], v[{q2}:{q2+1}], v[{s}:{s+15}]")
    for j in range(4):
        s = SS + 16*j
        for i in range(0, 16, 2): S.e(f"v_max3_f32 v{mx+j}, v{s+i}, v{s+i+1}, v{mx+j}")
S.e(f"s_add_u32 s{sCNT}, s{sCNT}, 1\ns_cmp_lt_u32 s{sCNT}, 16\ns_cbranch_scc1 L_att_fb_max")
S = seg("att_fb_init")
for j in range(4):
    S.e(f"v_mov_b32 v{mx+4}, v{mx+j}\nv_permlane32_swap_b32 v{mx+j}, v{mx+4}\nv_max_f32 v{mx+j}, v{mx+j}, v{mx+4}")
    for i in range(16): S.e(f"v_sub_f32 v{CC+16*j+i}, 0, v{mx+j}")
for i in range(32, 64): S.e(f"v_mov_b32 v{i}, 0")
for i in range(8): S.e(f"v_accvgpr_write_b32 a{VB+8+i}, 0")
S.e(f"""ds_read_b64 a[{K2B}:{K2B+1}], v{vK2}
ds_read_b128 a[{K1B}:{K1B+3}], v{vK1} offset:512
s_mov_b32 s{sCNT}, 0
s_waitcnt lgkmcnt(0)""")
S = seg("att_fb_loop")
S.e("L_att_fb_loop:")
for it in range(2):
    for u in range(16): att_step(S, it, u, 'fb')
S.e("s_cbranch_scc1 L_att_fb_loop\ns_barrier")
S = seg("att_fb_wo")
wo_setup(S)
for wo in range(27):
    if wo < 18:
        lds = wo*4096; soff = 36*wo*1152 if wo < 16 else 288*(wo - 16)*1152; wv = vWO + (wo >= 16); sb = sT3
    else:
        n = wo - 18; lds = WOH + n*4096; soff = 72*n*1152 if n < 8 else 0; wv = vWO + 2 + (n == 8); sb = sT1
    S.e(f"s_add_u32 m0, s{sT2}, {lds}\ns_add_u32 s{sOFF}, s{sb}, {soff}\nbuffer_load_dwordx4 v{wv}, {srd(sWo)}, s{sOFF} offen lds")
S.e("s_branch L_att_tail")
S = seg("end")
S.e("L_exit:\ns_endpgm\n.p2align 6\nL_codeend:")

by = {s.name: s for s in segs}
prev = []
for s in segs:
    s.autopad(prev[-40:])
    prev = s.ins
    if s.padded: print(f"seg {s.name}: {s.padded} pads", file=sys.stderr)
paths = [["entry", "att_pro", "att_peel", "att_loop", "att_loop", "att_last", "att_tail", "att_o5"],
         ["ffn_pro", "ffn_norm"], ["ffn_kv", "ffn_norm"],
         ["att_fb_max", "att_fb_max"], ["att_fb_loop", "att_fb_loop", "att_fb_wo", "att_tail"]]
for p in paths:
    seq = sum((by[n].ins for n in p), [])
    for i, miss, who in violations(seq):
        print("VIOLATION path", p, seq[i].text, "<-", who.text, miss, file=sys.stderr); sys.exit(1)

hdr = open("cdna_kernels/" + NAME + ".s.ref").read().split("; Override launch")[0]
out = hdr + "; Generated by a hand-written generator (dev/gen.py): one persistent launch, 128 FFN + 128 attention workgroups.\n"
out += "; @launch grid=(256,1,1) block=(256,1,1) lds=163840\n"
out += f""".amdgcn_target "amdgcn-amd-amdhsa--gfx950"
.text
.globl {NAME}_kernel
.p2align 8
.type {NAME}_kernel,@function
{NAME}_kernel:
"""
out += "".join(s.text() for s in segs)
out += f""".section .rodata,"a"
.p2align 6
.amdhsa_kernel {NAME}_kernel
  .amdhsa_next_free_vgpr 512
  .amdhsa_next_free_sgpr 102
  .amdhsa_accum_offset 256
  .amdhsa_group_segment_fixed_size 0
  .amdhsa_kernarg_size 88
  .amdhsa_user_sgpr_count 2
  .amdhsa_user_sgpr_kernarg_segment_ptr 1
  .amdhsa_system_sgpr_workgroup_id_x 1
.end_amdhsa_kernel
"""
dst = [a for a in sys.argv[1:] if not a.startswith("--")]
open(dst[0] if dst else "cdna_kernels/" + NAME + ".s", "w").write(out)
```

```python
from mblib import *
import sys
M = Multi('b10')
def wrap2(loop_body, iters, pre=""):
    ld = ""
    for i in range(0, 200, 4):
        ld += f"buffer_load_dwordx4 v[{i}:{i+3}], v220, s[24:27], s30 offen\ns_add_u32 s30, s30, 4096\n"
    for i in range(0, 256, 4):
        ld += f"buffer_load_dwordx4 a[{i}:{i+3}], v220, s[24:27], s30 offen\ns_add_u32 s30, s30, 4096\n"
        if i % 64 == 60: ld += "s_waitcnt vmcnt(0)\n"
    for n in range(36):
        ld += f"s_add_u32 m0, s40, {n*4096}\ns_add_u32 s30, s30, 4096\nbuffer_load_dwordx4 v220, s[24:27], s30 offen lds\n"
    return f"""
    s_load_dwordx2 s[4:5], s[0:1], 0
    s_load_dwordx2 s[6:7], s[0:1], 8
    s_waitcnt lgkmcnt(0)
    s_mov_b32 s8, s6
    s_mov_b32 s9, s7
    s_mov_b32 s10, 0x100000
    s_mov_b32 s11, 0x20000
    s_mov_b32 s24, s4
    s_mov_b32 s25, s5
    s_mov_b32 s26, 0x1000000
    s_mov_b32 s27, 0x20000
    v_lshrrev_b32 v210, 6, v0
    s_lshl_b32 s3, s2, 2
    v_readfirstlane_b32 s40, v210
    v_add_u32 v210, s3, v210
    v_lshlrev_b32 v210, 3, v210
    s_lshl_b32 s40, s40, 10
    v_mov_b32 v211, 0xdddddddd
    v_and_b32 v212, 63, v0
    v_lshlrev_b32 v213, 3, v212
    v_lshlrev_b32 v212, 4, v212
    v_lshlrev_b32 v220, 4, v0
    s_mov_b32 s30, 0
{ld}
    s_waitcnt vmcnt(0)
{pre}
    s_barrier
    s_mov_b32 s20, {iters}
    s_memtime s[12:13]
    s_memrealtime s[16:17]
    s_waitcnt lgkmcnt(0)
.p2align 6
L_loop:
{loop_body}
    s_sub_u32 s20, s20, 1
    s_cmp_lg_u32 s20, 0
    s_cbranch_scc1 L_loop
L_skip:
    s_nop 15
    s_memtime s[14:15]
    s_memrealtime s[18:19]
    s_waitcnt lgkmcnt(0)
    s_sub_u32 s14, s14, s12
    s_sub_u32 s18, s18, s16
    v_mov_b32 v214, s14
    v_mov_b32 v215, s18
    buffer_store_dwordx2 v[214:215], v210, s[8:11], 0 offen
    s_waitcnt vmcnt(0)
"""
def add(name, body, n, iters, pre="", **kw):
    M.add(name, wrap2(body, iters, pre), block=256, lds=160*1024, n=n*iters, **kw)
zacc = "\n".join(f"v_mov_b32 v{i}, 0" for i in range(64))
def g32(reads, nk=36):
    s = []
    for i in range(72):
        ks, t = i//2, i%2; f = 144 + 4*(i%8)
        s.append(f"v_mfma_f32_32x32x16_bf16 v[{16*t}:{16*t+15}], a[{f}:{f+3}], a[{4*ks}:{4*ks+3}], {'0' if ks==0 else 'v[%d:%d]'%(16*t,16*t+15)}")
        if reads:
            if i%2: s.append("s_waitcnt lgkmcnt(6)")
            g = 144 + 4*((i+6)%8)
            s.append(f"ds_read_b64_tr_b16 a[{g}:{g+1}], v213 offset:{(i%60)*1024}\nds_read_b64_tr_b16 a[{g+2}:{g+3}], v213 offset:{(i%60)*1024+512}")
    return "\n".join(s)
def g16(reads):
    s = []
    for i in range(72):
        ks, t = i//4, i%4; f = 144 + 4*(i%8)
        for rb in range(2):
            a = 8*t + 4*rb; b = 8*ks + 4*rb
            s.append(f"v_mfma_f32_16x16x32_bf16 v[{a}:{a+3}], a[{f}:{f+3}], a[{b}:{b+3}], {'0' if ks==0 else 'v[%d:%d]'%(a,a+3)}")
            if reads:
                g = 144 + 4*((i+6)%8)
                if rb == 0 and i%2: s.append("s_waitcnt lgkmcnt(6)")
                s.append(f"ds_read_b64_tr_b16 a[{g+2*rb}:{g+2*rb+1}], v213 offset:{(i%60)*1024+512*rb}")
    return "\n".join(s)
if __name__ != "__main__": add = lambda *a, **k: None
IT = 24
add("g32_reg", g32(False), 72, IT)
add("g32_lds", g32(True), 72, IT)
add("g16_reg", g16(False), 72, IT)
add("g16_lds", g16(True), 72, IT)
def g32b():
    s = []
    for i in range(72):
        ks, t = i//2, i%2; f = 144 + 4*(i%8)
        s.append(f"v_mfma_f32_32x32x16_bf16 v[{16*t}:{16*t+15}], a[{f}:{f+3}], a[{4*ks}:{4*ks+3}], {'0' if ks==0 else 'v[%d:%d]'%(16*t,16*t+15)}")
        if i%2: s.append("s_waitcnt lgkmcnt(3)")
        g = 144 + 4*((i+6)%8)
        s.append(f"ds_read_b128 a[{g}:{g+3}], v212 offset:{(i%60)*1024}")
    return "\n".join(s)
add("g32_lds128", g32b(), 72, IT)
half = "s_bitcmp1_b32 s2, 3\ns_cbranch_scc1 L_skip\n"
add("g32_lds_half", g32(True), 72, IT, pre="s_mov_b32 s12, 0\ns_mov_b32 s16, 0\n" + half)
halfx = "s_bitcmp1_b32 s2, 0\ns_cbranch_scc1 L_skip\n"
add("g32_lds_halfxcd", g32(True), 72, IT, pre="s_mov_b32 s12, 0\ns_mov_b32 s16, 0\n" + halfx)
def att(t, qk=True, qk2=True, pv=True, ex=True, vz=False):
    s = []
    j = t % 4
    a = 16*j; b = 16*((j+3)%4); c = 16*((j+2)%4); o = 64 + 16*((j+2)%4)
    kb = 16 + 4*((t//4)%8); vb = 64 + 8*((t//4)%8)
    ms = [f"v_mfma_f32_32x32x16_bf16 v[{a}:{a+15}], a[{kb}:{kb+3}], a[{4*j}:{4*j+3}], 0" if qk else "",
          f"v_mfma_f32_32x32x8_bf16 v[{a}:{a+15}], a[{kb}:{kb+1}], v[{128+8*j+2*((t//4)%4)}:{129+8*j+2*((t//4)%4)}], v[{a}:{a+15}]" if qk2 else "",
          f"v_smfmac_f32_32x32x32_bf16 v[{o}:{o+15}], a[{vb}:{vb+3}], v[{c}:{c+7}], v211" if pv else "",
          f"v_smfmac_f32_32x32x32_bf16 v[{o}:{o+15}], a[{vb+4}:{vb+7}], v[{c+8}:{c+15}], v211" if pv else ""]
    e = 0
    for q in range(4):
        s.append(ms[q])
        for _ in range(4):
            r = b + e; e += 1
            if ex: s.append(f"v_exp_f32 v{r}, v{r}" if qk else f"v_exp_f32 v{r}, v{160+e}")
    return "\n".join(s)
q2pre = "v_cmp_gt_u32 vcc, 512, v212\nv_mov_b32 v199, 0\n" + "\n".join(
    f"v_cndmask_b32 v{128+8*j}, 0, v{128+8*j}, vcc\nv_mov_b32 v{129+8*j}, 0\nv_mov_b32 v{130+8*j}, 0\nv_cndmask_b32 v{131+8*j}, 0, v{131+8*j}, vcc\n"
    f"v_cndmask_b32 v{132+8*j}, v{132+8*j}, v199, vcc\nv_mov_b32 v{133+8*j}, 0\nv_mov_b32 v{134+8*j}, 0\nv_cndmask_b32 v{135+8*j}, v{135+8*j}, v199, vcc" for j in range(4)) + "\n" + "\n".join(f"v_mov_b32 v{i}, 0" for i in range(64,128))
q2pre += "\n" + "\n".join(f"v_and_b32 v{160+i}, 0xffff0000, v{160+i}" for i in range(20))
vz = q2pre + "\nv_and_b32 v198, 0x1f0, v212\nv_cmp_gt_u32 vcc, 19*16, v198\ns_nop 1\n" + "\n".join(f"v_accvgpr_read_b32 v197, a{i}\ns_nop 0\nv_cndmask_b32 v197, 0, v197, vcc\ns_nop 0\nv_accvgpr_write_b32 a{i}, v197" for i in range(64, 128))
T = 32; IA = 8
add("att_full", "\n".join(att(t) for t in range(T)), T, IA, pre=q2pre)
add("att_vz", "\n".join(att(t) for t in range(T)), T, IA, pre=vz)
add("att_nopv", "\n".join(att(t, pv=False) for t in range(T)), T, IA, pre=q2pre)
add("att_noqk2", "\n".join(att(t, qk2=False) for t in range(T)), T, IA, pre=vz)
add("att_exp", "\n".join(att(t, qk=False, qk2=False, pv=False) for t in range(T)), T, IA, pre=q2pre)
add("att_noexp", "\n".join(att(t, ex=False) for t in range(T)), T, IA, pre=vz)
if __name__ == "__main__": M.build()
```

```python
import sys, os, subprocess, struct, json, re
sys.path.insert(0, "cdna_kernels")

KD = """
.amdhsa_kernel {name}
  .amdhsa_next_free_vgpr {nfv}
  .amdhsa_next_free_sgpr 102
  .amdhsa_accum_offset {acc}
  .amdhsa_group_segment_fixed_size 0
  .amdhsa_kernarg_size 88
  .amdhsa_user_sgpr_count 2
  .amdhsa_user_sgpr_kernarg_segment_ptr 1
  .amdhsa_system_sgpr_workgroup_id_x 1
.end_amdhsa_kernel
"""

class Multi:
    def __init__(self, fname, nptrs=3):
        self.fname = fname; self.ks = []; self.meta = {}; self.nptrs = nptrs
    def add(self, name, body, block=256, lds=65536, nfv=512, acc=256, **meta):
        body = re.sub(r"\bL_(\w+)", lambda m: f"L_{name}_{m.group(1)}", body)
        self.ks.append((name + "_kernel", body, block, lds, nfv, acc))
        self.meta[name] = dict(block=block, lds=lds, **meta)
    def build(self):
        from cdna_launch import with_harness_metadata, address_register_problem
        head = "".join(f"; @launch kernel={n} grid=(1,1,1) block=({b},1,1) lds={l}\n" for n, _, b, l, _, _ in self.ks)
        asm = head + '.amdgcn_target "amdgcn-amd-amdhsa--gfx950"\n.text\n'
        for n, body, b, l, nfv, acc in self.ks:
            asm += f".globl {n}\n.p2align 8\n.type {n},@function\n{n}:\n{body}\ns_endpgm\n"
        asm += '.section .rodata,"a"\n'
        for n, body, b, l, nfv, acc in self.ks:
            asm += ".p2align 6" + KD.format(name=n, nfv=nfv, acc=acc)
        full = with_harness_metadata(asm, self.ks[0][0], self.nptrs, launch_lists=True)
        f = self.fname
        open(f + ".harness.tmp", "w").write(full)
        r = subprocess.run(["clang", "-x", "assembler", "-target", "amdgcn-amd-amdhsa", "-mcpu=gfx950",
                            f + ".harness.tmp", "-o", f + ".co"], capture_output=True, text=True)
        if r.returncode:
            print(r.stderr[:4000]); raise SystemExit(1)
        p = address_register_problem(f + ".co", None, [k[0] for k in self.ks])
        if p:
            print(p); raise SystemExit(1)
        json.dump(self.meta, open(f + ".json", "w"))
        print(json.dumps(['cdna_kernels/cdna_launch.py','cdna_kernels/cdna_unwritten_srd_check.py','mb/run1.py',f'mb/{f}.json',f'mb/{f}.co']))

def wrap(loop_body, iters=200, pre="", post=""):
    return f"""
    s_load_dwordx2 s[4:5], s[0:1], 0
    s_load_dwordx2 s[6:7], s[0:1], 8
    s_waitcnt lgkmcnt(0)
    s_mov_b32 s8, s6
    s_mov_b32 s9, s7
    s_mov_b32 s10, 0x100000
    s_mov_b32 s11, 0x20000
    s_mov_b32 s24, s4
    s_mov_b32 s25, s5
    s_mov_b32 s26, 0x1000000
    s_mov_b32 s27, 0x20000
    v_lshrrev_b32 v200, 6, v0
    s_lshl_b32 s3, s2, 4
    v_add_u32 v200, s3, v200
    v_lshlrev_b32 v200, 2, v200
    v_mov_b32 v201, 0xdddddddd
    v_and_b32 v202, 63, v0
    v_lshlrev_b32 v202, 4, v202
{pre}
    s_barrier
    s_mov_b32 s20, {iters}
    s_memtime s[12:13]
    s_waitcnt lgkmcnt(0)
.p2align 6
L_loop:
{loop_body}
    s_sub_u32 s20, s20, 1
    s_cmp_lg_u32 s20, 0
    s_cbranch_scc1 L_loop
{post}
    s_nop 15
    s_memtime s[14:15]
    s_waitcnt lgkmcnt(0)
    s_sub_u32 s14, s14, s12
    v_mov_b32 v203, s14
    buffer_store_dword v203, v200, s[8:11], 0 offen
    s_waitcnt vmcnt(0)
"""
zero = "\n".join(f"    v_mov_b32 v{i}, 0" for i in range(1,200))
```

```python
from mblib import *
from gen10 import wrap2, q2pre, vz
M = Multi('b19')
def add(name, body, n, iters, pre="", **kw):
    M.add(name, wrap2(body, iters, pre), block=256, lds=160*1024, n=n*iters, **kw)
def g16(order, accf="v", bf="a", af="a", swap=False, reads=True):
    s = []
    accb = 0 if accf == "v" else 200
    for ks in range(18):
        if order == 0: seq = [(t, q) for t in range(4) for q in range(2)]
        if order == 1: seq = [(t, q ^ (t & 1)) for t in range(4) for q in range(2)]
        if order == 2: seq = [(t, 0) for t in range(4)] + [(3 - t, 1) for t in range(4)]
        if order == 3:
            r = ks & 1
            seq = [(t, r) for t in range(4)] + [(3 - t, 1 - r) for t in range(4)]
        for n, (t, rb) in enumerate(seq):
            i = 4*ks + t
            f = (144 if af == "a" else 64) + 4*(i % 12)
            a = accb + 8*t + 4*rb; b = (8*ks + 4*rb) if bf == "a" else 32 + (8*ks + 4*rb) % 32 + 80
            A = f"{af}[{f}:{f+3}]"; B = f"{bf}[{b}:{b+3}]"
            if swap: A, B = B, A
            s.append(f"v_mfma_f32_16x16x32_bf16 {accf}[{a}:{a+3}], {A}, {B}, {'0' if ks==0 else '%s[%d:%d]'%(accf,a,a+3)}")
            if reads:
                if n == 7: s.append("s_waitcnt lgkmcnt(7)")
                j = 4*ks + 8 + n//2
                g = (144 if af == "a" else 64) + 4*(j % 12) + 2*(n & 1)
                s.append(f"ds_read_b64_tr_b16 {af}[{g}:{g+1}], v213 offset:{(j%60)*1024+512*(n&1)}")
    return "\n".join(s)
if __name__ != "__main__": add = lambda *a, **k: None
IT = 24
for o in range(4): add(f"o{o}", g16(o), 72, IT)
add("o1_acca", g16(1, accf="a"), 72, IT)
add("o1_swap", g16(1, swap=True), 72, IT)
add("o3_swap", g16(3, swap=True), 72, IT)
add("o1_av", g16(1, af="v"), 72, IT)
def att(t, q2="m8", order=0):
    s = []
    j = t % 4
    a = 16*j; b = 16*((j+3)%4); c = 16*((j+2)%4); o = 64 + 16*((j+2)%4)
    kb = 16 + 4*((t//4)%8); vb = 64 + 8*((t//4)%8)
    z = 128+8*j+2*((t//4)%4)
    if q2 == "m8":
        m1 = f"v_mfma_f32_32x32x16_bf16 v[{a}:{a+15}], a[{kb}:{kb+3}], a[{4*j}:{4*j+3}], 0"
        m2 = f"v_mfma_f32_32x32x8_bf16 v[{a}:{a+15}], a[{kb}:{kb+1}], v[{z}:{z+1}], v[{a}:{a+15}]"
    elif q2 == "m8first":
        m1 = f"v_mfma_f32_32x32x8_bf16 v[{a}:{a+15}], a[{kb}:{kb+1}], v[{z}:{z+1}], 0"
        m2 = f"v_mfma_f32_32x32x16_bf16 v[{a}:{a+15}], a[{kb}:{kb+3}], a[{4*j}:{4*j+3}], v[{a}:{a+15}]"
    elif q2 == "b2":
        m1 = f"v_mfma_f32_32x32x16_bf16 v[{a}:{a+15}], a[{kb}:{kb+3}], a[{4*j}:{4*j+3}], v[{160+16*(j&1)}:{175+16*(j&1)}]"
        m2 = f"v_mfma_f32_32x32x4_2b_bf16 v[160:191], a[{kb}:{kb+1}], v[{z}:{z+1}], 0" if j & 1 else ""
    ms = [m1, m2,
          f"v_smfmac_f32_32x32x32_bf16 v[{o}:{o+15}], a[{vb}:{vb+3}], v[{c}:{c+7}], v211",
          f"v_smfmac_f32_32x32x32_bf16 v[{o}:{o+15}], a[{vb+4}:{vb+7}], v[{c+8}:{c+15}], v211"]
    e = 0
    for q in range(4):
        s.append(ms[q])
        for _ in range(4):
            r = b + e; e += 1
            s.append(f"v_exp_f32 v{r}, v{r}")
    return "\n".join(s)
T = 32; IA = 8
for q2 in ("m8", "m8first", "b2"):
    add("att_" + q2, "\n".join(att(t, q2) for t in range(T)), T, IA, pre=vz)
if __name__ == "__main__": M.build()
```
